```python
import torch

def _softmax(x, axis=-1):
    return torch.softmax(x, dim=axis)
def _gelu(x):
    return torch.nn.functional.gelu(x, approximate="tanh")
def _silu(x):
    return torch.nn.functional.silu(x)
def _sigmoid(x):
    return torch.sigmoid(x)
def _layernorm(x, axis=-1, eps=1e-5):
    m = x.mean(dim=axis, keepdim=True)
    v = x.var(dim=axis, keepdim=True, unbiased=False)
    return (x - m) / torch.sqrt(v + eps)
def _scatter_add(tgt, idx, src, axis=0):
    return tgt.clone().index_add_(axis, idx, src)
def _segment_sum(src, seg, n):
    out = torch.zeros((n,) + src.shape[1:], dtype=src.dtype)
    return out.index_add_(0, seg, src)
def _pad(x, pw):
    flat = tuple(v for pair in reversed(pw) for v in pair)
    return torch.nn.functional.pad(x, flat)

kernel_name = 'gated_mix__mha_block__mixer_s_mlp__prompt'

def setup_inputs():

    _w = (lambda a: (lambda t: t.to(torch.bfloat16) if t.is_floating_point() else t)(torch.as_tensor(a)))
    def _A_setup():
        B, S, D, H = 1, 2048, 448, 16
        return {
            "x": _w((lambda *s: torch.randn(*s, dtype=torch.bfloat16) * 0.1)(B, S, D)),
            "wqkv": _w((lambda *s: torch.randn(*s, dtype=torch.bfloat16) * 0.8)(D, 3 * D)),
            "wo": _w((lambda *s: torch.randn(*s, dtype=torch.bfloat16) * 0.4)(D, D)),
        }
    _A_in = _A_setup()

    def _B_setup():
        B, S, D, F = 1, 2048, 448, 1792
        return {
            "x":  _w((lambda *s: torch.randn(*s, dtype=torch.bfloat16) * 0.1)(B, S, D)),
            "w1": _w((lambda *s: torch.randn(*s, dtype=torch.bfloat16) * 3.2)(D, D) * (D ** -0.5)),
            "w2": _w((lambda *s: torch.randn(*s, dtype=torch.bfloat16) * 3.2)(D, D) * (D ** -0.5)),
            "w3": _w((lambda *s: torch.randn(*s, dtype=torch.bfloat16) * 3.2)(D, F) * (D ** -0.5)),
            "w4": _w((lambda *s: torch.randn(*s, dtype=torch.bfloat16) * 3.2)(F, D) * (F ** -0.5)),
        }
    _B_in = _B_setup()

    return {
        "A_x": _A_in["x"],
        "A_wqkv": _A_in["wqkv"],
        "A_wo": _A_in["wo"],
        "B_x": _B_in["x"],
        "B_w1": _B_in["w1"],
        "B_w2": _B_in["w2"],
        "B_w3": _B_in["w3"],
        "B_w4": _B_in["w4"],
        "gate_w": _w((lambda *s: torch.randn(*s, dtype=torch.bfloat16) * 0.1)(448) * 16.0),
    }

def reference(A_x, A_wqkv, A_wo, B_x, B_w1, B_w2, B_w3, B_w4, gate_w):
    def _A_ref(x, wqkv, wo):
        B, S, D = x.shape
        H = 16
        Dh = D // H
        qkv = (lambda x, *d: x.permute(*d))((x @ wqkv).reshape(B, S, 3, H, Dh), 2, 0, 3, 1, 4)
        q, k, v = qkv[0], qkv[1], qkv[2]
        scores = torch.einsum("bhqd,bhkd->bhqk", q, k) * (Dh ** -0.5)
        p = _softmax(scores, axis=-1)
        o = torch.einsum("bhqk,bhkd->bhqd", p, v)
        return (lambda x, *d: x.permute(*d))(o, 0, 2, 1, 3).reshape(B, S, D) @ wo

    def _B_ref(x, w1, w2, w3, w4):
        B, S, D = x.shape
        h = _gelu(_layernorm(x, axis=-1) @ w1)
        c = D // 4
        g0 = _pad(h[:, :, 0*c:1*c], ((0, 0), (1, 0), (0, 0)))[:, :S, :]
        g1 = _pad(h[:, :, 1*c:2*c], ((0, 0), (0, 1), (0, 0)))[:, 1:, :]
        g2 = _pad(h[:, :, 2*c:3*c], ((0, 0), (2, 0), (0, 0)))[:, :S, :]
        g3 = _pad(h[:, :, 3*c:   ], ((0, 0), (0, 2), (0, 0)))[:, 2:, :]
        hs = torch.concatenate([g0, g1, g2, g3], axis=-1) @ w2
        x1 = x + hs
        h2 = _gelu(_layernorm(x1, axis=-1) @ w3) @ w4
        return x1 + h2

    x = A_x
    g = _sigmoid((x * gate_w).sum(-1, keepdims=True))
    a = _A_ref(x, A_wqkv, A_wo)
    b = _B_ref(x, B_w1, B_w2, B_w3, B_w4)
    return g * a + (1 - g) * b
```

```python
from gen import *

K2_LDS = 65536


def attn_path(a):
    sW, sT0, sT1, sG0, sL0, sSlot, sStage, sThr, sH, sQB = 60, 61, 62, 63, 64, 65, 66, 67, 68, 69
    sSlotW = 70
    vL, vHF, vI = 1, 2, 3
    vD16, vRd0, vRd = 4, 5, 6
    t1, t2, t3, t4 = 7, 8, 9, 10
    vM, vFloor, vT = 11, 12, 13
    vQ = 16
    vS = 24
    vP = 56
    vK = 64
    vV = 80
    vO = 96

    make_srd(a, SRD_WS, P_WS, WS_SIZE)
    a(f"v_and_b32 v{vL}, 63, v0")
    a(f"v_lshrrev_b32 v{vHF}, 5, v{vL}")
    a(f"v_and_b32 v{vI}, 31, v{vL}")
    a(f"v_lshrrev_b32 v{t1}, 6, v0")
    a(f"v_lshlrev_b32 v{vD16}, 4, v{vL}")
    a(f"v_readfirstlane_b32 s{sW}, v{t1}")
    a(f"s_and_b32 s{sH}, s2, 7")
    a(f"s_lshl_b32 s{sH}, s{sH}, 1")
    a(f"s_bfe_u32 s{sT0}, s2, 0x10003")
    a(f"s_add_u32 s{sH}, s{sH}, s{sT0}")
    a(f"s_lshr_b32 s{sQB}, s2, 4")
    a(f"s_lshl_b32 s{sQB}, s{sQB}, 2")
    a(f"s_and_b32 s{sT0}, s{sW}, 3")
    a(f"s_add_u32 s{sQB}, s{sQB}, s{sT0}")
    a(f"s_lshl_b32 s{sT0}, s{sH}, 6")
    a(f"s_add_u32 s{sT0}, s{sT0}, s{sQB}")
    a(f"s_lshl_b32 s{sT0}, s{sT0}, 11")
    a(f"buffer_load_dwordx4 {vr(vQ,4)}, v{vD16}, {sr(SRD_WS,4)}, s{sT0} offen")
    a(f"buffer_load_dwordx4 {vr(vQ+4,4)}, v{vD16}, {sr(SRD_WS,4)}, s{sT0} offen offset:1024")
    a(f"s_lshl_b32 s{sL0}, s{sW}, 11")
    a(f"s_lshr_b32 s{sT0}, s{sW}, 2")
    a(f"s_lshl_b32 s{sT0}, s{sT0}, 5")
    a(f"s_bfe_u32 s{sT1}, s{sW}, 0x10001")
    a(f"s_add_u32 s{sT0}, s{sT0}, s{sT1}")
    a(f"s_lshl_b32 s{sT1}, s{sH}, 6")
    a(f"s_add_u32 s{sT0}, s{sT0}, s{sT1}")
    a(f"s_lshl_b32 s{sG0}, s{sT0}, 11")
    a(f"s_and_b32 s{sT0}, s{sW}, 1")
    a(f"s_lshl_b32 s{sT0}, s{sT0}, 21")
    a(f"s_add_u32 s{sG0}, s{sG0}, s{sT0}")
    a(f"s_add_u32 s{sG0}, s{sG0}, {KF}")
    a(f"s_lshr_b32 s{sT0}, s{sW}, 2")
    a(f"s_lshl_b32 s{sT0}, s{sT0}, 13")
    a(f"v_add_u32 v{vRd0}, s{sT0}, v{vD16}")
    for st in range(4):
        a(f"s_add_u32 m0, s{sL0}, {st*16384}")
        a(f"s_add_u32 s{sT0}, s{sG0}, {st*4096}")
        a(f"buffer_load_dwordx4 v{vD16}, {sr(SRD_WS,4)}, s{sT0} offen lds")
        a(f"buffer_load_dwordx4 v{vD16}, {sr(SRD_WS,4)}, s{sT0} offen offset:1024 lds")
    a(f"s_add_u32 s{sG0}, s{sG0}, {4*4096}")
    for r in range(16):
        a(f"v_mov_b32 v{vO+r}, 0")
    a(f"v_mov_b32 v{vM}, 0")
    a(f"v_mov_b32 v{vFloor}, 0xff800000")
    a(f"s_mov_b32 s{sThr}, 0xff800000")
    a(f"s_mov_b32 s{sStage}, 0")
    a(f"s_mov_b32 s{sSlot}, 0")
    a("s_waitcnt vmcnt(6)")
    a("s_barrier")
    a(f"v_cmp_lt_u32 vcc, 31, v{vL}")
    a(f"ds_read_b128 {vr(vK,4)}, v{vRd0}")
    a(f"ds_read_b128 {vr(vK+4,4)}, v{vRd0} offset:1024")
    a(f"ds_read_b128 {vr(vV,4)}, v{vRd0} offset:2048")
    a(f"ds_read_b128 {vr(vV+4,4)}, v{vRd0} offset:3072")
    a(f"v_cndmask_b32 v{vQ+6}, v{vQ+6}, 0, vcc")
    a(f"v_cndmask_b32 v{vQ+7}, v{vQ+7}, 0, vcc")
    a(f"v_mov_b32 v{vRd}, v{vRd0}")
    a("s_waitcnt lgkmcnt(0)")
    a(f"v_mfma_f32_32x32x16_bf16 {vr(vS,16)}, {vr(vK,4)}, {vr(vQ,4)}, 0")
    a(f"v_mfma_f32_32x32x16_bf16 {vr(vS,16)}, {vr(vK+4,4)}, {vr(vQ+4,4)}, {vr(vS,16)}")
    a("s_nop 15")

    def body(p):
        S, Sn = vS + 16 * p, vS + 16 * (1 - p)
        Kn, Vc, Vn = vK + 8 * (1 - p), vV + 8 * p, vV + 8 * (1 - p)
        o = 4096 if p == 0 else 0
        a(f"ds_read_b128 {vr(Kn,4)}, v{vRd} offset:{o}")
        a(f"ds_read_b128 {vr(Kn+4,4)}, v{vRd} offset:{o+1024}")
        a(f"ds_read_b128 {vr(Vn,4)}, v{vRd} offset:{o+2048}")
        a(f"ds_read_b128 {vr(Vn+4,4)}, v{vRd} offset:{o+3072}")
        a(f"v_max3_f32 v{vT}, v{S}, v{S+1}, v{S+2}")
        for r in range(3, 15, 2):
            a(f"v_max3_f32 v{vT}, v{vT}, v{S+r}, v{S+r+1}")
        a(f"v_max_f32 v{vT}, v{vT}, v{S+15}")
        a(f"v_cmp_lt_f32 vcc, s{sThr}, v{vT}")
        a(f"s_cbranch_vccnz A_slow{p}")
        a.label(f"A_ret{p}")
        a("s_waitcnt lgkmcnt(2)")
        a(f"v_mfma_f32_32x32x16_bf16 {vr(Sn,16)}, {vr(Kn,4)}, {vr(vQ,4)}, 0")
        for r in range(8):
            a(f"v_exp_f32 v{S+r}, v{S+r}")
        a(f"v_mfma_f32_32x32x16_bf16 {vr(Sn,16)}, {vr(Kn+4,4)}, {vr(vQ+4,4)}, {vr(Sn,16)}")
        for r in range(4):
            a(f"v_cvt_pk_bf16_f32 v{vP+r}, v{S+2*r}, v{S+2*r+1}")
        for r in range(8, 10):
            a(f"v_exp_f32 v{S+r}, v{S+r}")
        a(f"v_mfma_f32_32x32x16_bf16 {vr(vO,16)}, {vr(Vc,4)}, {vr(vP,4)}, {vr(vO,16)}")
        for r in range(10, 16):
            a(f"v_exp_f32 v{S+r}, v{S+r}")
        a("s_nop 0")
        for r in range(4, 8):
            a(f"v_cvt_pk_bf16_f32 v{vP+r}, v{S+2*r}, v{S+2*r+1}")
        a("s_nop 1")
        a(f"v_mfma_f32_32x32x16_bf16 {vr(vO,16)}, {vr(Vc+4,4)}, {vr(vP+4,4)}, {vr(vO,16)}")

    a.label("A_loop")
    body(0)
    a(f"s_cmp_lt_u32 s{sStage}, 12")
    a(f"s_cbranch_scc1 A_w4")
    a("s_waitcnt vmcnt(0)")
    a.label("A_w4")
    a("s_waitcnt vmcnt(4) lgkmcnt(0)")
    a("s_barrier")
    a(f"s_cmp_lt_u32 s{sStage}, 12")
    a(f"s_cbranch_scc0 A_nodma")
    a(f"s_add_u32 m0, s{sL0}, s{sSlot}")
    a("s_nop 0")
    a(f"buffer_load_dwordx4 v{vD16}, {sr(SRD_WS,4)}, s{sG0} offen lds")
    a(f"buffer_load_dwordx4 v{vD16}, {sr(SRD_WS,4)}, s{sG0} offen offset:1024 lds")
    a(f"s_add_u32 s{sG0}, s{sG0}, 4096")
    a.label("A_nodma")
    a(f"s_add_u32 s{sSlot}, s{sSlot}, 16384")
    a(f"s_and_b32 s{sSlot}, s{sSlot}, 0xffff")
    a(f"v_add_u32 v{vRd}, s{sSlot}, v{vRd0}")
    body(1)
    a(f"s_add_u32 s{sStage}, s{sStage}, 1")
    a(f"s_cmp_lt_u32 s{sStage}, 16")
    a("s_cbranch_scc1 A_loop")

    a("s_waitcnt lgkmcnt(0)")
    a("s_barrier")
    a("s_nop 7")
    a(f"s_and_b32 s{sT0}, s{sW}, 3")
    a(f"s_mul_i32 s{sT0}, s{sT0}, 4608")
    a(f"v_lshlrev_b32 v{t1}, 2, v{vL}")
    a(f"v_add_u32 v{t1}, s{sT0}, v{t1}")
    a(f"s_cmp_lt_u32 s{sW}, 4")
    a("s_cbranch_scc1 A_comb")
    for r in range(16):
        a(f"ds_write_b32 v{t1}, v{vO+r} offset:{256*r}")
    a(f"ds_write_b32 v{t1}, v{vM} offset:4096")
    a("s_waitcnt lgkmcnt(0)")
    a("s_barrier")
    a("s_endpgm")
    a.label("A_comb")
    a("s_barrier")
    for r in range(16):
        a(f"ds_read_b32 v{vS+r}, v{t1} offset:{256*r}")
    a(f"ds_read_b32 v{t2}, v{t1} offset:4096")
    a("s_waitcnt lgkmcnt(0)")
    a(f"v_max_f32 v{t3}, v{vM}, v{t2}")
    a(f"v_sub_f32 v{t4}, v{vM}, v{t3}")
    a(f"v_sub_f32 v{t2}, v{t2}, v{t3}")
    a(f"v_exp_f32 v{t4}, v{t4}")
    a(f"v_exp_f32 v{t2}, v{t2}")
    a("s_nop 0")
    for r in range(16):
        a(f"v_mul_f32 v{vO+r}, v{vO+r}, v{t4}")
    for r in range(16):
        a(f"v_fmac_f32 v{vO+r}, v{vS+r}, v{t2}")
    a(f"v_mov_b32 v{t2}, v{vO+12}")
    a(f"v_mov_b32 v{t3}, v{vO+12}")
    a("s_nop 1")
    a(f"v_permlane32_swap_b32 v{t2}, v{t3}")
    a(f"v_rcp_f32 v{t3}, v{t3}")
    a(f"v_cmp_lt_u32 vcc, 31, v{vL}")
    for r in range(16):
        a(f"v_mul_f32 v{vO+r}, v{vO+r}, v{t3}")
    for r in range(8):
        a(f"v_cvt_pk_bf16_f32 v{vP+r}, v{vO+2*r}, v{vO+2*r+1}")
    a(f"v_cndmask_b32 v{vP+6}, v{vP+6}, 0, vcc")
    a(f"v_cndmask_b32 v{vP+7}, v{vP+7}, 0, vcc")
    a(f"s_lshl_b32 s{sT0}, s{sQB}, 4")
    a(f"s_add_u32 s{sT0}, s{sT0}, s{sH}")
    a(f"s_lshl_b32 s{sT0}, s{sT0}, 11")
    a(f"s_add_u32 s{sT0}, s{sT0}, {OF}")
    a(f"buffer_store_dwordx4 {vr(vP,4)}, v{vD16}, {sr(SRD_WS,4)}, s{sT0} offen")
    a(f"buffer_store_dwordx4 {vr(vP+4,4)}, v{vD16}, {sr(SRD_WS,4)}, s{sT0} offen offset:1024")
    a("s_endpgm")

    for p in range(2):
        S = vS + 16 * p
        a.label(f"A_slow{p}")
        a(f"v_mov_b32 v{t1}, v{vT}")
        a("s_nop 7")
        a(f"v_permlane32_swap_b32 v{vT}, v{t1}")
        a("s_nop 3")
        a(f"v_max3_f32 v{vT}, v{vT}, v{t1}, v{vFloor}")
        a(f"v_mov_b32 v{vFloor}, 0")
        a(f"s_mov_b32 s{sThr}, 0x41000000")
        a(f"v_add_f32 v{vM}, v{vM}, v{vT}")
        a(f"v_max_f32 v{t1}, 0, v{vT}")
        a(f"v_exp_f32 v{t1}, -v{t1}")
        for r in range(16):
            a(f"v_sub_f32 v{S+r}, v{S+r}, v{vT}")
        for r in range(16):
            a(f"v_mul_f32 v{vO+r}, v{vO+r}, v{t1}")
        a(f"v_sub_f32 v{t1}, 0, v{vM}")
        a(f"v_cvt_pk_bf16_f32 v{t2}, v{t1}, v{t1}")
        a(f"v_and_b32 v{t2}, 0xffff0000, v{t2}")
        a(f"v_sub_f32 v{t1}, v{t1}, v{t2}")
        a(f"v_cvt_pk_bf16_f32 v{t3}, v{t1}, v{t1}")
        a(f"v_and_b32 v{t3}, 0xffff0000, v{t3}")
        a(f"v_sub_f32 v{t1}, v{t1}, v{t3}")
        a(f"v_cvt_pk_bf16_f32 v{t2}, v{t2}, v{t3}")
        a(f"v_cvt_pk_bf16_f32 v{t3}, v{t1}, 0")
        a(f"v_cmp_lt_u32 vcc, 31, v{vL}")
        a("s_nop 1")
        a(f"v_cndmask_b32 v{vQ+6}, v{vQ+6}, v{t2}, vcc")
        a(f"v_cndmask_b32 v{vQ+7}, v{vQ+7}, v{t3}, vcc")
        a("s_nop 1")
        a(f"s_branch A_ret{p}")


def w2_path(a):
    sW, sT0, sT1, sRB, sHalf, sQ0, sQ1, sM0, sM1 = 60, 61, 62, 63, 64, 65, 66, 67, 68
    vL, vHF, vI, vWr0 = 1, 2, 3, 4
    vWd = 5
    t1, t2, t3 = 6, 7, 8
    vAo = 10
    vWr = 14
    vX = 16
    vA = 32
    vWf = 64
    vAcc = 80
    vP = 112
    SLOT = 14336
    make_srd(a, SRD_A, P_WS, HF_SIZE, HF)
    make_srd(a, SRD_W, P_W2, 448 * 896)
    make_srd(a, SRD_WS, P_WS, WS_SIZE)
    make_srd(a, SRD_E, P_X, 2048 * 896)
    lane_consts(a, vL, vHF, vI, vWr0, t1, t2, 4)
    a(f"v_lshrrev_b32 v{t1}, 6, v0")
    a("s_nop 0")
    a(f"v_readfirstlane_b32 s{sW}, v{t1}")
    a(f"s_sub_u32 s{sT0}, s2, 256")
    a(f"s_and_b32 s{sRB}, s{sT0}, 31")
    a(f"s_lshr_b32 s{sHalf}, s{sT0}, 5")
    a(f"s_lshl_b32 s{sRB}, s{sRB}, 1")
    a(f"s_and_b32 s{sT0}, s{sW}, 1")
    a(f"s_add_u32 s{sRB}, s{sRB}, s{sT0}")
    a(f"s_lshl_b32 s{sT0}, s{sRB}, 5")
    a(f"v_add_u32 v{t1}, s{sT0}, v{vI}")
    a(f"v_mul_u32_u24 v{t2}, 896, v{t1}")
    a(f"v_lshlrev_b32 v{t3}, 3, v{vHF}")
    a(f"v_add_u32 v{t2}, v{t2}, v{t3}")
    a(f"s_mul_i32 s{sT0}, s{sHalf}, 448")
    a(f"s_lshr_b32 s{sT1}, s{sW}, 1")
    a(f"s_lshl_b32 s{sT1}, s{sT1}, 7")
    a(f"s_add_u32 s{sT0}, s{sT0}, s{sT1}")
    for tt in range(2):
        for q in range(4):
            a(f"buffer_load_dwordx2 {vr(vX+8*tt+2*q,2)}, v{t2}, {sr(SRD_E,4)}, s{sT0} offen offset:{64*tt+16*q}")
    for g, sh in enumerate((1, -1, 2, -2)):
        a(f"v_subrev_u32 v{t2}, {sh}, v{t1}" if sh > 0 else f"v_add_u32 v{t2}, {-sh}, v{t1}")
        a(f"v_lshrrev_b32 v{t3}, 5, v{t2}")
        a(f"v_mul_u32_u24 v{t3}, 28672, v{t3}")
        a(f"v_and_b32 v{vAo+g}, 31, v{t2}")
        a(f"v_lshl_add_u32 v{vAo+g}, v{vHF}, 5, v{vAo+g}")
        a(f"v_lshl_add_u32 v{vAo+g}, v{vAo+g}, 4, v{t3}")
        a(f"v_cmp_gt_u32 vcc, 2048, v{t2}")
        a(f"v_mov_b32 v{t3}, 0x80000000")
        a("s_nop 0")
        a(f"v_cndmask_b32 v{vAo+g}, v{t3}, v{vAo+g}, vcc")
    a(f"v_lshrrev_b32 v{t1}, 2, v{vL}")
    a(f"v_mul_u32_u24 v{t1}, 896, v{t1}")
    a(f"v_and_b32 v{t2}, 3, v{vL}")
    a(f"v_lshlrev_b32 v{t2}, 4, v{t2}")
    a(f"v_add_u32 v{vWd}, v{t1}, v{t2}")
    a(f"s_add_u32 s{sT1}, s{sW}, 8")
    a(f"s_cmp_lt_u32 s{sT1}, 14")
    a(f"s_cselect_b32 s{sT1}, s{sT1}, s{sW}")
    for (sq, sm, src) in ((sQ0, sM0, sW), (sQ1, sM1, sT1)):
        a(f"s_lshl_b32 s{sm}, s{src}, 10")
        a(f"s_and_b32 s{sq}, s{src}, 1")
        a(f"s_mul_i32 s{sq}, s{sq}, {16*896}")
        a(f"s_lshr_b32 s{sT0}, s{src}, 1")
        a(f"s_lshl_b32 s{sT0}, s{sT0}, 6")
        a(f"s_add_u32 s{sq}, s{sq}, s{sT0}")
        a(f"s_mul_i32 s{sT0}, s{sHalf}, 448")
        a(f"s_add_u32 s{sq}, s{sq}, s{sT0}")
    a(f"s_lshr_b32 s{sT0}, s{sW}, 1")
    a(f"s_lshl_b32 s{sT0}, s{sT0}, 12")
    a(f"v_add_u32 v{vWr0}, s{sT0}, v{vWr0}")

    def issue(c):
        sl = (c % 4) * SLOT
        for (sq, sm) in ((sQ0, sM0), (sQ1, sM1)):
            a(f"s_add_u32 m0, s{sm}, {sl}")
            a(f"s_add_u32 s{sT0}, s{sq}, {32*c*896}")
            a(f"buffer_load_dwordx4 v{vWd}, {sr(SRD_W,4)}, s{sT0} offen lds")
        for s in range(2):
            ks = 2 * c + s
            a(f"s_mov_b32 s{sT0}, {ks*1024}")
            a(f"buffer_load_dwordx4 {vr(vA+8*(c%4)+4*s,4)}, v{vAo+ks//7}, {sr(SRD_A,4)}, s{sT0} offen")

    for c in range(3):
        issue(c)
    for c in range(14):
        ahead = min(c + 2, 13) - c
        a(f"s_waitcnt vmcnt({4*ahead})")
        a("s_barrier")
        sl = (c % 4) * SLOT
        for s in range(2):
            for tt in range(2):
                o = sl + tt * 2048 + s * 1024
                a(f"ds_read_b64_tr_b16 {vr(vWf+8*s+4*tt,2)}, v{vWr0} offset:{o}")
                a(f"ds_read_b64_tr_b16 {vr(vWf+8*s+4*tt+2,2)}, v{vWr0} offset:{o+512}")
        for s in range(2):
            a(f"s_waitcnt lgkmcnt({4 if s == 0 else 0})")
            for tt in range(2):
                C = "0" if (c == 0 and s == 0) else vr(vAcc + 16 * tt, 16)
                a(f"v_mfma_f32_32x32x16_bf16 {vr(vAcc+16*tt,16)}, {vr(vWf+8*s+4*tt,4)}, {vr(vA+8*(c%4)+4*s,4)}, {C}")
        if c + 3 < 14:
            issue(c + 3)
    a("s_nop 15")
    a(f"s_mul_i32 s{sT0}, s{sRB}, {28*1024}")
    a(f"s_mul_i32 s{sT1}, s{sHalf}, {14*1024}")
    a(f"s_add_u32 s{sT0}, s{sT0}, s{sT1}")
    a(f"s_lshr_b32 s{sT1}, s{sW}, 1")
    a(f"s_lshl_b32 s{sT1}, s{sT1}, 12")
    a(f"s_add_u32 s{sT0}, s{sT0}, s{sT1}")
    a(f"s_add_u32 s{sT0}, s{sT0}, {X1F}")
    a(f"v_lshlrev_b32 v{t1}, 4, v{vL}")
    for tt in range(2):
        if tt == 1:
            a(f"s_cmp_lt_u32 s{sW}, 6")
            a("s_cbranch_scc0 W2_done")
        A = vAcc + 16 * tt
        for r in range(8):
            x = vX + 8 * tt + r
            a(f"v_lshlrev_b32 v{t2}, 16, v{x}")
            a(f"v_and_b32 v{t3}, 0xffff0000, v{x}")
            a(f"v_add_f32 v{A+2*r}, v{A+2*r}, v{t2}")
            a(f"v_add_f32 v{A+2*r+1}, v{A+2*r+1}, v{t3}")
        for r in range(8):
            a(f"v_cvt_pk_bf16_f32 v{vP+r}, v{A+2*r}, v{A+2*r+1}")
        a(f"buffer_store_dwordx4 {vr(vP,4)}, v{t1}, {sr(SRD_WS,4)}, s{sT0} offen offset:{2048*tt}")
        a(f"buffer_store_dwordx4 {vr(vP+4,4)}, v{t1}, {sr(SRD_WS,4)}, s{sT0} offen offset:{2048*tt+1024}")
        a("s_nop 1")
    a.label("W2_done")
    a("s_endpgm")


def gen_k2(a):
    kernel_head(a, "k2_kernel")
    a("s_cmp_ge_u32 s2, 320")
    a("s_cbranch_scc1 K2_exit")
    load_ptrs(a)
    a("s_waitcnt lgkmcnt(0)")
    a("s_cmp_lt_u32 s2, 256")
    a("s_cbranch_scc1 K2_attn")
    w2_path(a)
    a.label("K2_attn")
    attn_path(a)
    a.label("K2_exit")
    a("s_endpgm")


K3_SCR = 7 * 16384
K3_LDS = K3_SCR + 2048


def gen_k3(a):
    kernel_head(a, "k3_kernel")
    a("s_cmp_ge_u32 s2, 224")
    a("s_cbranch_scc1 K3_exit")
    load_ptrs(a)
    sW, sT0, sT1, sRB, sCB, sWB, sMA, sONE, sK1 = 60, 61, 62, 63, 64, 65, 66, 67, 68
    vL, vHF, vI, vWr0 = 1, 2, 3, 4
    vWd, vD16, vWr = 5, 6, 7
    t1, t2, t3 = 8, 9, 10
    vSum, vSq = 11, 12
    vK0 = 13
    vCs = 16
    vWf = 20
    vAcc = 52
    vA = 116
    vTmp = 116
    vCsr = 132
    lane_consts(a, vL, vHF, vI, vWr0, t1, t2, 4)
    a(f"v_lshrrev_b32 v{t1}, 6, v0")
    a(f"v_lshlrev_b32 v{vD16}, 4, v{vL}")
    a(f"v_readfirstlane_b32 s{sW}, v{t1}")
    a("s_waitcnt lgkmcnt(0)")
    make_srd(a, SRD_W, P_W3, 448 * 3584)
    make_srd(a, SRD_WS, P_WS, WS_SIZE)
    a(f"s_mov_b32 s{sONE}, 0x3f803f80")
    a(f"s_and_b32 s{sRB}, s2, 15")
    a(f"s_lshr_b32 s{sCB}, s2, 4")
    a(f"s_lshl_b32 s{sRB}, s{sRB}, 2")
    a(f"s_add_u32 s{sRB}, s{sRB}, s{sW}")
    a(f"s_mul_i32 s{sT1}, s{sRB}, {28*1024}")
    a(f"s_add_u32 s{sT1}, s{sT1}, {X1F}")
    a(f"v_add_u32 v{t3}, s{sT1}, v{vD16}")
    a(f"s_lshl_b32 s{sWB}, s{sCB}, 8")
    a(f"s_lshl_b32 s{sT0}, s{sW}, 6")
    a(f"s_add_u32 s{sWB}, s{sWB}, s{sT0}")
    a(f"s_lshl_b32 s{sMA}, s{sW}, 12")
    a(f"v_lshrrev_b32 v{t1}, 2, v{vL}")
    a(f"v_mul_u32_u24 v{t1}, 3584, v{t1}")
    a(f"v_and_b32 v{t2}, 3, v{vL}")
    a(f"v_lshlrev_b32 v{t2}, 4, v{t2}")
    a(f"v_add_u32 v{vWd}, v{t1}, v{t2}")
    for c in range(7):
        a(f"s_mov_b32 s{sT0}, {4096*c}")
        for s in range(4):
            a(f"buffer_load_dwordx4 {vr(vA+16*c+4*s,4)}, v{t3}, {sr(SRD_WS,4)}, s{sT0} offen offset:{1024*s}")
        for s_ in range(4):
            a(f"s_add_u32 m0, s{sMA}, {c*16384 + s_*1024}")
            a(f"s_add_u32 s{sT0}, s{sWB}, {(64*c+16*s_)*3584}")
            a(f"buffer_load_dwordx4 v{vWd}, {sr(SRD_W,4)}, s{sT0} offen lds")
    a(f"v_mov_b32 v{vSum}, 0")
    a(f"v_mov_b32 v{vSq}, 0")
    for t in range(4):
        a(f"v_mov_b32 v{vCs+t}, 0")

    def reads(s):
        b = s & 1
        for t in range(4):
            o = t * 4096 + s * 1024
            a(f"ds_read_b64_tr_b16 {vr(vWf+16*b+4*t,2)}, v{vWr} offset:{o}")
            a(f"ds_read_b64_tr_b16 {vr(vWf+16*b+4*t+2,2)}, v{vWr} offset:{o+512}")

    for c in range(7):
        a(f"s_waitcnt vmcnt({8*(6-c)})")
        a("s_barrier")
        a(f"v_add_u32 v{vWr}, {c*16384}, v{vWr0}")
        reads(0)
        for s in range(4):
            b = s & 1
            if s < 3:
                reads(s + 1)
                a("s_waitcnt lgkmcnt(8)")
            else:
                a("s_waitcnt lgkmcnt(0)")
            X = vA + 16 * c + 4 * s
            for t in range(4):
                C = "0" if (c == 0 and s == 0) else vr(vAcc + 16 * t, 16)
                a(f"v_mfma_f32_32x32x16_bf16 {vr(vAcc+16*t,16)}, {vr(vWf+16*b+4*t,4)}, {vr(X,4)}, {C}")
                for i in range(4):
                    a(f"v_dot2_f32_bf16 v{vCs+t}, v{vWf+16*b+4*t+i}, s{sONE}, v{vCs+t}")
            for i in range(4):
                a(f"v_dot2_f32_bf16 v{vSum}, v{X+i}, s{sONE}, v{vSum}")
                a(f"v_dot2_f32_bf16 v{vSq}, v{X+i}, v{X+i}, v{vSq}")
    a("s_nop 15")
    for v in (vSum, vSq, vCs, vCs + 1, vCs + 2, vCs + 3):
        xhalf_sum(a, v, t1)
    vMean, vRstd = vSum, vSq
    a(f"v_mul_f32 v{vMean}, {f2u(1.0/448)}, v{vSum}")
    a(f"v_mul_f32 v{vSq}, {f2u(1.0/448)}, v{vSq}")
    a(f"v_fma_f32 v{vSq}, -v{vMean}, v{vMean}, v{vSq}")
    a(f"v_add_f32 v{vSq}, {f2u(1e-5)}, v{vSq}")
    a(f"v_rsq_f32 v{vRstd}, v{vSq}")
    a(f"s_lshl_b32 s{sT0}, s{sW}, 9")
    a(f"s_add_u32 s{sT0}, s{sT0}, {K3_SCR}")
    a(f"v_lshlrev_b32 v{t1}, 2, v{vI}")
    a(f"v_add_u32 v{t1}, s{sT0}, v{t1}")
    for t in range(4):
        a(f"ds_write_b32 v{t1}, v{vCs+t} offset:{128*t}")
    a(f"v_lshlrev_b32 v{t2}, 4, v{vHF}")
    a(f"v_add_u32 v{t2}, s{sT0}, v{t2}")
    a(f"s_mul_i32 s{sT1}, s{sRB}, {112*1024}")
    a(f"s_lshl_b32 s{sT0}, s{sCB}, 13")
    a(f"s_add_u32 s{sT1}, s{sT1}, s{sT0}")
    a(f"s_add_u32 s{sT1}, s{sT1}, {H2F}")
    a(f"s_add_u32 s{sT0}, s{sT1}, 4096")
    a(f"s_mov_b32 s{sK1}, {f2u(GK1)}")
    a(f"v_mov_b32 v{vK0}, {f2u(GK0)}")
    a("s_waitcnt lgkmcnt(0)")
    for t in range(4):
        A = vAcc + 16 * t
        for q in range(4):
            a(f"ds_read_b128 {vr(vCsr+4*q,4)}, v{t2} offset:{128*t+32*q}")
        a("s_waitcnt lgkmcnt(0)")
        for r in range(16):
            a(f"v_fma_f32 v{A+r}, -v{vMean}, v{vCsr+r}, v{A+r}")
        for r in range(16):
            a(f"v_mul_f32 v{A+r}, v{vRstd}, v{A+r}")
        gelu_block(a, [A + r for r in range(16)], vTmp, vK0, sK1)
        for r in range(8):
            a(f"v_cvt_pk_bf16_f32 v{vTmp+r}, v{A+2*r}, v{A+2*r+1}")
        sb = sT1 if t < 2 else sT0
        a(f"buffer_store_dwordx4 {vr(vTmp,4)}, v{vD16}, {sr(SRD_WS,4)}, s{sb} offen offset:{2048*(t&1)}")
        a(f"buffer_store_dwordx4 {vr(vTmp+4,4)}, v{vD16}, {sr(SRD_WS,4)}, s{sb} offen offset:{2048*(t&1)+1024}")
        a("s_nop 1")
    a.label("K3_exit")
    a("s_endpgm")


K4_LDS = 4 * 32768


def gen_k4(a):
    kernel_head(a, "k4_kernel")
    a("s_cmp_ge_u32 s2, 224")
    a("s_cbranch_scc1 K4_exit")
    load_ptrs(a)
    sW, sT0, sT1, sRB, sCB = 60, 61, 62, 63, 64
    sAg, sWg, sSlotW, sSlotR, sC, sMA, sMW = 65, 66, 67, 68, 69, 70, 71
    sAo, sWo = 72, 73
    vL, vHF, vI, vWr0 = 1, 2, 3, 4
    vWd, vD16, vWr, vAr0, vAr = 5, 6, 7, 8, 9
    t1, t2, t3 = 10, 11, 12
    vG = 13
    vX1 = 16
    vAf = 24
    vWf = 56
    vAccB = 88
    vAccA = 104
    vP = 120
    lane_consts(a, vL, vHF, vI, vWr0, t1, t2, 4)
    a(f"v_lshrrev_b32 v{t1}, 6, v0")
    a(f"v_lshlrev_b32 v{vD16}, 4, v{vL}")
    a(f"v_readfirstlane_b32 s{sW}, v{t1}")
    a("s_waitcnt lgkmcnt(0)")
    make_srd(a, SRD_W, P_W4, 1792 * 896)
    make_srd(a, SRD_E, P_WO, 448 * 896)
    make_srd(a, SRD_WS, P_WS, WS_SIZE)
    make_srd(a, SRD_F, P_OUT, 2048 * 896)
    a(f"s_and_b32 s{sRB}, s2, 31")
    a(f"s_lshr_b32 s{sCB}, s2, 5")
    a(f"s_lshl_b32 s{sT0}, s{sRB}, 1")
    a(f"s_and_b32 s{sT1}, s{sW}, 1")
    a(f"s_add_u32 s{sT0}, s{sT0}, s{sT1}")
    a(f"s_lshl_b32 s{sT1}, s{sT0}, 7")
    a(f"s_add_u32 s{sT1}, s{sT1}, {GOFF}")
    a(f"v_lshlrev_b32 v{t1}, 2, v{vI}")
    a(f"buffer_load_dword v{vG}, v{t1}, {sr(SRD_WS,4)}, s{sT1} offen")
    a(f"s_mul_i32 s{sT0}, s{sT0}, {28*1024}")
    a(f"s_lshl_b32 s{sT1}, s{sCB}, 12")
    a(f"s_add_u32 s{sT0}, s{sT0}, s{sT1}")
    a(f"s_lshr_b32 s{sT1}, s{sW}, 1")
    a(f"s_lshl_b32 s{sT1}, s{sT1}, 11")
    a(f"s_add_u32 s{sT0}, s{sT0}, s{sT1}")
    a(f"s_add_u32 s{sT0}, s{sT0}, {X1F}")
    a(f"buffer_load_dwordx4 {vr(vX1,4)}, v{vD16}, {sr(SRD_WS,4)}, s{sT0} offen")
    a(f"buffer_load_dwordx4 {vr(vX1+4,4)}, v{vD16}, {sr(SRD_WS,4)}, s{sT0} offen offset:1024")
    a(f"s_and_b32 s{sT0}, s{sW}, 1")
    a(f"s_lshr_b32 s{sT1}, s{sW}, 1")
    a(f"s_lshl_b32 s{sMA}, s{sT0}, 13")
    a(f"s_lshl_b32 s{sMW}, s{sT1}, 12")
    a(f"s_add_u32 s{sMA}, s{sMA}, s{sMW}")
    a(f"s_add_u32 s{sMW}, s{sMA}, 16384")
    a(f"s_lshl_b32 s{sAg}, s{sRB}, 1")
    a(f"s_add_u32 s{sAg}, s{sAg}, s{sT0}")
    a(f"s_lshl_b32 s{sAo}, s{sAg}, 15")
    a(f"s_mul_i32 s{sAg}, s{sAg}, {112*1024}")
    a(f"s_lshl_b32 s{sWg}, s{sT1}, 12")
    a(f"s_add_u32 s{sAg}, s{sAg}, s{sWg}")
    a(f"s_add_u32 s{sAo}, s{sAo}, s{sWg}")
    a(f"s_add_u32 s{sAg}, s{sAg}, {H2F}")
    a(f"s_add_u32 s{sAo}, s{sAo}, {OF}")
    a(f"s_lshl_b32 s{sWg}, s{sCB}, 1")
    a(f"s_add_u32 s{sWg}, s{sWg}, s{sT0}")
    a(f"s_lshl_b32 s{sWg}, s{sWg}, 6")
    a(f"s_mul_i32 s{sWo}, s{sT1}, {56*896}")
    a(f"s_add_u32 s{sWo}, s{sWo}, s{sWg}")
    a(f"s_mul_i32 s{sT1}, s{sT1}, {64*896}")
    a(f"s_add_u32 s{sWg}, s{sWg}, s{sT1}")
    a(f"v_lshrrev_b32 v{t1}, 2, v{vL}")
    a(f"v_mul_u32_u24 v{t1}, 896, v{t1}")
    a(f"v_and_b32 v{t2}, 3, v{vL}")
    a(f"v_lshlrev_b32 v{t2}, 4, v{t2}")
    a(f"v_add_u32 v{vWd}, v{t1}, v{t2}")
    a(f"s_and_b32 s{sT0}, s{sW}, 1")
    a(f"s_lshl_b32 s{sT0}, s{sT0}, 13")
    a(f"v_add_u32 v{vAr0}, s{sT0}, v{vD16}")
    a(f"s_lshr_b32 s{sT0}, s{sW}, 1")
    a(f"s_lshl_b32 s{sT0}, s{sT0}, 13")
    a(f"s_add_u32 s{sT0}, s{sT0}, 16384")
    a(f"v_add_u32 v{vWr0}, s{sT0}, v{vWr0}")

    def issue_w4():
        a(f"s_add_u32 m0, s{sMA}, s{sSlotW}")
        a("s_nop 0")
        for j in range(4):
            a(f"buffer_load_dwordx4 v{vD16}, {sr(SRD_WS,4)}, s{sAg} offen offset:{1024*j} lds")
        for j in range(4):
            a(f"s_add_u32 s{sT1}, s{sMW}, s{sSlotW}")
            a(f"s_add_u32 m0, s{sT1}, {1024*j}")
            a(f"s_add_u32 s{sT0}, s{sWg}, {16*896*j}")
            a(f"buffer_load_dwordx4 v{vWd}, {sr(SRD_W,4)}, s{sT0} offen lds")
        a(f"s_add_u32 s{sAg}, s{sAg}, 8192")
        a(f"s_add_u32 s{sWg}, s{sWg}, {128*896}")
        a(f"s_add_u32 s{sSlotW}, s{sSlotW}, 32768")
        a(f"s_and_b32 s{sSlotW}, s{sSlotW}, 0x1ffff")

    def issue_wo():
        a(f"s_add_u32 m0, s{sMA}, s{sSlotW}")
        a("s_nop 0")
        for j in range(4):
            a(f"buffer_load_dwordx4 v{vD16}, {sr(SRD_WS,4)}, s{sAo} offen offset:{1024*j} lds")
        for j in range(4):
            a(f"s_add_u32 s{sT1}, s{sMW}, s{sSlotW}")
            a(f"s_add_u32 m0, s{sT1}, {1024*j}")
            a(f"s_add_u32 s{sT0}, s{sWo}, {(28*(j>>1)+16*(j&1))*896}")
            a(f"buffer_load_dwordx4 v{vWd}, {sr(SRD_E,4)}, s{sT0} offen lds")
        a(f"s_add_u32 s{sAo}, s{sAo}, 8192")
        a(f"s_add_u32 s{sWo}, s{sWo}, {112*896}")
        a(f"s_add_u32 s{sSlotW}, s{sSlotW}, 32768")
        a(f"s_and_b32 s{sSlotW}, s{sSlotW}, 0x1ffff")

    def compute(acc):
        a(f"v_add_u32 v{vAr}, s{sSlotR}, v{vAr0}")
        a(f"v_add_u32 v{vWr}, s{sSlotR}, v{vWr0}")
        for s in range(8):
            a(f"ds_read_b128 {vr(vAf+4*s,4)}, v{vAr} offset:{1024*s}")
            a(f"ds_read_b64_tr_b16 {vr(vWf+4*s,2)}, v{vWr} offset:{1024*s}")
            a(f"ds_read_b64_tr_b16 {vr(vWf+4*s+2,2)}, v{vWr} offset:{1024*s+512}")
            if s >= 3:
                a(f"s_waitcnt lgkmcnt(9)")
                q = s - 3
                a(f"v_mfma_f32_32x32x16_bf16 {vr(acc,16)}, {vr(vWf+4*q,4)}, {vr(vAf+4*q,4)}, {vr(acc,16)}")
        for q in range(5, 8):
            a(f"s_waitcnt lgkmcnt({3*(7-q)})")
            a(f"v_mfma_f32_32x32x16_bf16 {vr(acc,16)}, {vr(vWf+4*q,4)}, {vr(vAf+4*q,4)}, {vr(acc,16)}")
        a(f"s_add_u32 s{sSlotR}, s{sSlotR}, 32768")
        a(f"s_and_b32 s{sSlotR}, s{sSlotR}, 0x1ffff")

    a(f"s_mov_b32 s{sSlotW}, 0")
    a(f"s_mov_b32 s{sSlotR}, 0")
    for c in range(3):
        issue_w4()
    for r in range(16):
        a(f"v_mov_b32 v{vAccB+r}, 0")
        a(f"v_mov_b32 v{vAccA+r}, 0")
    a(f"s_mov_b32 s{sC}, 0")
    a.label("K4_loop")
    a("s_waitcnt vmcnt(16)")
    a("s_barrier")
    issue_w4()
    compute(vAccB)
    a(f"s_add_u32 s{sC}, s{sC}, 1")
    a(f"s_cmp_lt_u32 s{sC}, 11")
    a("s_cbranch_scc1 K4_loop")
    a.label("K4_loop2")
    a("s_waitcnt vmcnt(16)")
    a("s_barrier")
    issue_wo()
    compute(vAccB)
    a(f"s_add_u32 s{sC}, s{sC}, 1")
    a(f"s_cmp_lt_u32 s{sC}, 14")
    a("s_cbranch_scc1 K4_loop2")
    a("s_waitcnt vmcnt(16)")
    a("s_barrier")
    issue_wo()
    compute(vAccA)
    for n in (16, 8, 0):
        a(f"s_waitcnt vmcnt({n})")
        a("s_barrier")
        compute(vAccA)
    a("s_nop 15")
    a(f"v_sub_f32 v{t3}, 1.0, v{vG}")
    for r in range(8):
        x = vX1 + r
        a(f"v_lshlrev_b32 v{t1}, 16, v{x}")
        a(f"v_and_b32 v{t2}, 0xffff0000, v{x}")
        a(f"v_add_f32 v{vAccB+2*r}, v{vAccB+2*r}, v{t1}")
        a(f"v_add_f32 v{vAccB+2*r+1}, v{vAccB+2*r+1}, v{t2}")
    for r in range(16):
        a(f"v_mul_f32 v{vAccB+r}, v{vAccB+r}, v{t3}")
    for r in range(16):
        a(f"v_fmac_f32 v{vAccB+r}, v{vAccA+r}, v{vG}")
    for r in range(8):
        a(f"v_cvt_pk_bf16_f32 v{vP+r}, v{vAccB+2*r}, v{vAccB+2*r+1}")
    a(f"s_lshl_b32 s{sT0}, s{sRB}, 6")
    a(f"s_and_b32 s{sT1}, s{sW}, 1")
    a(f"s_lshl_b32 s{sT1}, s{sT1}, 5")
    a(f"s_add_u32 s{sT0}, s{sT0}, s{sT1}")
    a(f"v_add_u32 v{t1}, s{sT0}, v{vI}")
    a(f"v_mul_u32_u24 v{t1}, 896, v{t1}")
    a(f"v_lshl_add_u32 v{t1}, v{vHF}, 3, v{t1}")
    a(f"s_lshl_b32 s{sT0}, s{sCB}, 7")
    a(f"s_lshr_b32 s{sT1}, s{sW}, 1")
    a(f"s_lshl_b32 s{sT1}, s{sT1}, 6")
    a(f"s_add_u32 s{sT0}, s{sT0}, s{sT1}")
    for q in range(4):
        a(f"buffer_store_dwordx2 {vr(vP+2*q,2)}, v{t1}, {sr(SRD_F,4)}, s{sT0} offen offset:{16*q}")
    a.label("K4_exit")
    a("s_endpgm")


def main():
    a = Asm()
    a.raw(HEADER.rstrip())
    a.raw(f"; @launch kernel=k1_kernel grid=(256,1,1) block=(256,1,1) lds=159744")
    a.raw(f"; @launch kernel=k2_kernel grid=(320,1,1) block=(512,1,1) lds={K2_LDS}")
    a.raw(f"; @launch kernel=k3_kernel grid=(224,1,1) block=(256,1,1) lds={K3_LDS}")
    a.raw(f"; @launch kernel=k4_kernel grid=(224,1,1) block=(256,1,1) lds={K4_LDS}")
    a.raw('.amdgcn_target "amdgcn-amd-amdhsa--gfx950"')
    a.raw(".text")
    gen_k1(a)
    gen_k2(a)
    gen_k3(a)
    gen_k4(a)
    a.raw('.section .rodata,"a"')
    for name, v in (("k1_kernel", 176), ("k2_kernel", 128), ("k3_kernel", 232), ("k4_kernel", 128)):
        a.raw(".p2align 6")
        kd(a, name, v)
    out = sys.argv[1] if len(sys.argv) > 1 else "gated_mix__mha_block__mixer_s_mlp__prompt.s"
    open(out, "w").write(a.text())
    print("wrote", out, len(a.lines), "lines")
```

```python
import struct, sys

MB = 1 << 20
QF, KF, VF, HF, GOFF, OF, X1F, H2F = 0, 2 * MB, 4 * MB, 6 * MB, 8 * MB, 9 * MB, 11 * MB, 13 * MB
WS_SIZE = 32 * MB
HF_SIZE = 64 * 28 * 1024

def f2u(x):
    return struct.unpack("<I", struct.pack("<f", x))[0]

LOG2E = 1.4426950408889634
QSCALE = (28 ** -0.5) * LOG2E
GK0 = -2.0 * 0.7978845608028654 * LOG2E
GK1 = GK0 * 0.044715


class Asm:
    def __init__(self):
        self.lines = []
    def __call__(self, s):
        self.lines.append("    " + s)
    def label(self, l):
        self.lines.append(l + ":")
    def raw(self, s):
        self.lines.append(s)
    def text(self):
        return "\n".join(self.lines) + "\n"


def vr(b, n):
    return f"v[{b}:{b+n-1}]"

def sr(b, n):
    return f"s[{b}:{b+n-1}]"

S_PTR = 16
P_X, P_WQKV, P_WO, P_BX, P_W1, P_W2, P_W3, P_W4 = 16, 18, 20, 22, 24, 26, 28, 30
P_GATE, P_OUT, P_DBG, P_WS = 32, 34, 36, 38
SRD_A, SRD_W, SRD_WS, SRD_E = 40, 44, 48, 52
SRD_F = 56


def kernel_head(a, name):
    a.raw(f".globl {name}")
    a.raw(".p2align 8")
    a.raw(f".type {name},@function")
    a.label(name)


def load_ptrs(a):
    a(f"s_load_dwordx16 s[16:31], s[0:1], 0")
    a(f"s_load_dwordx8 s[32:39], s[0:1], 64")


def make_srd(a, srd, ptr, size, off=0):
    if off:
        a(f"s_add_u32 s{srd}, s{ptr}, {off}")
        a(f"s_addc_u32 s{srd+1}, s{ptr+1}, 0")
    else:
        a(f"s_mov_b32 s{srd}, s{ptr}")
        a(f"s_mov_b32 s{srd+1}, s{ptr+1}")
    a(f"s_mov_b32 s{srd+2}, {size}")
    a(f"s_mov_b32 s{srd+3}, 0x00020000")


def xhalf_sum(a, v, t):
    a(f"v_mov_b32 v{t}, v{v}")
    a("s_nop 1")
    a(f"v_permlane32_swap_b32 v{v}, v{t}")
    a(f"v_add_f32 v{v}, v{v}, v{t}")


def gelu_inplace(a, x, t1, t2, sk0, sk1):
    a(f"v_mul_f32 v{t1}, v{x}, v{x}")
    a(f"v_mov_b32 v{t2}, s{sk0}")
    a(f"v_fmac_f32 v{t2}, s{sk1}, v{t1}")
    a(f"v_mul_f32 v{t2}, v{t2}, v{x}")
    a(f"v_exp_f32 v{t2}, v{t2}")
    a("s_nop 0")
    a(f"v_add_f32 v{t2}, 1.0, v{t2}")
    a(f"v_rcp_f32 v{t2}, v{t2}")
    a("s_nop 0")
    a(f"v_mul_f32 v{x}, v{x}, v{t2}")


def gelu_block(a, regs, tmp, sk0, sk1):
    n = len(regs)
    for i, x in enumerate(regs):
        a(f"v_mul_f32 v{tmp+i}, v{x}, v{x}")
    for i, x in enumerate(regs):
        a(f"v_fma_f32 v{tmp+i}, v{tmp+i}, s{sk1}, v{sk0}")
    for i, x in enumerate(regs):
        a(f"v_mul_f32 v{tmp+i}, v{tmp+i}, v{x}")
    for i, x in enumerate(regs):
        a(f"v_exp_f32 v{tmp+i}, v{tmp+i}")
    for i, x in enumerate(regs):
        a(f"v_add_f32 v{tmp+i}, 1.0, v{tmp+i}")
    for i, x in enumerate(regs):
        a(f"v_rcp_f32 v{tmp+i}, v{tmp+i}")
    for i, x in enumerate(regs):
        a(f"v_mul_f32 v{x}, v{x}, v{tmp+i}")


def lane_consts(a, vL, vHF, vI, vWr, t1, t2, khalf_rows):
    a(f"v_and_b32 v{vL}, 63, v0")
    a(f"v_lshrrev_b32 v{vHF}, 5, v{vL}")
    a(f"v_and_b32 v{vI}, 31, v{vL}")
    a(f"v_bfe_u32 v{t1}, v{vL}, 2, 2")
    a(f"v_mul_u32_u24 v{t2}, {khalf_rows}, v{vHF}")
    a(f"v_add_u32 v{t1}, v{t1}, v{t2}")
    a(f"v_lshlrev_b32 v{vWr}, 6, v{t1}")
    a(f"v_bfe_u32 v{t1}, v{vL}, 4, 1")
    a(f"v_lshlrev_b32 v{t1}, 5, v{t1}")
    a(f"v_and_b32 v{t2}, 3, v{vL}")
    a(f"v_lshlrev_b32 v{t2}, 3, v{t2}")
    a(f"v_add3_u32 v{vWr}, v{vWr}, v{t1}, v{t2}")


K1_SLOT = 36864
K1_GATE = 4 * K1_SLOT
K1_SCR = K1_GATE + 1024
K1_LDS = K1_SCR + 2048


def k1_path(a, kind):
    w1 = kind == 'w1'
    sW, sT0, sT1, sMA, sWB, sRB, sONE = 60, 61, 62, 63, 64, 65, 66
    sK1 = 67
    vL, vHF, vI, vWr0 = 1, 2, 3, 4
    vAe, vAo, vWd = 5, 6, 7
    vAr0 = 8
    vAr = 12
    vWr = 16
    t1, t2, t3 = 17, 18, 19
    vSum, vSq, vG = 20, 21, 22
    vCs = 24
    vAf = 28
    vGf = 36
    vWf = 44
    vAcc = 76
    vTmp = 140
    vCsr = 156
    vK0 = 172
    ntile = 4
    rowstride = 896 if w1 else 2688
    areg = 8192 if w1 else 16384

    make_srd(a, SRD_A, P_X, 2048 * 896)
    if w1:
        make_srd(a, SRD_W, P_W1, 448 * 896)
        make_srd(a, SRD_E, P_GATE, 896)
    else:
        make_srd(a, SRD_W, P_WQKV, 448 * 2688)
    make_srd(a, SRD_WS, P_WS, WS_SIZE)
    lane_consts(a, vL, vHF, vI, vWr0, t1, t2, 8)
    a(f"v_lshrrev_b32 v{t1}, 6, v0")
    a("s_nop 0")
    a(f"v_readfirstlane_b32 s{sW}, v{t1}")
    a(f"s_mov_b32 s{sONE}, 0x3f803f80")
    if w1:
        a(f"s_sub_u32 s{sT0}, s2, 192")
        a(f"s_and_b32 s{sRB}, s{sT0}, 31")
        a(f"s_lshr_b32 s{sT1}, s{sT0}, 5")
        a(f"s_lshl_b32 s{sT0}, s{sRB}, 6")
        a(f"s_lshl_b32 s{sMA}, s{sW}, 4")
        a(f"s_add_u32 s{sT0}, s{sT0}, s{sMA}")
        a(f"s_lshl_b32 s{sMA}, s{sW}, 11")
        a(f"s_mul_i32 s{sWB}, s{sW}, {16*896}")
        a(f"s_mul_i32 s{sT1}, s{sT1}, 448")
        a(f"s_add_u32 s{sWB}, s{sWB}, s{sT1}")
    else:
        a(f"s_and_b32 s{sRB}, s2, 15")
        a(f"s_lshr_b32 s{sT1}, s2, 4")
        a(f"s_lshl_b32 s{sT0}, s{sRB}, 7")
        a(f"s_lshl_b32 s{sMA}, s{sW}, 5")
        a(f"s_add_u32 s{sT0}, s{sT0}, s{sMA}")
        a(f"s_lshl_b32 s{sMA}, s{sW}, 12")
        a(f"s_mul_i32 s{sWB}, s{sT1}, 224")
        a(f"s_mul_i32 s{sT1}, s{sW}, 56")
        a(f"s_add_u32 s{sWB}, s{sWB}, s{sT1}")
    a(f"v_lshrrev_b32 v{t1}, 3, v{vL}")
    a(f"v_add_u32 v{t1}, s{sT0}, v{t1}")
    a(f"v_mul_u32_u24 v{t1}, 896, v{t1}")
    a(f"v_and_b32 v{t2}, 7, v{vL}")
    a(f"v_lshrrev_b32 v{t3}, 4, v{vL}")
    a(f"v_xor_b32 v{t2}, v{t2}, v{t3}")
    a(f"v_lshlrev_b32 v{t2}, 4, v{t2}")
    a(f"v_add_u32 v{vAe}, v{t1}, v{t2}")
    a(f"v_xor_b32 v{t2}, 64, v{t2}")
    a(f"v_add_u32 v{t1}, 7168, v{t1}")
    a(f"v_add_u32 v{vAo}, v{t1}, v{t2}")
    a(f"v_lshrrev_b32 v{t1}, 2, v{vL}")
    a(f"v_mul_u32_u24 v{t1}, {rowstride}, v{t1}")
    a(f"v_and_b32 v{t2}, 3, v{vL}")
    a(f"v_lshlrev_b32 v{t2}, 4, v{t2}")
    a(f"v_add_u32 v{vWd}, v{t1}, v{t2}")
    if w1:
        a(f"s_and_b32 s{sT0}, s{sW}, 1")
        a(f"s_lshl_b32 s{sT0}, s{sT0}, 12")
    else:
        a(f"s_lshl_b32 s{sT0}, s{sW}, 12")
    a(f"v_lshlrev_b32 v{t1}, 7, v{vI}")
    a(f"v_add_u32 v{t1}, s{sT0}, v{t1}")
    a(f"v_bfe_u32 v{t2}, v{vI}, 1, 3")
    for s in range(4):
        a(f"v_add_u32 v{t3}, {2*s}, v{vHF}")
        a(f"v_xor_b32 v{t3}, v{t3}, v{t2}")
        a(f"v_lshlrev_b32 v{t3}, 4, v{t3}")
        a(f"v_add_u32 v{vAr0+s}, v{t1}, v{t3}")
    if w1:
        a(f"s_lshr_b32 s{sT0}, s{sW}, 1")
        a(f"s_lshl_b32 s{sT0}, s{sT0}, 14")
        a(f"v_add_u32 v{vWr0}, s{sT0}, v{vWr0}")
        a(f"v_mov_b32 v{vSum}, 0")
        a(f"v_mov_b32 v{vSq}, 0")
        a(f"v_mov_b32 v{vG}, 0")
        for t in range(4):
            a(f"v_mov_b32 v{vCs+t}, 0")
        a(f"v_lshlrev_b32 v{t1}, 4, v{vL}")
        a(f"s_mov_b32 m0, {K1_GATE}")
        a("s_nop 0")
        a(f"buffer_load_dwordx4 v{t1}, {sr(SRD_E,4)}, 0 offen lds")
        a(f"v_lshlrev_b32 v{t2}, 4, v{vHF}")
        a(f"v_add_u32 v{vK0}, {K1_GATE}, v{t2}")

    ndma = 9 if w1 else 8

    def issue(c):
        sl = (c % 4) * K1_SLOT
        if w1:
            for qq in range(2):
                a(f"s_add_u32 m0, s{sMA}, {sl + qq*1024}")
                a(f"s_mov_b32 s{sT0}, {128*c}")
                a(f"buffer_load_dwordx4 v{vAo if qq else vAe}, {sr(SRD_A,4)}, s{sT0} offen lds")
            for t in range(7):
                a(f"s_lshl_b32 s{sT1}, s{sW}, 10")
                a(f"s_add_u32 m0, s{sT1}, {sl + areg + t*4096}")
                a(f"s_add_u32 s{sT0}, s{sWB}, {64*c*896 + 64*t}")
                a(f"buffer_load_dwordx4 v{vWd}, {sr(SRD_W,4)}, s{sT0} offen lds")
        else:
            for qq in range(4):
                a(f"s_add_u32 m0, s{sMA}, {sl + qq*1024}")
                a(f"s_mov_b32 s{sT0}, {128*c + (qq>>1)*14336}")
                a(f"buffer_load_dwordx4 v{vAo if qq&1 else vAe}, {sr(SRD_A,4)}, s{sT0} offen lds")
            for s_ in range(4):
                a(f"s_add_u32 m0, s{sMA}, {sl + areg + s_*1024}")
                a(f"s_add_u32 s{sT0}, s{sWB}, {(64*c+16*s_)*2688}")
                a(f"buffer_load_dwordx4 v{vWd}, {sr(SRD_W,4)}, s{sT0} offen lds")

    for c in range(3):
        issue(c)

    nrd = 10 if w1 else 9

    def reads(c, s):
        b = s & 1
        a(f"ds_read_b128 {vr(vAf+4*b,4)}, v{vAr+s}")
        if w1:
            a(f"ds_read_b128 {vr(vGf+4*b,4)}, v{vK0} offset:{32*(4*c+s)}")
        for t in range(ntile):
            o = areg + t * 4096 + s * 1024
            a(f"ds_read_b64_tr_b16 {vr(vWf+16*b+4*t,2)}, v{vWr} offset:{o}")
            a(f"ds_read_b64_tr_b16 {vr(vWf+16*b+4*t+2,2)}, v{vWr} offset:{o+256}")

    for c in range(7):
        ahead = min(c + 2, 6) - c
        a(f"s_waitcnt vmcnt({ahead*ndma})")
        a("s_barrier")
        if c + 3 < 7:
            issue(c + 3)
        sl = (c % 4) * K1_SLOT
        for s in range(4):
            a(f"v_add_u32 v{vAr+s}, {sl}, v{vAr0+s}")
        a(f"v_add_u32 v{vWr}, {sl}, v{vWr0}")
        reads(c, 0)
        for s in range(4):
            b = s & 1
            if s < 3:
                reads(c, s + 1)
                a(f"s_waitcnt lgkmcnt({nrd})")
            else:
                a("s_waitcnt lgkmcnt(0)")
            for t in range(ntile):
                C = "0" if (c == 0 and s == 0) else vr(vAcc + 16 * t, 16)
                X, W = vr(vAf + 4 * b, 4), vr(vWf + 16 * b + 4 * t, 4)
                if kind == 'v':
                    a(f"v_mfma_f32_32x32x16_bf16 {vr(vAcc+16*t,16)}, {X}, {W}, {C}")
                else:
                    a(f"v_mfma_f32_32x32x16_bf16 {vr(vAcc+16*t,16)}, {W}, {X}, {C}")
                if w1:
                    for i in range(4):
                        a(f"v_dot2_f32_bf16 v{vCs+t}, v{vWf+16*b+4*t+i}, s{sONE}, v{vCs+t}")
            if w1:
                for i in range(4):
                    x = vAf + 4 * b + i
                    a(f"v_dot2_f32_bf16 v{vSum}, v{x}, s{sONE}, v{vSum}")
                    a(f"v_dot2_f32_bf16 v{vSq}, v{x}, v{x}, v{vSq}")
                    a(f"v_dot2_f32_bf16 v{vG}, v{x}, v{vGf+4*b+i}, v{vG}")
    a("s_nop 15")
    if not w1:
        a(f"s_lshr_b32 s{sT1}, s2, 4")
        a(f"s_lshl_b32 s{sT1}, s{sT1}, 19")
        a(f"s_lshl_b32 s{sT0}, s{sRB}, 2")
        a(f"s_add_u32 s{sT0}, s{sT0}, s{sW}")
        a(f"s_lshl_b32 s{sT0}, s{sT0}, 11")
        a(f"s_add_u32 s{sT0}, s{sT0}, s{sT1}")
        a(f"v_lshlrev_b32 v{t1}, 4, v{vL}")
        a(f"v_add_u32 v{t1}, s{sT0}, v{t1}")
        if kind == 'qk':
            a(f"s_cmp_lt_u32 s2, 64")
            a(f"s_cselect_b32 s{sT1}, {f2u(QSCALE)}, 1.0")
            a(f"v_mov_b32 v{t2}, 0x3f803f80")
            a(f"v_mov_b32 v{t3}, 0x00003f80")
            a(f"v_cmp_lt_u32 vcc, 31, v{vL}")
        else:
            a(f"v_mov_b32 v{t2}, 0x3f803f80")
            a(f"v_cmp_eq_u32 vcc, 28, v{vI}")
        for t in range(4):
            A = vAcc + 16 * t
            P = vTmp + 8 * (t & 1)
            if kind == 'qk':
                for r in range(16):
                    a(f"v_mul_f32 v{A+r}, s{sT1}, v{A+r}")
            for r in range(8):
                a(f"v_cvt_pk_bf16_f32 v{P+r}, v{A+2*r}, v{A+2*r+1}")
            if kind == 'qk':
                a(f"v_cndmask_b32 v{P+6}, v{P+6}, v{t2}, vcc")
                a(f"v_cndmask_b32 v{P+7}, v{P+7}, v{t3}, vcc")
            else:
                for r in range(8):
                    a(f"v_cndmask_b32 v{P+r}, v{P+r}, v{t2}, vcc")
            a(f"s_mov_b32 s{sT0}, {t*131072}")
            a(f"buffer_store_dwordx4 {vr(P,4)}, v{t1}, {sr(SRD_WS,4)}, s{sT0} offen")
            a(f"buffer_store_dwordx4 {vr(P+4,4)}, v{t1}, {sr(SRD_WS,4)}, s{sT0} offen offset:1024")
        a("s_endpgm")
        return
    for v in (vSum, vSq, vG, vCs, vCs + 1, vCs + 2, vCs + 3):
        xhalf_sum(a, v, t1)
    vMean, vRstd = vSum, vSq
    a(f"v_mul_f32 v{vMean}, {f2u(1.0/448)}, v{vSum}")
    a(f"v_mul_f32 v{vSq}, {f2u(1.0/448)}, v{vSq}")
    a(f"v_fma_f32 v{vSq}, -v{vMean}, v{vMean}, v{vSq}")
    a(f"v_add_f32 v{vSq}, {f2u(1e-5)}, v{vSq}")
    a(f"v_rsq_f32 v{vRstd}, v{vSq}")
    a(f"s_lshl_b32 s{sT0}, s{sW}, 9")
    a(f"s_add_u32 s{sT0}, s{sT0}, {K1_SCR}")
    a(f"v_lshlrev_b32 v{t1}, 2, v{vI}")
    a(f"v_add_u32 v{t1}, s{sT0}, v{t1}")
    for t in range(4):
        a(f"ds_write_b32 v{t1}, v{vCs+t} offset:{128*t}")
    a(f"v_lshlrev_b32 v{t2}, 4, v{vHF}")
    a(f"v_add_u32 v{t2}, s{sT0}, v{t2}")
    a(f"v_mul_f32 v{vG}, {f2u(-LOG2E)}, v{vG}")
    a(f"v_exp_f32 v{vG}, v{vG}")
    a("s_nop 0")
    a(f"v_add_f32 v{vG}, 1.0, v{vG}")
    a(f"v_rcp_f32 v{vG}, v{vG}")
    a(f"s_and_b32 s{sT1}, s{sW}, 1")
    a(f"s_lshl_b32 s{sMA}, s{sRB}, 1")
    a(f"s_add_u32 s{sMA}, s{sMA}, s{sT1}")
    a(f"s_cmp_lt_u32 s2, 224")
    a(f"s_cbranch_scc0 K1_nogate")
    a(f"s_cmp_lt_u32 s{sW}, 2")
    a(f"s_cbranch_scc0 K1_nogate")
    a(f"s_lshl_b32 s{sT1}, s{sMA}, 7")
    a(f"s_add_u32 s{sT1}, s{sT1}, {GOFF}")
    a(f"v_lshlrev_b32 v{t3}, 2, v{vI}")
    a(f"buffer_store_dword v{vG}, v{t3}, {sr(SRD_WS,4)}, s{sT1} offen")
    a.label("K1_nogate")
    a(f"s_mul_i32 s{sT1}, s{sMA}, {28*1024}")
    a(f"s_sub_u32 s{sT0}, s2, 192")
    a(f"s_lshr_b32 s{sT0}, s{sT0}, 5")
    a(f"s_mul_i32 s{sT0}, s{sT0}, {14*1024}")
    a(f"s_add_u32 s{sT1}, s{sT1}, s{sT0}")
    a(f"s_lshr_b32 s{sT0}, s{sW}, 1")
    a(f"s_lshl_b32 s{sT0}, s{sT0}, 13")
    a(f"s_add_u32 s{sT1}, s{sT1}, s{sT0}")
    a(f"s_add_u32 s{sT1}, s{sT1}, {HF}")
    a(f"v_lshlrev_b32 v{t1}, 4, v{vL}")
    a(f"v_add_u32 v{t1}, s{sT1}, v{t1}")
    a(f"s_mov_b32 s{sK1}, {f2u(GK1)}")
    a(f"v_mov_b32 v{vK0}, {f2u(GK0)}")
    a("s_waitcnt lgkmcnt(0)")
    for t in range(4):
        if t == 3:
            a(f"s_cmp_lt_u32 s{sW}, 2")
            a(f"s_cbranch_scc0 K1_w1_done")
        A = vAcc + 16 * t
        for q in range(4):
            a(f"ds_read_b128 {vr(vCsr+4*q,4)}, v{t2} offset:{128*t+32*q}")
        a("s_waitcnt lgkmcnt(0)")
        for r in range(16):
            a(f"v_fma_f32 v{A+r}, -v{vMean}, v{vCsr+r}, v{A+r}")
        for r in range(16):
            a(f"v_mul_f32 v{A+r}, v{vRstd}, v{A+r}")
        gelu_block(a, [A + r for r in range(16)], vTmp, vK0, sK1)
        for r in range(8):
            a(f"v_cvt_pk_bf16_f32 v{vTmp+r}, v{A+2*r}, v{A+2*r+1}")
        a(f"buffer_store_dwordx4 {vr(vTmp,4)}, v{t1}, {sr(SRD_WS,4)}, 0 offen offset:{2048*(t&1)}" if t < 2 else
          f"buffer_store_dwordx4 {vr(vTmp,4)}, v{t3}, {sr(SRD_WS,4)}, 0 offen offset:{2048*(t&1)}")
        a(f"buffer_store_dwordx4 {vr(vTmp+4,4)}, v{t1}, {sr(SRD_WS,4)}, 0 offen offset:{2048*(t&1)+1024}" if t < 2 else
          f"buffer_store_dwordx4 {vr(vTmp+4,4)}, v{t3}, {sr(SRD_WS,4)}, 0 offen offset:{2048*(t&1)+1024}")
        if t == 1:
            a(f"v_add_u32 v{t3}, 4096, v{t1}")
        a("s_nop 1")
    a.label("K1_w1_done")
    a("s_endpgm")


def gen_k1(a):
    kernel_head(a, "k1_kernel")
    a("s_cmp_ge_u32 s2, 256")
    a("s_cbranch_scc1 K1_exit")
    load_ptrs(a)
    a("s_waitcnt lgkmcnt(0)")
    a("s_cmp_lt_u32 s2, 128")
    a("s_cbranch_scc1 K1_qk")
    a("s_cmp_lt_u32 s2, 192")
    a("s_cbranch_scc1 K1_v")
    k1_path(a, 'w1')
    a.label("K1_qk")
    k1_path(a, 'qk')
    a.label("K1_v")
    k1_path(a, 'v')
    a.label("K1_exit")
    a("s_endpgm")


def kd(a, name, vgpr, sgpr=102):
    a.raw(f".amdhsa_kernel {name}")
    a.raw(f"  .amdhsa_next_free_vgpr {vgpr}")
    a.raw(f"  .amdhsa_next_free_sgpr {sgpr}")
    a.raw(f"  .amdhsa_accum_offset {(vgpr+3)//4*4}")
    a.raw("  .amdhsa_group_segment_fixed_size 0")
    a.raw("  .amdhsa_kernarg_size 96")
    a.raw("  .amdhsa_user_sgpr_count 2")
    a.raw("  .amdhsa_user_sgpr_kernarg_segment_ptr 1")
    a.raw("  .amdhsa_system_sgpr_workgroup_id_x 1")
    a.raw(".end_amdhsa_kernel")


HEADER = """; gated_mix__mha_block__mixer_s_mlp__prompt -- generated by dev/gen.py (hand-designed kernels)
; Kernarg: 0 A_x, 8 A_wqkv, 16 A_wo, 24 B_x, 32 B_w1, 40 B_w2, 48 B_w3, 56 B_w4, 64 gate_w, 72 out, 80 debug, 88 ws
"""

if __name__ == "__main__":
    import gen_rest
    gen_rest.main()
```

```python
from gen import *
from gen_tp import *

K1_LDS = 139264
W1_RING = 57344


def qkv_path(a):
    sW, sT0, sT1, sMA, sWB, sRB = 60, 61, 62, 63, 64, 65
    vL, vHF, vI, vWr0 = 1, 2, 3, 4
    vAe, vAo, vWd = 5, 6, 7
    vAr0 = 8
    vAr = 12
    vWr = 16
    t1, t2, t3 = 17, 18, 19
    vAf = 20
    vWf = 28
    vAcc = 60
    vTmp = 124
    SLOT = 32768
    a(f"s_and_b32 s{sRB}, s2, 15")
    a(f"s_cmp_lt_u32 s{sW}, 4")
    a("s_cbranch_scc1 K1_qkv_comp")
    make_srd(a, SRD_A, P_X, 2048 * 896)
    make_srd(a, SRD_W, P_WQKV, 448 * 2688)
    a(f"s_sub_u32 s{sW}, s{sW}, 4")
    a(f"s_lshr_b32 s{sT1}, s2, 4")
    a(f"s_lshl_b32 s{sT0}, s{sRB}, 7")
    a(f"s_lshl_b32 s{sMA}, s{sW}, 5")
    a(f"s_add_u32 s{sT0}, s{sT0}, s{sMA}")
    a(f"s_lshl_b32 s{sMA}, s{sW}, 12")
    a(f"s_mul_i32 s{sWB}, s{sT1}, 224")
    a(f"s_mul_i32 s{sT1}, s{sW}, 56")
    a(f"s_add_u32 s{sWB}, s{sWB}, s{sT1}")
    a(f"v_lshrrev_b32 v{t1}, 3, v{vL}")
    a(f"v_add_u32 v{t1}, s{sT0}, v{t1}")
    a(f"v_mul_u32_u24 v{t1}, 896, v{t1}")
    a(f"v_and_b32 v{t2}, 7, v{vL}")
    a(f"v_lshrrev_b32 v{t3}, 4, v{vL}")
    a(f"v_xor_b32 v{t2}, v{t2}, v{t3}")
    a(f"v_lshlrev_b32 v{t2}, 4, v{t2}")
    a(f"v_add_u32 v{vAe}, v{t1}, v{t2}")
    a(f"v_xor_b32 v{t2}, 64, v{t2}")
    a(f"v_add_u32 v{t1}, 7168, v{t1}")
    a(f"v_add_u32 v{vAo}, v{t1}, v{t2}")
    a(f"v_lshrrev_b32 v{t1}, 2, v{vL}")
    a(f"v_mul_u32_u24 v{t1}, 2688, v{t1}")
    a(f"v_and_b32 v{t2}, 3, v{vL}")
    a(f"v_lshlrev_b32 v{t2}, 4, v{t2}")
    a(f"v_add_u32 v{vWd}, v{t1}, v{t2}")

    def issue(c):
        sl = (c % 4) * SLOT
        for q in range(4):
            a(f"s_add_u32 m0, s{sMA}, {sl + q*1024}")
            a(f"s_mov_b32 s{sT0}, {128*c + (q>>1)*14336}")
            a(f"buffer_load_dwordx4 v{vAo if q&1 else vAe}, {sr(SRD_A,4)}, s{sT0} offen lds")
            a(f"s_add_u32 m0, s{sMA}, {sl + 16384 + q*1024}")
            a(f"s_add_u32 s{sT0}, s{sWB}, {(64*c+16*q)*2688}")
            a(f"buffer_load_dwordx4 v{vWd}, {sr(SRD_W,4)}, s{sT0} offen lds")
    for c in range(3):
        issue(c)
    for c in range(7):
        a(f"s_waitcnt vmcnt({8*(min(c+2,6)-c)})")
        a("s_barrier")
        if c + 3 < 7:
            issue(c + 3)
    a("s_barrier")
    a("s_endpgm")

    a.label("K1_qkv_comp")
    make_srd(a, SRD_WS, P_WS, WS_SIZE)
    a(f"s_lshl_b32 s{sT0}, s{sW}, 12")
    a(f"v_lshlrev_b32 v{t1}, 7, v{vI}")
    a(f"v_add_u32 v{t1}, s{sT0}, v{t1}")
    a(f"v_bfe_u32 v{t2}, v{vI}, 1, 3")
    for s in range(4):
        a(f"v_add_u32 v{t3}, {2*s}, v{vHF}")
        a(f"v_xor_b32 v{t3}, v{t3}, v{t2}")
        a(f"v_lshlrev_b32 v{t3}, 4, v{t3}")
        a(f"v_add_u32 v{vAr0+s}, v{t1}, v{t3}")
    a("s_cmp_lt_u32 s2, 128")
    a("s_cbranch_scc0 K1_v")
    for kind in ('qk', 'v'):
        if kind == 'v':
            a.label("K1_v")
        SK = "k1" + kind
        stamp(a, SK)

        sSl, sCnt = 66, 67

        def setaddr():
            for s in range(4):
                a(f"v_add_u32 v{vAr+s}, s{sSl}, v{vAr0+s}")
            a(f"v_add_u32 v{vWr}, s{sSl}, v{vWr0}")
            a(f"s_add_u32 s{sSl}, s{sSl}, {SLOT}")
            a(f"s_and_b32 s{sSl}, s{sSl}, {4*SLOT-1}")

        def reads(s):
            b = s & 1
            a(f"ds_read_b128 {vr(vAf+4*b,4)}, v{vAr+s}")
            for t in range(4):
                o = 16384 + t * 4096 + s * 1024
                a(f"ds_read_b64_tr_b16 {vr(vWf+16*b+4*t,2)}, v{vWr} offset:{o}")
                a(f"ds_read_b64_tr_b16 {vr(vWf+16*b+4*t+2,2)}, v{vWr} offset:{o+256}")
        a(f"s_mov_b32 s{sSl}, 0")
        a(f"s_mov_b32 s{sCnt}, 0")
        for r in range(64):
            a(f"v_mov_b32 v{vAcc+r}, 0")
        setaddr()
        a("s_barrier")
        stamp(a, SK)
        reads(0)
        a.raw(".p2align 6")
        a.label(f"K1_{kind}_loop")
        for s in range(4):
            b = s & 1
            if s < 3:
                reads(s + 1)
                a("s_waitcnt lgkmcnt(9)")
            else:
                a("s_waitcnt lgkmcnt(0)")
                a("s_barrier")
                setaddr()
                reads(0)
            for t in range(4):
                C = vr(vAcc + 16 * t, 16)
                X, W = vr(vAf + 4 * b, 4), vr(vWf + 16 * b + 4 * t, 4)
                if kind == 'v':
                    a(f"v_mfma_f32_32x32x16_bf16 {vr(vAcc+16*t,16)}, {X}, {W}, {C}")
                else:
                    a(f"v_mfma_f32_32x32x16_bf16 {vr(vAcc+16*t,16)}, {W}, {X}, {C}")
        a(f"s_add_u32 s{sCnt}, s{sCnt}, 1")
        a(f"s_cmp_lt_u32 s{sCnt}, 7")
        a(f"s_cbranch_scc1 K1_{kind}_loop")
        stamp(a, SK)
        a(f"s_lshr_b32 s{sT1}, s2, 4")
        a(f"s_lshl_b32 s{sT1}, s{sT1}, 19")
        a(f"s_lshl_b32 s{sT0}, s{sRB}, 2")
        a(f"s_add_u32 s{sT0}, s{sT0}, s{sW}")
        a(f"s_lshl_b32 s{sT0}, s{sT0}, 11")
        a(f"s_add_u32 s{sT0}, s{sT0}, s{sT1}")
        a(f"v_lshlrev_b32 v{t1}, 4, v{vL}")
        a(f"v_add_u32 v{t1}, s{sT0}, v{t1}")
        if kind == 'qk':
            a(f"s_cmp_lt_u32 s2, 64")
            a(f"s_cselect_b32 s{sT1}, {f2u(QSCALE)}, 1.0")
            a(f"v_mov_b32 v{t2}, 0x3f803f80")
            a(f"v_mov_b32 v{t3}, 0x00003f80")
            a(f"v_cmp_lt_u32 vcc, 31, v{vL}")
        else:
            a(f"v_mov_b32 v{t2}, 0x3f803f80")
            a(f"v_cmp_eq_u32 vcc, 28, v{vI}")
        a("s_nop 4")
        for t in range(4):
            A = vAcc + 16 * t
            P = vTmp + 8 * (t & 1)
            if kind == 'qk':
                for r in range(16):
                    a(f"v_mul_f32 v{A+r}, s{sT1}, v{A+r}")
            for r in range(8):
                a(f"v_cvt_pk_bf16_f32 v{P+r}, v{A+2*r}, v{A+2*r+1}")
            if kind == 'qk':
                a(f"v_cndmask_b32 v{P+6}, v{P+6}, v{t2}, vcc")
                a(f"v_cndmask_b32 v{P+7}, v{P+7}, v{t3}, vcc")
            else:
                for r in range(8):
                    a(f"v_cndmask_b32 v{P+r}, v{P+r}, v{t2}, vcc")
            a(f"s_mov_b32 s{sT0}, {t*131072}")
            a(f"buffer_store_dwordx4 {vr(P,4)}, v{t1}, {sr(SRD_WS,4)}, s{sT0} offen")
            a(f"buffer_store_dwordx4 {vr(P+4,4)}, v{t1}, {sr(SRD_WS,4)}, s{sT0} offen offset:1024")
        stamp(a, SK)
        stamp_flush(a, SK, 5)
        a("s_endpgm")


def w1_path(a):
    sW, sT0, sT1, sMA, sWB, sRB, sHalf, sK1, sST = 60, 61, 62, 63, 64, 65, 66, 67, 68
    vL, vHF, vI, vWr0 = 1, 2, 3, 4
    vWd = 5
    vAr0 = 8
    vAr = 12
    vWr = 16
    t1, t2, t3, t4 = 17, 18, 19, 6
    vSum, vSq, vG = 20, 21, 22
    vXr = 24
    vGr = 52
    vU = 80
    vK0 = 7
    vAf = 24
    vWf = 40
    vTmp = 72
    vP = 88
    vAcc = 96
    SLOT, NS = 16384, 5
    SK = "k1w1"
    stamp(a, SK)
    make_srd(a, SRD_A, P_X, 2048 * 896)
    make_srd(a, SRD_E, P_GATE, 896)
    make_srd(a, SRD_WS, P_WS, WS_SIZE)
    a(f"s_sub_u32 s{sT0}, s2, 192")
    a(f"s_and_b32 s{sRB}, s{sT0}, 31")
    a(f"s_lshr_b32 s{sHalf}, s{sT0}, 5")
    a(f"s_lshl_b32 s{sT0}, s{sRB}, 6")
    a(f"s_lshl_b32 s{sT1}, s{sW}, 3")
    a(f"s_add_u32 s{sT0}, s{sT0}, s{sT1}")
    a(f"v_lshrrev_b32 v{t1}, 3, v{vL}")
    a(f"v_add_u32 v{t2}, s{sT0}, v{t1}")
    a(f"v_mul_u32_u24 v{t3}, 896, v{t2}")
    a(f"v_and_b32 v{t4}, 7, v{vL}")
    a(f"v_lshl_add_u32 v{t3}, v{t4}, 4, v{t3}")
    for j in range(7):
        a(f"buffer_load_dwordx4 {vr(vXr+4*j,4)}, v{t3}, {sr(SRD_A,4)}, 0 offen offset:{128*j}")
    a(f"v_lshlrev_b32 v{t3}, 4, v{t4}")
    for j in range(7):
        a(f"buffer_load_dwordx4 {vr(vGr+4*j,4)}, v{t3}, {sr(SRD_E,4)}, 0 offen offset:{128*j}")
    ptiles = ((0, 1, 4, 5), (2, 3, 6))
    ops = [98] * 14

    def issue(i):
        p, c = divmod(i, 7)
        sl = W1_RING + (i % NS) * SLOT
        for n, t in enumerate(ptiles[p]):
            a(f"s_add_u32 m0, s{sMA}, {sl + n*4096}")
            a(f"s_add_u32 s{sT0}, s{sWB}, {64*c*896 + 64*t}")
            a(f"buffer_load_dwordx4 v{vWd}, {sr(SRD_W,4)}, s{sT0} offen lds")
            ops.append(i)

    a(f"s_cmp_lt_u32 s{sW}, 4")
    a("s_cbranch_scc1 K1_w1_ln")
    make_srd(a, SRD_W, P_W1, 448 * 896)
    a(f"s_sub_u32 s{sT1}, s{sW}, 4")
    a(f"s_lshl_b32 s{sMA}, s{sT1}, 10")
    a(f"s_mul_i32 s{sWB}, s{sT1}, {16*896}")
    a(f"s_mul_i32 s{sT1}, s{sHalf}, 448")
    a(f"s_add_u32 s{sWB}, s{sWB}, s{sT1}")
    a(f"v_lshrrev_b32 v{t3}, 2, v{vL}")
    a(f"v_mul_u32_u24 v{t3}, 896, v{t3}")
    a(f"v_and_b32 v{vWd}, 3, v{vL}")
    a(f"v_lshl_add_u32 v{vWd}, v{vWd}, 4, v{t3}")
    for i in range(3):
        issue(i)
    a("s_waitcnt vmcnt(12)")
    a("s_branch K1_w1_ln2")
    a.label("K1_w1_ln")
    a("s_waitcnt vmcnt(0)")
    a.label("K1_w1_ln2")
    a(f"s_mov_b32 s{sT0}, 0x3f803f80")
    a(f"v_mov_b32 v{vSum}, 0")
    a(f"v_mov_b32 v{vSq}, 0")
    a(f"v_mov_b32 v{vG}, 0")
    for d in range(28):
        a(f"v_dot2_f32_bf16 v{vSum}, v{vXr+d}, s{sT0}, v{vSum}")
        a(f"v_dot2_f32_bf16 v{vSq}, v{vXr+d}, v{vXr+d}, v{vSq}")
        a(f"v_dot2_f32_bf16 v{vG}, v{vXr+d}, v{vGr+d}, v{vG}")
    for d in range(28):
        a(f"v_lshlrev_b32 v{vU+2*d}, 16, v{vXr+d}")
        a(f"v_and_b32 v{vU+2*d+1}, 0xffff0000, v{vXr+d}")
    for v in (vSum, vSq, vG):
        a("s_nop 1")
        a(f"v_add_f32_dpp v{v}, v{v}, v{v} quad_perm:[1,0,3,2] row_mask:0xf bank_mask:0xf")
        a("s_nop 1")
        a(f"v_add_f32_dpp v{v}, v{v}, v{v} quad_perm:[2,3,0,1] row_mask:0xf bank_mask:0xf")
        a("s_nop 1")
        a(f"v_add_f32_dpp v{v}, v{v}, v{v} row_half_mirror row_mask:0xf bank_mask:0xf")
    a(f"v_mul_f32 v{vSum}, {f2u(1.0/448)}, v{vSum}")
    a(f"v_mul_f32 v{vSq}, {f2u(1.0/448)}, v{vSq}")
    a(f"v_fma_f32 v{vSq}, -v{vSum}, v{vSum}, v{vSq}")
    a(f"v_add_f32 v{vSq}, {f2u(1e-5)}, v{vSq}")
    a(f"v_rsq_f32 v{vSq}, v{vSq}")
    a(f"v_mul_f32 v{vG}, {f2u(-LOG2E)}, v{vG}")
    a(f"v_mul_f32 v{vSum}, v{vSum}, v{vSq}")
    a(f"v_exp_f32 v{vG}, v{vG}")
    for e in range(56):
        a(f"v_fma_f32 v{vU+e}, v{vU+e}, v{vSq}, -v{vSum}")
    a(f"v_add_f32 v{vG}, 1.0, v{vG}")
    a(f"v_rcp_f32 v{vG}, v{vG}")
    for d in range(28):
        a(f"v_cvt_pk_bf16_f32 v{vXr+d}, v{vU+2*d}, v{vU+2*d+1}")
    a(f"s_lshl_b32 s{sT0}, s{sW}, 2")
    a(f"v_lshrrev_b32 v{t3}, 4, v{vL}")
    a(f"v_add_u32 v{t3}, s{sT0}, v{t3}")
    a(f"v_and_b32 v{t3}, 7, v{t3}")
    a(f"v_xor_b32 v{t3}, v{t3}, v{t4}")
    a(f"v_lshlrev_b32 v{t3}, 4, v{t3}")
    a(f"s_lshl_b32 s{sT0}, s{sW}, 10")
    a(f"v_lshl_add_u32 v{t3}, v{t1}, 7, v{t3}")
    a(f"v_add_u32 v{t3}, s{sT0}, v{t3}")
    for j in range(7):
        a(f"ds_write_b128 v{t3}, {vr(vXr+4*j,4)} offset:{8192*j}")
    a(f"s_cmp_eq_u32 s{sHalf}, 0")
    a("s_cbranch_scc0 K1_w1_nog2")
    a(f"v_lshlrev_b32 v{t2}, 2, v{t2}")
    a(f"s_mov_b32 s{sT0}, {GOFF}")
    a(f"v_cmp_eq_u32 vcc, 0, v{t4}")
    a("s_and_saveexec_b64 s[58:59], vcc")
    a(f"buffer_store_dword v{vG}, v{t2}, {sr(SRD_WS,4)}, s{sT0} offen")
    a("s_mov_b64 exec, s[58:59]")
    a.label("K1_w1_nog2")
    a("s_waitcnt lgkmcnt(0)")
    stamp(a, SK)
    sG, sWi, sAo2, sWoff, sCnt, sWslot, sWg = 69, 70, 71, 72, 73, 74, 75
    a(f"s_lshr_b32 s{sG}, s{sW}, 2")
    a(f"s_and_b32 s{sWi}, s{sW}, 3")
    a(f"s_and_b32 s{sT0}, s{sWi}, 1")
    a(f"s_lshl_b32 s{sT0}, s{sT0}, 12")
    a(f"v_lshlrev_b32 v{t1}, 7, v{vI}")
    a(f"v_add_u32 v{t1}, s{sT0}, v{t1}")
    a(f"v_bfe_u32 v{t2}, v{vI}, 1, 3")
    for s in range(4):
        a(f"v_add_u32 v{t3}, {2*s}, v{vHF}")
        a(f"v_xor_b32 v{t3}, v{t3}, v{t2}")
        a(f"v_lshlrev_b32 v{t3}, 4, v{t3}")
        a(f"v_add_u32 v{vAr0+s}, v{t1}, v{t3}")
    a(f"s_lshr_b32 s{sT0}, s{sWi}, 1")
    a(f"s_lshl_b32 s{sT0}, s{sT0}, 13")
    a(f"s_add_u32 s{sT0}, s{sT0}, {W1_RING}")
    a(f"v_add_u32 v{vWr0}, s{sT0}, v{vWr0}")
    a(f"s_and_b32 s{sT1}, s{sWi}, 1")
    a(f"s_lshl_b32 s{sST}, s{sRB}, 1")
    a(f"s_add_u32 s{sST}, s{sST}, s{sT1}")
    a(f"s_mul_i32 s{sST}, s{sST}, {28*1024}")
    a(f"s_mul_i32 s{sT0}, s{sHalf}, {14*1024}")
    a(f"s_add_u32 s{sST}, s{sST}, s{sT0}")
    a(f"s_lshr_b32 s{sT0}, s{sWi}, 1")
    a(f"s_lshl_b32 s{sT0}, s{sT0}, 13")
    a(f"s_add_u32 s{sST}, s{sST}, s{sT0}")
    a(f"s_lshl_b32 s{sT0}, s{sG}, 12")
    a(f"s_add_u32 s{sST}, s{sST}, s{sT0}")
    a(f"s_add_u32 s{sST}, s{sST}, {HF}")
    a(f"v_lshlrev_b32 v{t1}, 4, v{vL}")
    a(f"s_mov_b32 s{sK1}, {f2u(GK1)}")
    a(f"v_mov_b32 v{vK0}, {f2u(GK0)}")

    def epi(t):
        A = vAcc + 16 * t
        L = gelu_list([A + r for r in range(16)], vTmp, vK0, sK1)
        for r in range(8):
            L.append(f"v_cvt_pk_bf16_f32 v{vP+r}, v{A+2*r}, v{A+2*r+1}")
        L.append(f"buffer_store_dwordx4 {vr(vP,4)}, v{t1}, {sr(SRD_WS,4)}, s{sST} offen offset:{2048*t}")
        L.append(f"buffer_store_dwordx4 {vr(vP+4,4)}, v{t1}, {sr(SRD_WS,4)}, s{sST} offen offset:{2048*t+1024}")
        L.append("s_nop 1")
        return L

    def setaddr():
        for s in range(4):
            a(f"v_add_u32 v{vAr+s}, s{sAo2}, v{vAr0+s}")
        a(f"v_add_u32 v{vWr}, s{sWoff}, v{vWr0}")
        a(f"s_add_u32 s{sAo2}, s{sAo2}, 8192")
        a(f"s_add_u32 s{sWoff}, s{sWoff}, {SLOT}")
        a(f"s_cmp_lt_u32 s{sWoff}, {NS*SLOT}")
        a(f"s_cselect_b32 s{sWoff}, s{sWoff}, 0")

    def rd_w(b, s, tt):
        o = tt * 4096 + s * 1024
        a(f"ds_read_b64_tr_b16 {vr(vWf+8*b+4*tt,2)}, v{vWr} offset:{o}")
        a(f"ds_read_b64_tr_b16 {vr(vWf+8*b+4*tt+2,2)}, v{vWr} offset:{o+256}")

    def rd_a(b, s):
        a(f"ds_read_b128 {vr(vAf+4*b,4)}, v{vAr+s}")

    a(f"s_mov_b32 s{sAo2}, 0")
    a(f"s_cmp_eq_u32 s{sG}, 0")
    a("s_cbranch_scc0 K1_w1_B")
    a(f"s_mov_b32 s{sWoff}, 0")
    a("s_barrier")
    setaddr()
    pass_loop(a, "K1A", vAf, vWf, vAcc, sCnt, setaddr, rd_a, rd_w, lambda post: None)
    stamp(a, SK)
    emit_with_barriers(a, ["s_nop 10"] + epi(0) + epi(1), 7)
    stamp(a, SK)
    stamp_flush(a, SK, 200)
    a("s_endpgm")
    a.label("K1_w1_B")
    def wait_for(i):
        last = max(k for k, t in enumerate(ops) if t == i)
        a(f"s_waitcnt vmcnt({len(ops)-1-last})")
    for i in range(8):
        wait_for(i)
        a("s_barrier")
        issue(i + 3)
    a(f"s_mov_b32 s{sWoff}, {(7%NS)*SLOT}")
    a(f"s_mov_b32 s{sWslot}, {W1_RING + (11%NS)*SLOT}")
    a(f"s_add_u32 s{sWg}, s{sWB}, {64*4*896}")
    setaddr()

    def atb(post):
        if not post:
            a("s_waitcnt vmcnt(6)")
        else:
            for n, t in enumerate(ptiles[1]):
                a(f"s_add_u32 s{sT1}, s{sMA}, s{sWslot}")
                a(f"s_add_u32 m0, s{sT1}, {n*4096}")
                a(f"s_add_u32 s{sT0}, s{sWg}, {64*t}")
                a(f"buffer_load_dwordx4 v{vWd}, {sr(SRD_W,4)}, s{sT0} offen lds")
            a(f"s_add_u32 s{sWg}, s{sWg}, {64*896}")
            a(f"s_add_u32 s{sWslot}, s{sWslot}, {SLOT}")
            a(f"s_cmp_lt_u32 s{sWslot}, {W1_RING + NS*SLOT}")
            a(f"s_cselect_b32 s{sWslot}, s{sWslot}, {W1_RING}")
    pass_loop(a, "K1B", vAf, vWf, vAcc, sCnt, setaddr, rd_a, rd_w, atb)
    a("s_nop 10")
    for x in epi(0):
        a(x)
    a(f"s_cmp_lt_u32 s{sWi}, 2")
    a("s_cbranch_scc0 K1_w1_done")
    for x in epi(1):
        a(x)
    a.label("K1_w1_done")
    a("s_endpgm")


def gen_k1(a):
    kernel_head(a, "k1_kernel")
    a("s_cmp_ge_u32 s2, 256")
    a("s_cbranch_scc1 K1_exit")
    load_ptrs(a)
    lane_consts(a, 1, 2, 3, 4, 17, 18, 8)
    a(f"v_lshrrev_b32 v17, 6, v0")
    a("s_nop 0")
    a(f"v_readfirstlane_b32 s60, v17")
    a("s_waitcnt lgkmcnt(0)")
    a("s_cmp_lt_u32 s2, 192")
    a("s_cbranch_scc1 K1_qkv")
    w1_path(a)
    a.label("K1_qkv")
    qkv_path(a)
    a.label("K1_exit")
    a("s_endpgm")
```

```python
from gen import *
STATS = 21 * MB
CS3 = 22 * MB
K2_W2 = 65536
K2_LDS = 65536 + 57344


def gen_k2(a):
    kernel_head(a, "k2_kernel")
    a("s_cmp_ge_u32 s2, 256")
    a("s_cbranch_scc1 K2_exit")
    stamp(a, "k2")
    load_ptrs(a)
    sW, sT0, sT1, sG0, sSlot, sStage, sThr, sH, sQB = 60, 61, 62, 63, 65, 66, 67, 68, 69
    sSlotW, sMode, sRB, sCT, sLq, sT2, sLo = 70, 71, 72, 73, 64, 74, 75
    vL, vHF, vI = 1, 2, 3
    vD16, vRd0, vRdV, vRdK = 4, 5, 6, 7
    t1, t2, t3, t4 = 8, 9, 10, 11
    vMa, vMb, vTa, vTb = 12, 13, 14, 15
    vWr0 = 16

    lane_consts(a, vL, vHF, vI, vWr0, t1, t2, 4)
    a(f"v_lshrrev_b32 v{t1}, 6, v0")
    a(f"v_lshlrev_b32 v{vD16}, 4, v{vL}")
    a(f"v_readfirstlane_b32 s{sW}, v{t1}")
    a(f"s_and_b32 s{sH}, s2, 7")
    a(f"s_lshl_b32 s{sH}, s{sH}, 1")
    a(f"s_bfe_u32 s{sT0}, s2, 0x10003")
    a(f"s_add_u32 s{sH}, s{sH}, s{sT0}")
    a(f"s_lshr_b32 s{sQB}, s2, 4")
    a("s_waitcnt lgkmcnt(0)")
    make_srd(a, SRD_WS, P_WS, WS_SIZE)
    a(f"s_cmp_lt_u32 s{sW}, 8")
    a("s_cbranch_scc1 K2_comp")

    vAo = 18
    vX = 22
    vW2 = 32
    vAcc2 = 48
    vA2 = 64
    a(f"s_sub_u32 s{sLq}, s{sW}, 8")
    a(f"s_mov_b32 s{sMode}, 0")
    a(f"s_cmp_ge_u32 s2, 224")
    a(f"s_cselect_b32 s{sMode}, 1, s{sMode}")
    a(f"s_cmp_ge_u32 s2, 252")
    a(f"s_cselect_b32 s{sMode}, 2, s{sMode}")
    a(f"s_lshl_b32 s{sG0}, s{sH}, 17")
    a(f"s_lshl_b32 s{sT0}, s{sLq}, 15")
    a(f"s_add_u32 s{sG0}, s{sG0}, s{sT0}")
    a(f"s_add_u32 s{sG0}, s{sG0}, {KF}")
    a(f"s_lshl_b32 s{sLo}, s{sLq}, 12")

    def issue_stage():
        a(f"s_add_u32 m0, s{sSlotW}, s{sLo}")
        a(f"s_add_u32 s{sT0}, s{sG0}, {2*MB}")
        a(f"buffer_load_dwordx4 v{vD16}, {sr(SRD_WS,4)}, s{sG0} offen lds")
        a(f"buffer_load_dwordx4 v{vD16}, {sr(SRD_WS,4)}, s{sG0} offen offset:1024 lds")
        a(f"s_add_u32 m0, m0, 2048")
        a(f"s_add_u32 s{sG0}, s{sG0}, 2048")
        a(f"buffer_load_dwordx4 v{vD16}, {sr(SRD_WS,4)}, s{sT0} offen lds")
        a(f"buffer_load_dwordx4 v{vD16}, {sr(SRD_WS,4)}, s{sT0} offen offset:1024 lds")
        a(f"s_add_u32 s{sSlotW}, s{sSlotW}, 16384")
        a(f"s_and_b32 s{sSlotW}, s{sSlotW}, 0xffff")

    a(f"s_mov_b32 s{sSlotW}, 0")
    for st in range(3):
        issue_stage()
    a(f"s_cmp_lt_u32 s{sMode}, 2")
    a("s_cbranch_scc1 K2_ldw")
    a("s_waitcnt vmcnt(8)")
    a("s_barrier")
    a(f"s_mov_b32 s{sStage}, 0")
    a.label("K2_ld_loop")
    a("s_waitcnt vmcnt(4)")
    a("s_barrier")
    issue_stage()
    a(f"s_add_u32 s{sStage}, s{sStage}, 1")
    a(f"s_cmp_lt_u32 s{sStage}, 13")
    a("s_cbranch_scc1 K2_ld_loop")
    a.label("K2_ld_tail")
    a("s_waitcnt vmcnt(4)")
    a("s_barrier")
    a("s_waitcnt vmcnt(0)")
    a("s_barrier")
    a("s_barrier")
    a("s_barrier")
    a("s_barrier")
    a("s_endpgm")

    a.label("K2_ldw")
    a(f"s_lshr_b32 s{sCT}, s{sLq}, 1")
    a(f"s_and_b32 s{sT2}, s{sLq}, 1")
    a(f"v_lshrrev_b32 v{t1}, 2, v{vL}")
    a(f"v_and_b32 v{t2}, 3, v{vL}")
    a(f"v_lshlrev_b32 v{t2}, 4, v{t2}")
    a(f"s_mul_i32 s{sT0}, s{sCT}, 28672")
    a(f"s_add_u32 s{sT0}, s{sT0}, {K2_W2}")
    a(f"v_add_u32 v{vWr0}, s{sT0}, v{vWr0}")
    a(f"s_lshl_b32 s{sT1}, s{sT2}, 10")
    a(f"s_add_u32 s{sStage}, s{sT0}, s{sT1}")
    a(f"s_and_b32 s{sRB}, s2, 31")
    a(f"s_lshl_b32 s{sRB}, s{sRB}, 1")
    a(f"s_add_u32 s{sRB}, s{sRB}, s{sT2}")
    make_srd(a, SRD_E, P_X, 2048 * 896)
    sWs, sWo2 = 56, 57
    vWd = 30
    a(f"s_lshl_b32 s{sT0}, s{sRB}, 5")
    a(f"v_add_u32 v{t4}, s{sT0}, v{vI}")
    a(f"s_cmp_eq_u32 s{sMode}, 1")
    a("s_cbranch_scc1 K2_ld_w3")
    make_srd(a, SRD_W, P_W2, 448 * 896)
    make_srd(a, SRD_A, P_WS, HF_SIZE, HF)
    a(f"v_mul_u32_u24 v{t1}, 896, v{t1}")
    a(f"v_add_u32 v{vWd}, v{t1}, v{t2}")
    a(f"s_lshr_b32 s{sWo2}, s2, 5")
    a(f"s_lshl_b32 s{sWo2}, s{sWo2}, 7")
    a(f"s_mov_b32 s{sWs}, {16*896}")
    for g, sh in enumerate((1, -1, 2, -2)):
        a(f"v_subrev_u32 v{t2}, {sh}, v{t4}" if sh > 0 else f"v_add_u32 v{t2}, {-sh}, v{t4}")
        a(f"v_lshrrev_b32 v{t3}, 5, v{t2}")
        a(f"v_mul_u32_u24 v{t3}, 28672, v{t3}")
        a(f"v_and_b32 v{vAo+g}, 31, v{t2}")
        a(f"v_lshl_add_u32 v{vAo+g}, v{vHF}, 5, v{vAo+g}")
        a(f"v_lshl_add_u32 v{vAo+g}, v{vAo+g}, 4, v{t3}")
        a(f"v_cmp_gt_u32 vcc, 2048, v{t2}")
        a(f"v_mov_b32 v{t3}, 0x80000000")
        a("s_nop 0")
        a(f"v_cndmask_b32 v{vAo+g}, v{t3}, v{vAo+g}, vcc")
    a("s_branch K2_ld_w")
    a.label("K2_ld_w3")
    make_srd(a, SRD_W, P_W3, 448 * 3584)
    make_srd(a, SRD_A, P_WS, 65536, VF + 448)
    a(f"v_mul_u32_u24 v{t1}, 3584, v{t1}")
    a(f"v_add_u32 v{vWd}, v{t1}, v{t2}")
    a(f"s_sub_u32 s{sWo2}, s2, 224")
    a(f"s_lshl_b32 s{sWo2}, s{sWo2}, 7")
    a(f"s_mov_b32 s{sWs}, {16*3584}")
    for g in range(4):
        a(f"v_mov_b32 v{vAo+g}, 0")
    a.label("K2_ld_w")
    a(f"s_lshl_b32 s{sT0}, s{sCT}, 6")
    a(f"s_add_u32 s{sWo2}, s{sWo2}, s{sT0}")
    a(f"s_mul_i32 s{sT0}, s{sWs}, s{sT2}")
    a(f"s_add_u32 s{sWo2}, s{sWo2}, s{sT0}")
    a(f"s_lshl_b32 s{sWs}, s{sWs}, 1")
    a(f"v_mul_u32_u24 v{t4}, 896, v{t4}")
    a(f"v_lshl_add_u32 v{t4}, v{vHF}, 3, v{t4}")

    ops = ["st0"] * 4 + ["st1"] * 4 + ["st2"] * 4
    def wait_for(tag):
        last = max(i for i, t in enumerate(ops) if t == tag)
        a(f"s_waitcnt vmcnt({len(ops)-1-last})")
    def w_dma(ts):
        for t in ts:
            a(f"s_add_u32 m0, s{sStage}, {2048*t}")
            a("s_nop 0")
            a(f"buffer_load_dwordx4 v{vWd}, {sr(SRD_W,4)}, s{sWo2} offen lds")
            a(f"s_add_u32 s{sWo2}, s{sWo2}, s{sWs}")
            ops.append("w")
    def a_loads(kss, tag):
        for ks in kss:
            a(f"s_mov_b32 s{sT0}, {1024*ks}")
            a(f"buffer_load_dwordx4 {vr(vA2+4*(ks%14),4)}, v{vAo+ks//7}, {sr(SRD_A,4)}, s{sT0} offen")
            ops.append(tag)
    def x_loads():
        a(f"s_lshr_b32 s{sT0}, s2, 5")
        a(f"s_lshl_b32 s{sT0}, s{sT0}, 7")
        a(f"s_lshl_b32 s{sT1}, s{sCT}, 6")
        a(f"s_add_u32 s{sT0}, s{sT0}, s{sT1}")
        for q in range(4):
            a(f"buffer_load_dwordx2 {vr(vX+2*q,2)}, v{t4}, {sr(SRD_E,4)}, s{sT0} offen offset:{16*q}")
            ops.append("x")
    def kstep_group(kss):
        def rd(ks):
            b = ks & 3
            a(f"ds_read_b64_tr_b16 {vr(vW2+4*b,2)}, v{vWr0} offset:{1024*ks}")
            a(f"ds_read_b64_tr_b16 {vr(vW2+4*b+2,2)}, v{vWr0} offset:{1024*ks+512}")
        for ks in kss:
            rd(ks)
        for n, ks in enumerate(kss):
            a(f"s_waitcnt lgkmcnt({2*(len(kss)-1-n)})")
            C = "0" if ks == 0 else vr(vAcc2, 16)
            a(f"v_mfma_f32_32x32x16_bf16 {vr(vAcc2,16)}, {vr(vW2+4*(ks&3),4)}, {vr(vA2+4*(ks%14),4)}, {C}")

    wait_for("st0")
    a("s_barrier")
    for j in range(13):
        wait_for(f"st{j+1}")
        a("s_barrier")
        issue_stage()
        ops.extend([f"st{j+3}"] * 4)
        if j == 0: w_dma(range(0, 7))
        if j == 1: w_dma(range(7, 14))
        if j == 2: a_loads(range(0, 7), "a0")
        if j == 3: a_loads(range(7, 14), "a0")
        if j == 4: x_loads()
        if j == 5:
            wait_for("a0")
            kstep_group([0, 1, 2, 3]); kstep_group([4, 5, 6])
        if j == 6:
            kstep_group([7, 8, 9, 10]); kstep_group([11, 12, 13])
            a_loads(range(14, 21), "a1")
        if j == 7: a_loads(range(21, 28), "a1")
        if j == 10:
            wait_for("a1")
            kstep_group([14, 15, 16, 17]); kstep_group([18, 19, 20])
        if j == 11:
            kstep_group([21, 22, 23, 24]); kstep_group([25, 26, 27])
    a("s_nop 12")
    a(f"s_cmp_eq_u32 s{sMode}, 1")
    a("s_cbranch_scc1 K2_cs3")
    a(f"v_mov_b32 v{t3}, 0")
    a(f"v_mov_b32 v{t4}, 0")
    for r in range(8):
        x = vX + r
        a(f"v_lshlrev_b32 v{t1}, 16, v{x}")
        a(f"v_and_b32 v{t2}, 0xffff0000, v{x}")
        a(f"v_add_f32 v{vAcc2+2*r}, v{vAcc2+2*r}, v{t1}")
        a(f"v_add_f32 v{vAcc2+2*r+1}, v{vAcc2+2*r+1}, v{t2}")
    for r in range(16):
        a(f"v_add_f32 v{t3}, v{t3}, v{vAcc2+r}")
        a(f"v_fmac_f32 v{t4}, v{vAcc2+r}, v{vAcc2+r}")
    for r in range(8):
        a(f"v_cvt_pk_bf16_f32 v{vW2+r}, v{vAcc2+2*r}, v{vAcc2+2*r+1}")
    a(f"s_lshr_b32 s{sT1}, s2, 5")
    a(f"s_lshl_b32 s{sT1}, s{sT1}, 1")
    a(f"s_add_u32 s{sT1}, s{sT1}, s{sCT}")
    a(f"s_mul_i32 s{sT0}, s{sRB}, {28*1024}")
    a(f"s_lshl_b32 s{sT2}, s{sT1}, 11")
    a(f"s_add_u32 s{sT0}, s{sT0}, s{sT2}")
    a(f"s_add_u32 s{sT0}, s{sT0}, {X1F}")
    a("s_waitcnt vmcnt(4)")
    a("s_barrier")
    a(f"buffer_store_dwordx4 {vr(vW2,4)}, v{vD16}, {sr(SRD_WS,4)}, s{sT0} offen")
    a(f"buffer_store_dwordx4 {vr(vW2+4,4)}, v{vD16}, {sr(SRD_WS,4)}, s{sT0} offen offset:1024")
    xhalf_sum(a, t3, t1)
    xhalf_sum(a, t4, t1)
    a(f"s_lshl_b32 s{sT0}, s{sRB}, 5")
    a(f"v_add_u32 v{t1}, s{sT0}, v{vI}")
    a(f"v_mul_u32_u24 v{t1}, 112, v{t1}")
    a(f"s_lshl_b32 s{sT1}, s{sT1}, 3")
    a(f"s_add_u32 s{sT1}, s{sT1}, {STATS}")
    a(f"buffer_store_dwordx2 v[{t3}:{t4}], v{t1}, {sr(SRD_WS,4)}, s{sT1} offen")
    a("s_waitcnt vmcnt(3)")
    a("s_branch K2_ld_tail2")
    a.label("K2_cs3")
    a(f"s_sub_u32 s{sT1}, s2, 224")
    a(f"s_lshl_b32 s{sT1}, s{sT1}, 1")
    a(f"s_add_u32 s{sT1}, s{sT1}, s{sCT}")
    a(f"s_lshl_b32 s{sT1}, s{sT1}, 7")
    a(f"s_add_u32 s{sT1}, s{sT1}, {CS3}")
    a(f"v_lshlrev_b32 v{t1}, 4, v{vHF}")
    a("s_waitcnt vmcnt(4)")
    a("s_barrier")
    a(f"v_cmp_eq_u32 vcc, 0, v{vI}")
    a(f"s_and_saveexec_b64 s[58:59], vcc")
    for q in range(4):
        a(f"buffer_store_dwordx4 {vr(vAcc2+4*q,4)}, v{t1}, {sr(SRD_WS,4)}, s{sT1} offen offset:{32*q}")
    a("s_mov_b64 exec, s[58:59]")
    a("s_waitcnt vmcnt(4)")
    a.label("K2_ld_tail2")
    a("s_barrier")
    a("s_barrier")
    a("s_barrier")
    a("s_barrier")
    a("s_endpgm")

    vFloor = 17
    vQ = 20
    vP = 36
    vK = 44
    vV = 52
    vO = 60
    vS = 92
    a.label("K2_comp")
    a(f"s_lshl_b32 s{sQB}, s{sQB}, 2")
    a(f"s_and_b32 s{sT0}, s{sW}, 1")
    a(f"s_lshl_b32 s{sT0}, s{sT0}, 1")
    a(f"s_add_u32 s{sQB}, s{sQB}, s{sT0}")
    a(f"s_lshl_b32 s{sT0}, s{sH}, 6")
    a(f"s_add_u32 s{sT0}, s{sT0}, s{sQB}")
    a(f"s_lshl_b32 s{sT0}, s{sT0}, 11")
    for q in range(4):
        a(f"buffer_load_dwordx4 {vr(vQ+4*q,4)}, v{vD16}, {sr(SRD_WS,4)}, s{sT0} offen offset:{1024*q}")
    a(f"s_lshr_b32 s{sT0}, s{sW}, 1")
    a(f"s_lshl_b32 s{sT0}, s{sT0}, 12")
    a(f"v_add_u32 v{vRd0}, s{sT0}, v{vD16}")
    for r in range(32):
        a(f"v_mov_b32 v{vO+r}, 0")
    a(f"v_mov_b32 v{vMa}, 0")
    a(f"v_mov_b32 v{vMb}, 0")
    a(f"v_mov_b32 v{vFloor}, 0xff800000")
    a(f"s_mov_b32 s{sThr}, 0xff800000")
    a(f"s_mov_b32 s{sStage}, 0")
    a(f"s_mov_b32 s{sSlot}, 0")
    a(f"v_cmp_lt_u32 vcc, 31, v{vL}")
    a("s_waitcnt vmcnt(0)")
    for q in (6, 7, 14, 15):
        a(f"v_cndmask_b32 v{vQ+q}, v{vQ+q}, 0, vcc")
    stamp(a, "k2")
    a("s_barrier")
    a(f"ds_read_b128 {vr(vK,4)}, v{vRd0}")
    a(f"ds_read_b128 {vr(vK+4,4)}, v{vRd0} offset:1024")
    a("s_waitcnt lgkmcnt(0)")
    for b in range(2):
        a(f"v_mfma_f32_32x32x16_bf16 {vr(vS+16*b,16)}, {vr(vK,4)}, {vr(vQ+8*b,4)}, 0")
        a(f"v_mfma_f32_32x32x16_bf16 {vr(vS+16*b,16)}, {vr(vK+4,4)}, {vr(vQ+8*b+4,4)}, {vr(vS+16*b,16)}")
    a("s_nop 7")
    stamp(a, "k2")
    Oa, Ob = vO, vO + 16

    def body(p):
        S, Sn = vS + 32 * p, vS + 32 * (1 - p)
        if STAMP == "k2it":
            a("s_memtime s[76:77]")
            a("s_waitcnt lgkmcnt(0)")
            a(f"s_lshl_b32 s78, s{sStage}, 1")
            a("s_mov_b32 m0, s78"); a("s_nop 0"); a("v_writelane_b32 v158, s76, m0")
        a("s_barrier")
        if STAMP == "k2it":
            a("s_memtime s[76:77]")
            a("s_waitcnt lgkmcnt(0)")
            a(f"s_add_u32 s78, s78, 1")
            a("s_mov_b32 m0, s78"); a("s_nop 0"); a("v_writelane_b32 v158, s76, m0")
        a(f"v_add_u32 v{vRdV}, s{sSlot}, v{vRd0}")
        a(f"s_add_u32 s{sSlot}, s{sSlot}, 16384")
        a(f"s_and_b32 s{sSlot}, s{sSlot}, 0xffff")
        a(f"v_add_u32 v{vRdK}, s{sSlot}, v{vRd0}")
        a(f"ds_read_b128 {vr(vK,4)}, v{vRdK}")
        a(f"ds_read_b128 {vr(vK+4,4)}, v{vRdK} offset:1024")
        a(f"ds_read_b128 {vr(vV,4)}, v{vRdV} offset:2048")
        a(f"ds_read_b128 {vr(vV+4,4)}, v{vRdV} offset:3072")
        a(f"v_max3_f32 v{vTa}, v{S}, v{S+1}, v{S+2}")
        a(f"v_max3_f32 v{t1}, v{S+3}, v{S+4}, v{S+5}")
        for r in range(6, 14, 4):
            a(f"v_max3_f32 v{vTa}, v{vTa}, v{S+r}, v{S+r+1}")
            a(f"v_max3_f32 v{t1}, v{t1}, v{S+r+2}, v{S+r+3}")
        a(f"v_max3_f32 v{vTa}, v{vTa}, v{S+14}, v{S+15}")
        a(f"v_max3_f32 v{vTb}, v{S+16}, v{S+17}, v{S+18}")
        a(f"v_max_f32 v{vTa}, v{vTa}, v{t1}")
        a(f"v_max3_f32 v{t1}, v{S+19}, v{S+20}, v{S+21}")
        for r in range(22, 30, 4):
            a(f"v_max3_f32 v{vTb}, v{vTb}, v{S+r}, v{S+r+1}")
            a(f"v_max3_f32 v{t1}, v{t1}, v{S+r+2}, v{S+r+3}")
        a(f"v_max3_f32 v{vTb}, v{vTb}, v{S+30}, v{S+31}")
        a(f"v_max_f32 v{vTb}, v{vTb}, v{t1}")
        a(f"v_max_f32 v{t1}, v{vTa}, v{vTb}")
        a(f"v_cmp_lt_f32 vcc, s{sThr}, v{t1}")
        a(f"s_cbranch_vccnz A_slow{p}")
        a.label(f"A_ret{p}")
        a("s_waitcnt lgkmcnt(2)")
        a(f"v_mfma_f32_32x32x16_bf16 {vr(Sn,16)}, {vr(vK,4)}, {vr(vQ,4)}, 0")
        for r in range(4):
            a(f"v_exp_f32 v{S+r}, v{S+r}")
        a(f"v_mfma_f32_32x32x16_bf16 {vr(Sn+16,16)}, {vr(vK,4)}, {vr(vQ+8,4)}, 0")
        for r in range(4, 9):
            a(f"v_exp_f32 v{S+r}, v{S+r}")
        for r in range(4):
            a(f"v_cvt_pk_bf16_f32 v{vP+r}, v{S+2*r}, v{S+2*r+1}")
        a(f"v_exp_f32 v{S+9}, v{S+9}")
        a("s_waitcnt lgkmcnt(0)")
        a(f"v_mfma_f32_32x32x16_bf16 {vr(Oa,16)}, {vr(vV,4)}, {vr(vP,4)}, {vr(Oa,16)}")
        for r in range(10, 13):
            a(f"v_exp_f32 v{S+r}, v{S+r}")
        a(f"v_mfma_f32_32x32x16_bf16 {vr(Sn,16)}, {vr(vK+4,4)}, {vr(vQ+4,4)}, {vr(Sn,16)}")
        for r in range(13, 17):
            a(f"v_exp_f32 v{S+r}, v{S+r}")
        for r in range(4, 8):
            a(f"v_cvt_pk_bf16_f32 v{vP+r}, v{S+2*r}, v{S+2*r+1}")
        a(f"v_exp_f32 v{S+17}, v{S+17}")
        a(f"v_exp_f32 v{S+18}, v{S+18}")
        a(f"v_mfma_f32_32x32x16_bf16 {vr(Oa,16)}, {vr(vV+4,4)}, {vr(vP+4,4)}, {vr(Oa,16)}")
        for r in range(19, 22):
            a(f"v_exp_f32 v{S+r}, v{S+r}")
        a(f"v_mfma_f32_32x32x16_bf16 {vr(Sn+16,16)}, {vr(vK+4,4)}, {vr(vQ+12,4)}, {vr(Sn+16,16)}")
        for r in range(22, 25):
            a(f"v_exp_f32 v{S+r}, v{S+r}")
        for r in range(4):
            a(f"v_cvt_pk_bf16_f32 v{vP+r}, v{S+16+2*r}, v{S+16+2*r+1}")
        a(f"v_exp_f32 v{S+25}, v{S+25}")
        a(f"v_exp_f32 v{S+26}, v{S+26}")
        a(f"v_mfma_f32_32x32x16_bf16 {vr(Ob,16)}, {vr(vV,4)}, {vr(vP,4)}, {vr(Ob,16)}")
        for r in range(27, 32):
            a(f"v_exp_f32 v{S+r}, v{S+r}")
        a(f"s_add_u32 s{sStage}, s{sStage}, 1")
        for r in range(4, 8):
            a(f"v_cvt_pk_bf16_f32 v{vP+r}, v{S+16+2*r}, v{S+16+2*r+1}")
        a(f"s_cmp_lt_u32 s{sStage}, 16")
        a("s_nop 0")
        a(f"v_mfma_f32_32x32x16_bf16 {vr(Ob,16)}, {vr(vV+4,4)}, {vr(vP+4,4)}, {vr(Ob,16)}")

    a.raw(".p2align 6")
    a.label("A_loop")
    body(0)
    body(1)
    a("s_cbranch_scc1 A_loop")

    stamp(a, "k2")
    if STAMP == "k2it":
        a("s_cmp_eq_u32 s2, 100")
        a("s_cbranch_scc0 K2_itskip")
        a(f"s_cmp_eq_u32 s{sW}, {os.environ.get('ITW','0')}")
        a("s_cbranch_scc0 K2_itskip")
        make_srd(a, SRD_F, P_DBG, 256)
        a(f"v_lshlrev_b32 v159, 2, v{vL}")
        a(f"buffer_store_dword v158, v159, s[{SRD_F}:{SRD_F+3}], 0 offen")
        a.label("K2_itskip")
    a("s_barrier")
    a(f"s_mul_i32 s{sT0}, s{sW}, 9216")
    a(f"v_add_u32 v{t1}, s{sT0}, v{vD16}")
    a(f"v_lshlrev_b32 v{t2}, 2, v{vL}")
    a(f"v_add_u32 v{t2}, s{sT0}, v{t2}")
    a("s_nop 8")
    for sub in range(2):
        for q in range(4):
            a(f"ds_write_b128 v{t1}, {vr(vO+16*sub+4*q,4)} offset:{4608*sub+1024*q}")
    a(f"ds_write_b32 v{t2}, v{vMa} offset:4096")
    a(f"ds_write_b32 v{t2}, v{vMb} offset:{4608+4096}")
    a("s_waitcnt lgkmcnt(0)")
    a("s_barrier")
    a(f"s_cmp_lt_u32 s{sW}, 4")
    a("s_cbranch_scc0 K2_exit")
    a(f"s_and_b32 s{sT0}, s{sW}, 1")
    a(f"s_mul_i32 s{sT0}, s{sT0}, 9216")
    a(f"s_lshr_b32 s{sT1}, s{sW}, 1")
    a(f"s_mul_i32 s{sT2}, s{sT1}, 4608")
    a(f"s_add_u32 s{sT0}, s{sT0}, s{sT2}")
    a(f"v_add_u32 v{t1}, s{sT0}, v{vD16}")
    a(f"v_lshlrev_b32 v{t2}, 2, v{vL}")
    a(f"v_add_u32 v{t2}, s{sT0}, v{t2}")
    R, MM, PK = 92, 20, 24
    for kq in range(4):
        a(f"ds_read_b32 v{MM+kq}, v{t2} offset:{18432*kq+4096}")
    for kq in range(4):
        for q in range(4):
            a(f"ds_read_b128 {vr(R+16*kq+4*q,4)}, v{t1} offset:{18432*kq+1024*q}")
    a("s_waitcnt lgkmcnt(0)")
    a(f"v_max3_f32 v{t3}, v{MM}, v{MM+1}, v{MM+2}")
    a(f"v_max_f32 v{t3}, v{t3}, v{MM+3}")
    for kq in range(4):
        a(f"v_sub_f32 v{MM+kq}, v{MM+kq}, v{t3}")
    for kq in range(4):
        a(f"v_exp_f32 v{MM+kq}, v{MM+kq}")
    a("s_nop 0")
    for r in range(16):
        a(f"v_mul_f32 v{R+r}, v{R+r}, v{MM}")
    for kq in range(1, 4):
        for r in range(16):
            a(f"v_fmac_f32 v{R+r}, v{R+16*kq+r}, v{MM+kq}")
    a(f"v_mov_b32 v{t2}, v{R+12}")
    a(f"v_mov_b32 v{t3}, v{R+12}")
    a("s_nop 1")
    a(f"v_permlane32_swap_b32 v{t2}, v{t3}")
    a(f"v_rcp_f32 v{t3}, v{t3}")
    a(f"v_cmp_lt_u32 vcc, 31, v{vL}")
    for r in range(16):
        a(f"v_mul_f32 v{R+r}, v{R+r}, v{t3}")
    for r in range(8):
        a(f"v_cvt_pk_bf16_f32 v{PK+r}, v{R+2*r}, v{R+2*r+1}")
    a(f"v_cndmask_b32 v{PK+6}, v{PK+6}, 0, vcc")
    a(f"v_cndmask_b32 v{PK+7}, v{PK+7}, 0, vcc")
    a(f"s_add_u32 s{sT0}, s{sQB}, s{sT1}")
    a(f"s_lshl_b32 s{sT0}, s{sT0}, 4")
    a(f"s_add_u32 s{sT0}, s{sT0}, s{sH}")
    a(f"s_lshl_b32 s{sT0}, s{sT0}, 11")
    a(f"s_add_u32 s{sT0}, s{sT0}, {OF}")
    a(f"buffer_store_dwordx4 {vr(PK,4)}, v{vD16}, {sr(SRD_WS,4)}, s{sT0} offen")
    a(f"buffer_store_dwordx4 {vr(PK+4,4)}, v{vD16}, {sr(SRD_WS,4)}, s{sT0} offen offset:1024")
    stamp(a, "k2")
    stamp_flush(a, "k2", 100)
    a("s_endpgm")

    for p in range(2):
        S = vS + 32 * p
        a.label(f"A_slow{p}")
        a(f"v_cmp_lt_u32 vcc, 31, v{vL}")
        for sub, (vT, vM) in enumerate(((vTa, vMa), (vTb, vMb))):
            a(f"v_mov_b32 v{t1}, v{vT}")
            a("s_nop 1")
            a(f"v_permlane32_swap_b32 v{vT}, v{t1}")
            a("s_nop 1")
            a(f"v_max3_f32 v{vT}, v{vT}, v{t1}, v{vFloor}")
            a(f"v_add_f32 v{vM}, v{vM}, v{vT}")
            a(f"v_max_f32 v{t1}, 0, v{vT}")
            a(f"v_exp_f32 v{t1}, -v{t1}")
            for r in range(16):
                a(f"v_sub_f32 v{S+16*sub+r}, v{S+16*sub+r}, v{vT}")
            for r in range(16):
                a(f"v_mul_f32 v{vO+16*sub+r}, v{vO+16*sub+r}, v{t1}")
            a(f"v_sub_f32 v{t1}, 0, v{vM}")
            a(f"v_cvt_pk_bf16_f32 v{t2}, v{t1}, v{t1}")
            a(f"v_and_b32 v{t2}, 0xffff0000, v{t2}")
            a(f"v_sub_f32 v{t1}, v{t1}, v{t2}")
            a(f"v_cvt_pk_bf16_f32 v{t3}, v{t1}, v{t1}")
            a(f"v_and_b32 v{t3}, 0xffff0000, v{t3}")
            a(f"v_sub_f32 v{t1}, v{t1}, v{t3}")
            a(f"v_cvt_pk_bf16_f32 v{t2}, v{t2}, v{t3}")
            a(f"v_cvt_pk_bf16_f32 v{t3}, v{t1}, 0")
            a(f"v_cndmask_b32 v{vQ+8*sub+6}, v{vQ+8*sub+6}, v{t2}, vcc")
            a(f"v_cndmask_b32 v{vQ+8*sub+7}, v{vQ+8*sub+7}, v{t3}, vcc")
        a(f"v_mov_b32 v{vFloor}, 0")
        a(f"s_mov_b32 s{sThr}, 0x42000000")
        a(f"s_branch A_ret{p}")
    a.label("K2_exit")
    a("s_endpgm")
```

```python
from gen import *
from gen_tp import *
from gen_k2 import STATS, CS3

K3_RING = 114688
K3_CS = K3_RING + 5 * 8192
K3_LDS = K3_CS + 1024


def gen_k3(a):
    kernel_head(a, "k3_kernel")
    a("s_cmp_ge_u32 s2, 224")
    a("s_cbranch_scc1 K3_exit")
    stamp(a, "k3")
    load_ptrs(a)
    sW, sT0, sT1, sRB, sCB, sWB, sMA, sK1, sST = 60, 61, 62, 63, 64, 65, 66, 68, 69
    sAoff, sWoff, sCnt, sWslot, sWg, sG = 70, 71, 72, 73, 74, 75
    vL, vHF, vI, vWr0 = 1, 2, 3, 4
    vWd, vD16, vWr, vAr0, vAr = 5, 6, 7, 11, 17
    t1, t2, t3 = 8, 9, 10
    vMean, vK0, vRstd, vCsA = 12, 13, 14, 15
    vAf = 20
    vWf = 36
    vAcc = 68
    vTmp = 100
    vP = 116
    vCs = 124
    vSt = 140
    lane_consts(a, vL, vHF, vI, vWr0, t1, t2, 4)
    a(f"v_lshrrev_b32 v{t1}, 6, v0")
    a(f"v_lshlrev_b32 v{vD16}, 4, v{vL}")
    a(f"v_readfirstlane_b32 s{sW}, v{t1}")
    a("s_waitcnt lgkmcnt(0)")
    make_srd(a, SRD_WS, P_WS, WS_SIZE)
    a(f"s_and_b32 s{sRB}, s2, 15")
    a(f"s_lshr_b32 s{sCB}, s2, 4")
    a(f"s_lshr_b32 s{sG}, s{sW}, 2")
    a(f"s_and_b32 s{sW}, s{sW}, 3")
    a(f"s_lshl_b32 s{sRB}, s{sRB}, 2")
    a(f"s_add_u32 s{sRB}, s{sRB}, s{sW}")
    a(f"s_cmp_eq_u32 s{sG}, 0")
    a("s_cbranch_scc1 K3_common")
    make_srd(a, SRD_W, P_W3, 448 * 3584)
    a(f"s_lshl_b32 s{sWB}, s{sCB}, 8")
    a(f"s_mul_i32 s{sT0}, s{sW}, {16*3584}")
    a(f"s_add_u32 s{sWB}, s{sWB}, s{sT0}")
    a(f"s_lshl_b32 s{sMA}, s{sW}, 10")
    a(f"s_add_u32 s{sMA}, s{sMA}, {K3_RING}")
    a(f"v_lshrrev_b32 v{t1}, 2, v{vL}")
    a(f"v_mul_u32_u24 v{t1}, 3584, v{t1}")
    a(f"v_and_b32 v{t2}, 3, v{vL}")
    a(f"v_lshlrev_b32 v{t2}, 4, v{t2}")
    a(f"v_add_u32 v{vWd}, v{t1}, v{t2}")
    a(f"s_mul_i32 s{sT1}, s{sRB}, {28*1024}")
    a(f"s_add_u32 s{sT1}, s{sT1}, {X1F}")
    a(f"s_mul_i32 s{sAoff}, s{sW}, 28672")
    ops = []

    def issue(i):
        p, c = divmod(i, 7)
        if p == 0:
            a(f"s_add_u32 m0, s{sAoff}, {4096*c}")
            a(f"s_add_u32 s{sT0}, s{sT1}, {4096*c}")
            for s in range(4):
                a(f"buffer_load_dwordx4 v{vD16}, {sr(SRD_WS,4)}, s{sT0} offen offset:{1024*s} lds")
                ops.append(i)
        for tt in range(2):
            t = 2 * p + tt
            a(f"s_add_u32 m0, s{sMA}, {(i%5)*8192 + tt*4096}")
            a(f"s_add_u32 s{sT0}, s{sWB}, {64*c*3584 + 64*t}")
            a(f"buffer_load_dwordx4 v{vWd}, {sr(SRD_W,4)}, s{sT0} offen lds")
            ops.append(i)
    for i in range(3):
        issue(i)
    a(f"s_lshl_b32 s{sT0}, s{sCB}, 9")
    a(f"s_add_u32 s{sT0}, s{sT0}, {CS3}")
    a(f"s_mov_b32 m0, {K3_CS}")
    a("s_nop 0")
    a(f"buffer_load_dwordx4 v{vD16}, {sr(SRD_WS,4)}, s{sT0} offen lds")
    ops.append(99)
    a.label("K3_common")
    a(f"s_lshl_b32 s{sT0}, s{sRB}, 5")
    a(f"v_add_u32 v{t1}, s{sT0}, v{vI}")
    a(f"v_mul_u32_u24 v{t1}, 112, v{t1}")
    a(f"s_mov_b32 s{sT0}, {STATS}")
    for q in range(7):
        a(f"buffer_load_dwordx4 {vr(vSt+4*q,4)}, v{t1}, {sr(SRD_WS,4)}, s{sT0} offen offset:{16*q}")
        ops.append(99)
    a(f"v_lshlrev_b32 v{vCsA}, 4, v{vHF}")
    a(f"s_lshl_b32 s{sT0}, s{sG}, 8")
    a(f"s_add_u32 s{sT0}, s{sT0}, {K3_CS}")
    a(f"v_add_u32 v{vCsA}, s{sT0}, v{vCsA}")
    a(f"s_mul_i32 s{sST}, s{sRB}, {112*1024}")
    a(f"s_lshl_b32 s{sT0}, s{sCB}, 13")
    a(f"s_add_u32 s{sST}, s{sST}, s{sT0}")
    a(f"s_lshl_b32 s{sT0}, s{sG}, 12")
    a(f"s_add_u32 s{sST}, s{sST}, s{sT0}")
    a(f"s_add_u32 s{sST}, s{sST}, {H2F}")
    a(f"s_mov_b32 s{sK1}, {f2u(GK1)}")
    a(f"v_mov_b32 v{vK0}, {f2u(GK0)}")
    a(f"s_mul_i32 s{sT0}, s{sW}, 28672")
    a(f"v_add_u32 v{vAr0}, s{sT0}, v{vD16}")
    a(f"v_add_u32 v{vWr0}, {K3_RING}, v{vWr0}")

    sAo2 = 76 if not STAMP else 100
    def setaddr():
        a(f"v_add_u32 v{vAr}, s{sAo2}, v{vAr0}")
        a(f"v_add_u32 v{vWr}, s{sWoff}, v{vWr0}")
        a(f"s_add_u32 s{sAo2}, s{sAo2}, 4096")
        a(f"s_add_u32 s{sWoff}, s{sWoff}, 8192")
        a(f"s_cmp_lt_u32 s{sWoff}, {5*8192}")
        a(f"s_cselect_b32 s{sWoff}, s{sWoff}, 0")

    def rd_a(b, s):
        a(f"ds_read_b128 {vr(vAf+4*b,4)}, v{vAr} offset:{1024*s}")

    def rd_w(b, s, tt):
        o = tt * 4096 + s * 1024
        a(f"ds_read_b64_tr_b16 {vr(vWf+8*b+4*tt,2)}, v{vWr} offset:{o}")
        a(f"ds_read_b64_tr_b16 {vr(vWf+8*b+4*tt+2,2)}, v{vWr} offset:{o+512}")

    def epilogue():
        L = ["s_waitcnt vmcnt(0)"]
        for q in range(1, 14):
            L.append(f"v_add_f32 v{vSt}, v{vSt}, v{vSt+2*q}")
            L.append(f"v_add_f32 v{vSt+1}, v{vSt+1}, v{vSt+2*q+1}")
        L.append(f"v_mul_f32 v{vMean}, {f2u(1.0/448)}, v{vSt}")
        L.append(f"v_mul_f32 v{vRstd}, {f2u(1.0/448)}, v{vSt+1}")
        L.append(f"v_fma_f32 v{vRstd}, -v{vMean}, v{vMean}, v{vRstd}")
        L.append(f"v_add_f32 v{vRstd}, {f2u(1e-5)}, v{vRstd}")
        L.append(f"v_rsq_f32 v{vRstd}, v{vRstd}")
        for t in range(2):
            A = vAcc + 16 * t
            L += [f"ds_read_b128 {vr(vCs+4*q,4)}, v{vCsA} offset:{128*t+32*q}" for q in range(4)]
            L.append("s_waitcnt lgkmcnt(0)")
            for r in range(16):
                L.append(f"v_fma_f32 v{A+r}, -v{vMean}, v{vCs+r}, v{A+r}")
            for r in range(16):
                L.append(f"v_mul_f32 v{A+r}, v{vRstd}, v{A+r}")
            L += gelu_list([A + r for r in range(16)], vTmp, vK0, sK1)
            for r in range(8):
                L.append(f"v_cvt_pk_bf16_f32 v{vP+r}, v{A+2*r}, v{A+2*r+1}")
            L.append(f"buffer_store_dwordx4 {vr(vP,4)}, v{vD16}, {sr(SRD_WS,4)}, s{sST} offen offset:{2048*t}")
            L.append(f"buffer_store_dwordx4 {vr(vP+4,4)}, v{vD16}, {sr(SRD_WS,4)}, s{sST} offen offset:{2048*t+1024}")
            L.append("s_nop 1")
        return L

    a(f"s_mov_b32 s{sAo2}, 0")
    a(f"s_cmp_eq_u32 s{sG}, 0")
    a("s_cbranch_scc0 K3_B")
    a(f"s_mov_b32 s{sWoff}, 0")
    stamp(a, "k3")
    a("s_barrier")
    stamp(a, "k3")
    setaddr()
    pass_loop(a, "K3A", vAf, vWf, vAcc, sCnt, setaddr, rd_a, rd_w, lambda post: None)
    stamp(a, "k3")
    emit_with_barriers(a, epilogue(), 7)
    stamp(a, "k3")
    stamp_flush(a, "k3", 5)
    a("s_endpgm")
    a.label("K3_B")
    def wait_for(i):
        last = max(k for k, t in enumerate(ops) if t == i)
        a(f"s_waitcnt vmcnt({len(ops)-1-last})")
    for i in range(8):
        wait_for(i)
        a("s_barrier")
        issue(i + 3)
    a(f"s_mov_b32 s{sWoff}, {(7%5)*8192}")
    a(f"s_mov_b32 s{sWslot}, {(11%5)*8192}")
    a(f"s_add_u32 s{sWg}, s{sWB}, {64*4*3584 + 128}")
    setaddr()

    def atb(post):
        if not post:
            a("s_waitcnt vmcnt(4)")
        else:
            a(f"s_add_u32 m0, s{sMA}, s{sWslot}")
            a(f"s_add_u32 s{sT0}, s{sWg}, 64")
            a(f"buffer_load_dwordx4 v{vWd}, {sr(SRD_W,4)}, s{sWg} offen lds")
            a(f"s_add_u32 m0, m0, 4096")
            a(f"s_add_u32 s{sWg}, s{sWg}, {64*3584}")
            a(f"buffer_load_dwordx4 v{vWd}, {sr(SRD_W,4)}, s{sT0} offen lds")
            a(f"s_add_u32 s{sWslot}, s{sWslot}, 8192")
            a(f"s_cmp_lt_u32 s{sWslot}, {5*8192}")
            a(f"s_cselect_b32 s{sWslot}, s{sWslot}, 0")
    pass_loop(a, "K3B", vAf, vWf, vAcc, sCnt, setaddr, rd_a, rd_w, atb)
    a("s_nop 10")
    for x in epilogue():
        a(x)
    a.label("K3_exit")
    a("s_endpgm")
```

```python
from gen import *

K4_LDS = 4 * 32768


def gen_k4(a):
    kernel_head(a, "k4_kernel")
    a("s_cmp_ge_u32 s2, 224")
    a("s_cbranch_scc1 K4_exit")
    stamp(a, "k4")
    load_ptrs(a)
    sW, sT0, sT1, sRB, sCB = 60, 61, 62, 63, 64
    sAg, sWg, sSlotW, sSlotR, sC, sMA, sMW = 65, 66, 67, 68, 69, 70, 71
    sAo, sWo = 72, 73
    vL, vHF, vI, vWr0 = 1, 2, 3, 4
    vWd, vD16, vWr, vAr0, vAr = 5, 6, 7, 8, 9
    t1, t2, t3 = 10, 11, 12
    vG = 13
    vX1 = 16
    vAf = 24
    vWf = 56
    vAccB = 88
    vAccA = 104
    vP = 120
    lane_consts(a, vL, vHF, vI, vWr0, t1, t2, 4)
    a(f"v_lshrrev_b32 v{t1}, 6, v0")
    a(f"v_lshlrev_b32 v{vD16}, 4, v{vL}")
    a(f"v_readfirstlane_b32 s{sW}, v{t1}")
    a("s_waitcnt lgkmcnt(0)")
    make_srd(a, SRD_WS, P_WS, WS_SIZE)
    a(f"s_and_b32 s{sRB}, s2, 31")
    a(f"s_lshr_b32 s{sCB}, s2, 5")
    a(f"s_cmp_lt_u32 s{sW}, 4")
    a("s_cbranch_scc1 K4_comp")
    make_srd(a, SRD_W, P_W4, 1792 * 896)
    make_srd(a, SRD_E, P_WO, 448 * 896)
    a(f"s_sub_u32 s{sW}, s{sW}, 4")
    a(f"s_and_b32 s{sT0}, s{sW}, 1")
    a(f"s_lshr_b32 s{sT1}, s{sW}, 1")
    a(f"s_lshl_b32 s{sMA}, s{sT0}, 13")
    a(f"s_lshl_b32 s{sMW}, s{sT1}, 11")
    a(f"s_add_u32 s{sMA}, s{sMA}, s{sMW}")
    a(f"s_add_u32 s{sMW}, s{sMA}, 16384")
    a(f"s_lshl_b32 s{sAg}, s{sRB}, 1")
    a(f"s_add_u32 s{sAg}, s{sAg}, s{sT0}")
    a(f"s_lshl_b32 s{sAo}, s{sAg}, 15")
    a(f"s_mul_i32 s{sAg}, s{sAg}, {112*1024}")
    a(f"s_lshl_b32 s{sWg}, s{sT1}, 11")
    a(f"s_add_u32 s{sAg}, s{sAg}, s{sWg}")
    a(f"s_add_u32 s{sAo}, s{sAo}, s{sWg}")
    a(f"s_add_u32 s{sAg}, s{sAg}, {H2F}")
    a(f"s_add_u32 s{sAo}, s{sAo}, {OF}")
    a(f"s_lshl_b32 s{sWg}, s{sCB}, 1")
    a(f"s_add_u32 s{sWg}, s{sWg}, s{sT0}")
    a(f"s_lshl_b32 s{sWg}, s{sWg}, 6")
    a(f"s_mul_i32 s{sWo}, s{sT1}, {28*896}")
    a(f"s_add_u32 s{sWo}, s{sWo}, s{sWg}")
    a(f"s_mul_i32 s{sT1}, s{sT1}, {32*896}")
    a(f"s_add_u32 s{sWg}, s{sWg}, s{sT1}")
    a(f"v_lshrrev_b32 v{t1}, 2, v{vL}")
    a(f"v_mul_u32_u24 v{t1}, 896, v{t1}")
    a(f"v_and_b32 v{t2}, 3, v{vL}")
    a(f"v_lshlrev_b32 v{t2}, 4, v{t2}")
    a(f"v_add_u32 v{vWd}, v{t1}, v{t2}")

    def issue(kind):
        sA, sWW, srd = (sAg, sWg, SRD_W) if kind == 'w4' else (sAo, sWo, SRD_E)
        a(f"s_add_u32 m0, s{sMA}, s{sSlotW}")
        a(f"s_add_u32 s{sT1}, s{sMW}, s{sSlotW}")
        for j in range(2):
            a(f"buffer_load_dwordx4 v{vD16}, {sr(SRD_WS,4)}, s{sA} offen offset:{1024*j} lds")
        for j in range(2):
            a(f"s_add_u32 m0, s{sT1}, {1024*j}")
            a(f"s_add_u32 s{sT0}, s{sWW}, {16*j*896}")
            a(f"buffer_load_dwordx4 v{vWd}, {sr(srd,4)}, s{sT0} offen lds")
        a(f"s_add_u32 s{sA}, s{sA}, 8192")
        a(f"s_add_u32 s{sWW}, s{sWW}, {(128 if kind == 'w4' else 112)*896}")
        a(f"s_add_u32 s{sSlotW}, s{sSlotW}, 32768")
        a(f"s_and_b32 s{sSlotW}, s{sSlotW}, 0x1ffff")

    a(f"s_mov_b32 s{sSlotW}, 0")
    for c in range(3):
        issue('w4')
    a(f"s_mov_b32 s{sC}, 0")
    a.label("K4_ld1")
    a("s_waitcnt vmcnt(8)")
    a("s_barrier")
    issue('w4')
    a(f"s_add_u32 s{sC}, s{sC}, 1")
    a(f"s_cmp_lt_u32 s{sC}, 11")
    a("s_cbranch_scc1 K4_ld1")
    a.label("K4_ld2")
    a("s_waitcnt vmcnt(8)")
    a("s_barrier")
    issue('wo')
    a(f"s_add_u32 s{sC}, s{sC}, 1")
    a(f"s_cmp_lt_u32 s{sC}, 15")
    a("s_cbranch_scc1 K4_ld2")
    for n in (8, 4, 0):
        a(f"s_waitcnt vmcnt({n})")
        a("s_barrier")
    a("s_endpgm")

    a.label("K4_comp")
    make_srd(a, SRD_F, P_OUT, 2048 * 896)
    a(f"s_lshl_b32 s{sT0}, s{sRB}, 1")
    a(f"s_and_b32 s{sT1}, s{sW}, 1")
    a(f"s_add_u32 s{sT0}, s{sT0}, s{sT1}")
    a(f"s_lshl_b32 s{sT1}, s{sT0}, 7")
    a(f"s_add_u32 s{sT1}, s{sT1}, {GOFF}")
    a(f"v_lshlrev_b32 v{t1}, 2, v{vI}")
    a(f"buffer_load_dword v{vG}, v{t1}, {sr(SRD_WS,4)}, s{sT1} offen")
    a(f"s_mul_i32 s{sT0}, s{sT0}, {28*1024}")
    a(f"s_lshl_b32 s{sT1}, s{sCB}, 12")
    a(f"s_add_u32 s{sT0}, s{sT0}, s{sT1}")
    a(f"s_lshr_b32 s{sT1}, s{sW}, 1")
    a(f"s_lshl_b32 s{sT1}, s{sT1}, 11")
    a(f"s_add_u32 s{sT0}, s{sT0}, s{sT1}")
    a(f"s_add_u32 s{sT0}, s{sT0}, {X1F}")
    a(f"buffer_load_dwordx4 {vr(vX1,4)}, v{vD16}, {sr(SRD_WS,4)}, s{sT0} offen")
    a(f"buffer_load_dwordx4 {vr(vX1+4,4)}, v{vD16}, {sr(SRD_WS,4)}, s{sT0} offen offset:1024")
    a(f"s_and_b32 s{sT0}, s{sW}, 1")
    a(f"s_lshl_b32 s{sT0}, s{sT0}, 13")
    a(f"v_add_u32 v{vAr0}, s{sT0}, v{vD16}")
    a(f"s_lshr_b32 s{sT0}, s{sW}, 1")
    a(f"s_lshl_b32 s{sT0}, s{sT0}, 13")
    a(f"s_add_u32 s{sT0}, s{sT0}, 16384")
    a(f"v_add_u32 v{vWr0}, s{sT0}, v{vWr0}")

    def compute(acc):
        a(f"v_add_u32 v{vAr}, s{sSlotR}, v{vAr0}")
        a(f"v_add_u32 v{vWr}, s{sSlotR}, v{vWr0}")
        for s in range(8):
            a(f"ds_read_b128 {vr(vAf+4*s,4)}, v{vAr} offset:{1024*s}")
            a(f"ds_read_b64_tr_b16 {vr(vWf+4*s,2)}, v{vWr} offset:{1024*s}")
            a(f"ds_read_b64_tr_b16 {vr(vWf+4*s+2,2)}, v{vWr} offset:{1024*s+512}")
            if s >= 3:
                a(f"s_waitcnt lgkmcnt(9)")
                q = s - 3
                a(f"v_mfma_f32_32x32x16_bf16 {vr(acc,16)}, {vr(vWf+4*q,4)}, {vr(vAf+4*q,4)}, {vr(acc,16)}")
        for q in range(5, 8):
            a(f"s_waitcnt lgkmcnt({3*(7-q)})")
            a(f"v_mfma_f32_32x32x16_bf16 {vr(acc,16)}, {vr(vWf+4*q,4)}, {vr(vAf+4*q,4)}, {vr(acc,16)}")
        a(f"s_add_u32 s{sSlotR}, s{sSlotR}, 32768")
        a(f"s_and_b32 s{sSlotR}, s{sSlotR}, 0x1ffff")

    a(f"s_mov_b32 s{sSlotR}, 0")
    for r in range(16):
        a(f"v_mov_b32 v{vAccB+r}, 0")
        a(f"v_mov_b32 v{vAccA+r}, 0")
    a(f"s_mov_b32 s{sC}, 0")
    stamp(a, "k4")
    a.label("K4_c1")
    a("s_barrier")
    compute(vAccB)
    a(f"s_add_u32 s{sC}, s{sC}, 1")
    a(f"s_cmp_lt_u32 s{sC}, 14")
    a("s_cbranch_scc1 K4_c1")
    stamp(a, "k4")
    a.label("K4_c2")
    a("s_barrier")
    compute(vAccA)
    a(f"s_add_u32 s{sC}, s{sC}, 1")
    a(f"s_cmp_lt_u32 s{sC}, 18")
    a("s_cbranch_scc1 K4_c2")
    a("s_waitcnt vmcnt(0)")
    a("s_nop 12")
    stamp(a, "k4")
    a(f"v_sub_f32 v{t3}, 1.0, v{vG}")
    for r in range(8):
        x = vX1 + r
        a(f"v_lshlrev_b32 v{t1}, 16, v{x}")
        a(f"v_and_b32 v{t2}, 0xffff0000, v{x}")
        a(f"v_add_f32 v{vAccB+2*r}, v{vAccB+2*r}, v{t1}")
        a(f"v_add_f32 v{vAccB+2*r+1}, v{vAccB+2*r+1}, v{t2}")
    for r in range(16):
        a(f"v_mul_f32 v{vAccB+r}, v{vAccB+r}, v{t3}")
    for r in range(16):
        a(f"v_fmac_f32 v{vAccB+r}, v{vAccA+r}, v{vG}")
    for r in range(8):
        a(f"v_cvt_pk_bf16_f32 v{vP+r}, v{vAccB+2*r}, v{vAccB+2*r+1}")
    a(f"s_lshl_b32 s{sT0}, s{sRB}, 6")
    a(f"s_and_b32 s{sT1}, s{sW}, 1")
    a(f"s_lshl_b32 s{sT1}, s{sT1}, 5")
    a(f"s_add_u32 s{sT0}, s{sT0}, s{sT1}")
    a(f"v_add_u32 v{t1}, s{sT0}, v{vI}")
    a(f"v_mul_u32_u24 v{t1}, 896, v{t1}")
    a(f"v_lshl_add_u32 v{t1}, v{vHF}, 3, v{t1}")
    a(f"s_lshl_b32 s{sT0}, s{sCB}, 7")
    a(f"s_lshr_b32 s{sT1}, s{sW}, 1")
    a(f"s_lshl_b32 s{sT1}, s{sT1}, 6")
    a(f"s_add_u32 s{sT0}, s{sT0}, s{sT1}")
    for q in range(4):
        a(f"buffer_store_dwordx2 {vr(vP+2*q,2)}, v{t1}, {sr(SRD_F,4)}, s{sT0} offen offset:{16*q}")
    stamp(a, "k4")
    stamp_flush(a, "k4", 5)
    a.label("K4_exit")
    a("s_endpgm")
```

```python
from gen import *

from gen_k2 import gen_k2, K2_LDS
from gen_k3 import gen_k3, K3_LDS

from gen_k4 import gen_k4, K4_LDS
from gen_k1 import gen_k1, K1_LDS

def main():
    a = Asm()
    a.raw(HEADER.rstrip())
    a.raw(f"; @launch kernel=k1_kernel grid=(256,1,1) block=(512,1,1) lds={K1_LDS}")
    a.raw(f"; @launch kernel=k2_kernel grid=(256,1,1) block=(768,1,1) lds={K2_LDS}")
    a.raw(f"; @launch kernel=k3_kernel grid=(224,1,1) block=(512,1,1) lds={K3_LDS}")
    a.raw(f"; @launch kernel=k4_kernel grid=(224,1,1) block=(768,1,1) lds={K4_LDS}")
    a.raw('.amdgcn_target "amdgcn-amd-amdhsa--gfx950"')
    a.raw(".text")
    gen_k1(a)
    gen_k2(a)
    gen_k3(a)
    gen_k4(a)
    a.raw('.section .rodata,"a"')
    for name, v in (("k1_kernel", 152), ("k2_kernel", 160), ("k3_kernel", 168), ("k4_kernel", 128)):
        a.raw(".p2align 6")
        kd(a, name, v)
    out = sys.argv[1] if len(sys.argv) > 1 else "gated_mix__mha_block__mixer_s_mlp__prompt.s"
    open(out, "w").write(a.text())
    print("wrote", out, len(a.lines), "lines")
```

```python
from gen import *


def gelu_list(regs, tmp, vk0, sk1):
    L = []
    for i, x in enumerate(regs): L.append(f"v_mul_f32 v{tmp+i}, v{x}, v{x}")
    for i, x in enumerate(regs): L.append(f"v_fma_f32 v{tmp+i}, v{tmp+i}, s{sk1}, v{vk0}")
    for i, x in enumerate(regs): L.append(f"v_mul_f32 v{tmp+i}, v{tmp+i}, v{x}")
    for i, x in enumerate(regs): L.append(f"v_exp_f32 v{tmp+i}, v{tmp+i}")
    for i, x in enumerate(regs): L.append(f"v_add_f32 v{tmp+i}, 1.0, v{tmp+i}")
    for i, x in enumerate(regs): L.append(f"v_rcp_f32 v{tmp+i}, v{tmp+i}")
    for i, x in enumerate(regs): L.append(f"v_mul_f32 v{x}, v{x}, v{tmp+i}")
    return L


def pass_loop(a, tag, vAf, vWf, vAcc, sCnt, setaddr, rd_a, rd_w, at_barrier):
    for r in range(32):
        a(f"v_mov_b32 v{vAcc+r}, 0")

    def reads(s):
        rd_a(s, s)
        rd_w(s, s, 0)
        rd_w(s, s, 1)
    reads(0)
    reads(1)
    a(f"s_mov_b32 s{sCnt}, 0")
    a.raw(".p2align 6")
    a.label(f"{tag}_loop")
    for s in range(4):
        if s == 2:
            at_barrier(0)
            a("s_barrier")
            at_barrier(1)
            setaddr()
        reads((s + 2) & 3)
        a("s_waitcnt lgkmcnt(10)")
        for tt in range(2):
            a(f"v_mfma_f32_32x32x16_bf16 {vr(vAcc+16*tt,16)}, {vr(vWf+8*s+4*tt,4)}, {vr(vAf+4*s,4)}, {vr(vAcc+16*tt,16)}")
    a(f"s_add_u32 s{sCnt}, s{sCnt}, 1")
    a(f"s_cmp_lt_u32 s{sCnt}, 7")
    a(f"s_cbranch_scc1 {tag}_loop")
    a("s_waitcnt lgkmcnt(0)")


def emit_with_barriers(a, L, nbar):
    n = (len(L) + nbar - 1) // nbar
    for k in range(nbar):
        for x in L[k * n:(k + 1) * n]:
            a(x)
        a("s_barrier")
```

```python
import struct, sys

MB = 1 << 20
QF, KF, VF, HF, GOFF, OF, X1F, H2F = 0, 2 * MB, 4 * MB, 6 * MB, 8 * MB, 9 * MB, 11 * MB, 13 * MB
WS_SIZE = 32 * MB
HF_SIZE = 64 * 28 * 1024

def f2u(x):
    return struct.unpack("<I", struct.pack("<f", x))[0]

LOG2E = 1.4426950408889634
QSCALE = (28 ** -0.5) * LOG2E
GK0 = -2.0 * 0.7978845608028654 * LOG2E
GK1 = GK0 * 0.044715


class Asm:
    def __init__(self):
        self.lines = []
    def __call__(self, s):
        self.lines.append("    " + s)
    def label(self, l):
        self.lines.append(l + ":")
    def raw(self, s):
        self.lines.append(s)
    def text(self):
        return "\n".join(self.lines) + "\n"


def vr(b, n):
    return f"v[{b}:{b+n-1}]"

def sr(b, n):
    return f"s[{b}:{b+n-1}]"

S_PTR = 16
P_X, P_WQKV, P_WO, P_BX, P_W1, P_W2, P_W3, P_W4 = 16, 18, 20, 22, 24, 26, 28, 30
P_GATE, P_OUT, P_DBG, P_WS = 32, 34, 36, 38
SRD_A, SRD_W, SRD_WS, SRD_E = 40, 44, 48, 52
SRD_F = 56


def kernel_head(a, name):
    a.raw(f".globl {name}")
    a.raw(".p2align 8")
    a.raw(f".type {name},@function")
    a.label(name)


def load_ptrs(a):
    a(f"s_load_dwordx16 s[16:31], s[0:1], 0")
    a(f"s_load_dwordx8 s[32:39], s[0:1], 64")


def make_srd(a, srd, ptr, size, off=0):
    if off:
        a(f"s_add_u32 s{srd}, s{ptr}, {off}")
        a(f"s_addc_u32 s{srd+1}, s{ptr+1}, 0")
    else:
        a(f"s_mov_b32 s{srd}, s{ptr}")
        a(f"s_mov_b32 s{srd+1}, s{ptr+1}")
    a(f"s_mov_b32 s{srd+2}, {size}")
    a(f"s_mov_b32 s{srd+3}, 0x00020000")


def xhalf_sum(a, v, t):
    a(f"v_mov_b32 v{t}, v{v}")
    a("s_nop 1")
    a(f"v_permlane32_swap_b32 v{v}, v{t}")
    a(f"v_add_f32 v{v}, v{v}, v{t}")


def gelu_inplace(a, x, t1, t2, sk0, sk1):
    a(f"v_mul_f32 v{t1}, v{x}, v{x}")
    a(f"v_mov_b32 v{t2}, s{sk0}")
    a(f"v_fmac_f32 v{t2}, s{sk1}, v{t1}")
    a(f"v_mul_f32 v{t2}, v{t2}, v{x}")
    a(f"v_exp_f32 v{t2}, v{t2}")
    a("s_nop 0")
    a(f"v_add_f32 v{t2}, 1.0, v{t2}")
    a(f"v_rcp_f32 v{t2}, v{t2}")
    a("s_nop 0")
    a(f"v_mul_f32 v{x}, v{x}, v{t2}")


def gelu_block(a, regs, tmp, sk0, sk1):
    n = len(regs)
    for i, x in enumerate(regs):
        a(f"v_mul_f32 v{tmp+i}, v{x}, v{x}")
    for i, x in enumerate(regs):
        a(f"v_fma_f32 v{tmp+i}, v{tmp+i}, s{sk1}, v{sk0}")
    for i, x in enumerate(regs):
        a(f"v_mul_f32 v{tmp+i}, v{tmp+i}, v{x}")
    for i, x in enumerate(regs):
        a(f"v_exp_f32 v{tmp+i}, v{tmp+i}")
    for i, x in enumerate(regs):
        a(f"v_add_f32 v{tmp+i}, 1.0, v{tmp+i}")
    for i, x in enumerate(regs):
        a(f"v_rcp_f32 v{tmp+i}, v{tmp+i}")
    for i, x in enumerate(regs):
        a(f"v_mul_f32 v{x}, v{x}, v{tmp+i}")


def lane_consts(a, vL, vHF, vI, vWr, t1, t2, khalf_rows):
    a(f"v_and_b32 v{vL}, 63, v0")
    a(f"v_lshrrev_b32 v{vHF}, 5, v{vL}")
    a(f"v_and_b32 v{vI}, 31, v{vL}")
    a(f"v_bfe_u32 v{t1}, v{vL}, 2, 2")
    a(f"v_mul_u32_u24 v{t2}, {khalf_rows}, v{vHF}")
    a(f"v_add_u32 v{t1}, v{t1}, v{t2}")
    a(f"v_lshlrev_b32 v{vWr}, 6, v{t1}")
    a(f"v_bfe_u32 v{t1}, v{vL}, 4, 1")
    a(f"v_lshlrev_b32 v{t1}, 5, v{t1}")
    a(f"v_and_b32 v{t2}, 3, v{vL}")
    a(f"v_lshlrev_b32 v{t2}, 3, v{t2}")
    a(f"v_add3_u32 v{vWr}, v{vWr}, v{t1}, v{t2}")


K1_SLOT = 36864
K1_GATE = 4 * K1_SLOT
K1_SCR = K1_GATE + 1024
K1_LDS = K1_SCR + 2048


def k1_path(a, kind):
    w1 = kind == 'w1'
    sW, sT0, sT1, sMA, sWB, sRB, sONE = 60, 61, 62, 63, 64, 65, 66
    sK1 = 67
    vL, vHF, vI, vWr0 = 1, 2, 3, 4
    vAe, vAo, vWd = 5, 6, 7
    vAr0 = 8
    vAr = 12
    vWr = 16
    t1, t2, t3 = 17, 18, 19
    vSum, vSq, vG = 20, 21, 22
    vCs = 24
    vAf = 28
    vGf = 36
    vWf = 44
    vAcc = 76
    vTmp = 140
    vCsr = 156
    vK0 = 172
    ntile = 4
    rowstride = 896 if w1 else 2688
    areg = 8192 if w1 else 16384

    SK = "k1" + kind
    stamp(a, SK)
    make_srd(a, SRD_A, P_X, 2048 * 896)
    if w1:
        make_srd(a, SRD_W, P_W1, 448 * 896)
        make_srd(a, SRD_E, P_GATE, 896)
    else:
        make_srd(a, SRD_W, P_WQKV, 448 * 2688)
    make_srd(a, SRD_WS, P_WS, WS_SIZE)
    lane_consts(a, vL, vHF, vI, vWr0, t1, t2, 8)
    a(f"v_lshrrev_b32 v{t1}, 6, v0")
    a("s_nop 0")
    a(f"v_readfirstlane_b32 s{sW}, v{t1}")
    a(f"s_mov_b32 s{sONE}, 0x3f803f80")
    if w1:
        a(f"s_sub_u32 s{sT0}, s2, 192")
        a(f"s_and_b32 s{sRB}, s{sT0}, 31")
        a(f"s_lshr_b32 s{sT1}, s{sT0}, 5")
        a(f"s_lshl_b32 s{sT0}, s{sRB}, 6")
        a(f"s_lshl_b32 s{sMA}, s{sW}, 4")
        a(f"s_add_u32 s{sT0}, s{sT0}, s{sMA}")
        a(f"s_lshl_b32 s{sMA}, s{sW}, 11")
        a(f"s_mul_i32 s{sWB}, s{sW}, {16*896}")
        a(f"s_mul_i32 s{sT1}, s{sT1}, 448")
        a(f"s_add_u32 s{sWB}, s{sWB}, s{sT1}")
    else:
        a(f"s_and_b32 s{sRB}, s2, 15")
        a(f"s_lshr_b32 s{sT1}, s2, 4")
        a(f"s_lshl_b32 s{sT0}, s{sRB}, 7")
        a(f"s_lshl_b32 s{sMA}, s{sW}, 5")
        a(f"s_add_u32 s{sT0}, s{sT0}, s{sMA}")
        a(f"s_lshl_b32 s{sMA}, s{sW}, 12")
        a(f"s_mul_i32 s{sWB}, s{sT1}, 224")
        a(f"s_mul_i32 s{sT1}, s{sW}, 56")
        a(f"s_add_u32 s{sWB}, s{sWB}, s{sT1}")
    a(f"v_lshrrev_b32 v{t1}, 3, v{vL}")
    a(f"v_add_u32 v{t1}, s{sT0}, v{t1}")
    a(f"v_mul_u32_u24 v{t1}, 896, v{t1}")
    a(f"v_and_b32 v{t2}, 7, v{vL}")
    a(f"v_lshrrev_b32 v{t3}, 4, v{vL}")
    a(f"v_xor_b32 v{t2}, v{t2}, v{t3}")
    a(f"v_lshlrev_b32 v{t2}, 4, v{t2}")
    a(f"v_add_u32 v{vAe}, v{t1}, v{t2}")
    a(f"v_xor_b32 v{t2}, 64, v{t2}")
    a(f"v_add_u32 v{t1}, 7168, v{t1}")
    a(f"v_add_u32 v{vAo}, v{t1}, v{t2}")
    a(f"v_lshrrev_b32 v{t1}, 2, v{vL}")
    a(f"v_mul_u32_u24 v{t1}, {rowstride}, v{t1}")
    a(f"v_and_b32 v{t2}, 3, v{vL}")
    a(f"v_lshlrev_b32 v{t2}, 4, v{t2}")
    a(f"v_add_u32 v{vWd}, v{t1}, v{t2}")
    if w1:
        a(f"s_and_b32 s{sT0}, s{sW}, 1")
        a(f"s_lshl_b32 s{sT0}, s{sT0}, 12")
    else:
        a(f"s_lshl_b32 s{sT0}, s{sW}, 12")
    a(f"v_lshlrev_b32 v{t1}, 7, v{vI}")
    a(f"v_add_u32 v{t1}, s{sT0}, v{t1}")
    a(f"v_bfe_u32 v{t2}, v{vI}, 1, 3")
    for s in range(4):
        a(f"v_add_u32 v{t3}, {2*s}, v{vHF}")
        a(f"v_xor_b32 v{t3}, v{t3}, v{t2}")
        a(f"v_lshlrev_b32 v{t3}, 4, v{t3}")
        a(f"v_add_u32 v{vAr0+s}, v{t1}, v{t3}")
    if w1:
        a(f"s_lshr_b32 s{sT0}, s{sW}, 1")
        a(f"s_lshl_b32 s{sT0}, s{sT0}, 14")
        a(f"v_add_u32 v{vWr0}, s{sT0}, v{vWr0}")
        a(f"v_mov_b32 v{vSum}, 0")
        a(f"v_mov_b32 v{vSq}, 0")
        a(f"v_mov_b32 v{vG}, 0")
        for t in range(4):
            a(f"v_mov_b32 v{vCs+t}, 0")
        a(f"v_lshlrev_b32 v{t1}, 4, v{vL}")
        a(f"s_mov_b32 m0, {K1_GATE}")
        a("s_nop 0")
        a(f"buffer_load_dwordx4 v{t1}, {sr(SRD_E,4)}, 0 offen lds")
        a(f"v_lshlrev_b32 v{t2}, 4, v{vHF}")
        a(f"v_add_u32 v{vK0}, {K1_GATE}, v{t2}")

    ndma = 9 if w1 else 8

    def issue(c):
        sl = (c % 4) * K1_SLOT
        if w1:
            for qq in range(2):
                a(f"s_add_u32 m0, s{sMA}, {sl + qq*1024}")
                a(f"s_mov_b32 s{sT0}, {128*c}")
                a(f"buffer_load_dwordx4 v{vAo if qq else vAe}, {sr(SRD_A,4)}, s{sT0} offen lds")
            for t in range(7):
                a(f"s_lshl_b32 s{sT1}, s{sW}, 10")
                a(f"s_add_u32 m0, s{sT1}, {sl + areg + t*4096}")
                a(f"s_add_u32 s{sT0}, s{sWB}, {64*c*896 + 64*t}")
                a(f"buffer_load_dwordx4 v{vWd}, {sr(SRD_W,4)}, s{sT0} offen lds")
        else:
            for qq in range(4):
                a(f"s_add_u32 m0, s{sMA}, {sl + qq*1024}")
                a(f"s_mov_b32 s{sT0}, {128*c + (qq>>1)*14336}")
                a(f"buffer_load_dwordx4 v{vAo if qq&1 else vAe}, {sr(SRD_A,4)}, s{sT0} offen lds")
            for s_ in range(4):
                a(f"s_add_u32 m0, s{sMA}, {sl + areg + s_*1024}")
                a(f"s_add_u32 s{sT0}, s{sWB}, {(64*c+16*s_)*2688}")
                a(f"buffer_load_dwordx4 v{vWd}, {sr(SRD_W,4)}, s{sT0} offen lds")

    for c in range(3):
        issue(c)

    nrd = 10 if w1 else 9
    stamp(a, SK)

    def reads(c, s):
        b = s & 1
        a(f"ds_read_b128 {vr(vAf+4*b,4)}, v{vAr+s}")
        if w1:
            a(f"ds_read_b128 {vr(vGf+4*b,4)}, v{vK0} offset:{32*(4*c+s)}")
        for t in range(ntile):
            o = areg + t * 4096 + s * 1024
            a(f"ds_read_b64_tr_b16 {vr(vWf+16*b+4*t,2)}, v{vWr} offset:{o}")
            a(f"ds_read_b64_tr_b16 {vr(vWf+16*b+4*t+2,2)}, v{vWr} offset:{o+256}")

    for c in range(7):
        ahead = min(c + 2, 6) - c
        a(f"s_waitcnt vmcnt({ahead*ndma})")
        a("s_barrier")
        stamp(a, SK)
        if c + 3 < 7:
            issue(c + 3)
        sl = (c % 4) * K1_SLOT
        for s in range(4):
            a(f"v_add_u32 v{vAr+s}, {sl}, v{vAr0+s}")
        a(f"v_add_u32 v{vWr}, {sl}, v{vWr0}")
        reads(c, 0)
        for s in range(4):
            b = s & 1
            if s < 3:
                reads(c, s + 1)
                a(f"s_waitcnt lgkmcnt({nrd})")
            else:
                a("s_waitcnt lgkmcnt(0)")
            for t in range(ntile):
                C = "0" if (c == 0 and s == 0) else vr(vAcc + 16 * t, 16)
                X, W = vr(vAf + 4 * b, 4), vr(vWf + 16 * b + 4 * t, 4)
                if kind == 'v':
                    a(f"v_mfma_f32_32x32x16_bf16 {vr(vAcc+16*t,16)}, {X}, {W}, {C}")
                else:
                    a(f"v_mfma_f32_32x32x16_bf16 {vr(vAcc+16*t,16)}, {W}, {X}, {C}")
                if w1:
                    for i in range(4):
                        a(f"v_dot2_f32_bf16 v{vCs+t}, v{vWf+16*b+4*t+i}, s{sONE}, v{vCs+t}")
            if w1:
                for i in range(4):
                    x = vAf + 4 * b + i
                    a(f"v_dot2_f32_bf16 v{vSum}, v{x}, s{sONE}, v{vSum}")
                    a(f"v_dot2_f32_bf16 v{vSq}, v{x}, v{x}, v{vSq}")
                    a(f"v_dot2_f32_bf16 v{vG}, v{x}, v{vGf+4*b+i}, v{vG}")
    a("s_nop 15")
    stamp(a, SK)
    if not w1:
        a(f"s_lshr_b32 s{sT1}, s2, 4")
        a(f"s_lshl_b32 s{sT1}, s{sT1}, 19")
        a(f"s_lshl_b32 s{sT0}, s{sRB}, 2")
        a(f"s_add_u32 s{sT0}, s{sT0}, s{sW}")
        a(f"s_lshl_b32 s{sT0}, s{sT0}, 11")
        a(f"s_add_u32 s{sT0}, s{sT0}, s{sT1}")
        a(f"v_lshlrev_b32 v{t1}, 4, v{vL}")
        a(f"v_add_u32 v{t1}, s{sT0}, v{t1}")
        if kind == 'qk':
            a(f"s_cmp_lt_u32 s2, 64")
            a(f"s_cselect_b32 s{sT1}, {f2u(QSCALE)}, 1.0")
            a(f"v_mov_b32 v{t2}, 0x3f803f80")
            a(f"v_mov_b32 v{t3}, 0x00003f80")
            a(f"v_cmp_lt_u32 vcc, 31, v{vL}")
        else:
            a(f"v_mov_b32 v{t2}, 0x3f803f80")
            a(f"v_cmp_eq_u32 vcc, 28, v{vI}")
        for t in range(4):
            A = vAcc + 16 * t
            P = vTmp + 8 * (t & 1)
            if kind == 'qk':
                for r in range(16):
                    a(f"v_mul_f32 v{A+r}, s{sT1}, v{A+r}")
            for r in range(8):
                a(f"v_cvt_pk_bf16_f32 v{P+r}, v{A+2*r}, v{A+2*r+1}")
            if kind == 'qk':
                a(f"v_cndmask_b32 v{P+6}, v{P+6}, v{t2}, vcc")
                a(f"v_cndmask_b32 v{P+7}, v{P+7}, v{t3}, vcc")
            else:
                for r in range(8):
                    a(f"v_cndmask_b32 v{P+r}, v{P+r}, v{t2}, vcc")
            a(f"s_mov_b32 s{sT0}, {t*131072}")
            a(f"buffer_store_dwordx4 {vr(P,4)}, v{t1}, {sr(SRD_WS,4)}, s{sT0} offen")
            a(f"buffer_store_dwordx4 {vr(P+4,4)}, v{t1}, {sr(SRD_WS,4)}, s{sT0} offen offset:1024")
        stamp(a, SK)
        stamp_flush(a, SK, 5)
        a("s_endpgm")
        return
    for v in (vSum, vSq, vG, vCs, vCs + 1, vCs + 2, vCs + 3):
        xhalf_sum(a, v, t1)
    vMean, vRstd = vSum, vSq
    a(f"v_mul_f32 v{vMean}, {f2u(1.0/448)}, v{vSum}")
    a(f"v_mul_f32 v{vSq}, {f2u(1.0/448)}, v{vSq}")
    a(f"v_fma_f32 v{vSq}, -v{vMean}, v{vMean}, v{vSq}")
    a(f"v_add_f32 v{vSq}, {f2u(1e-5)}, v{vSq}")
    a(f"v_rsq_f32 v{vRstd}, v{vSq}")
    a(f"s_lshl_b32 s{sT0}, s{sW}, 9")
    a(f"s_add_u32 s{sT0}, s{sT0}, {K1_SCR}")
    a(f"v_lshlrev_b32 v{t1}, 2, v{vI}")
    a(f"v_add_u32 v{t1}, s{sT0}, v{t1}")
    for t in range(4):
        a(f"ds_write_b32 v{t1}, v{vCs+t} offset:{128*t}")
    a(f"v_lshlrev_b32 v{t2}, 4, v{vHF}")
    a(f"v_add_u32 v{t2}, s{sT0}, v{t2}")
    a(f"v_mul_f32 v{vG}, {f2u(-LOG2E)}, v{vG}")
    a(f"v_exp_f32 v{vG}, v{vG}")
    a("s_nop 0")
    a(f"v_add_f32 v{vG}, 1.0, v{vG}")
    a(f"v_rcp_f32 v{vG}, v{vG}")
    a(f"s_and_b32 s{sT1}, s{sW}, 1")
    a(f"s_lshl_b32 s{sMA}, s{sRB}, 1")
    a(f"s_add_u32 s{sMA}, s{sMA}, s{sT1}")
    a(f"s_cmp_lt_u32 s2, 224")
    a(f"s_cbranch_scc0 K1_nogate")
    a(f"s_cmp_lt_u32 s{sW}, 2")
    a(f"s_cbranch_scc0 K1_nogate")
    a(f"s_lshl_b32 s{sT1}, s{sMA}, 7")
    a(f"s_add_u32 s{sT1}, s{sT1}, {GOFF}")
    a(f"v_lshlrev_b32 v{t3}, 2, v{vI}")
    a(f"buffer_store_dword v{vG}, v{t3}, {sr(SRD_WS,4)}, s{sT1} offen")
    a.label("K1_nogate")
    a(f"s_mul_i32 s{sT1}, s{sMA}, {28*1024}")
    a(f"s_sub_u32 s{sT0}, s2, 192")
    a(f"s_lshr_b32 s{sT0}, s{sT0}, 5")
    a(f"s_mul_i32 s{sT0}, s{sT0}, {14*1024}")
    a(f"s_add_u32 s{sT1}, s{sT1}, s{sT0}")
    a(f"s_lshr_b32 s{sT0}, s{sW}, 1")
    a(f"s_lshl_b32 s{sT0}, s{sT0}, 13")
    a(f"s_add_u32 s{sT1}, s{sT1}, s{sT0}")
    a(f"s_add_u32 s{sT1}, s{sT1}, {HF}")
    a(f"v_lshlrev_b32 v{t1}, 4, v{vL}")
    a(f"v_add_u32 v{t1}, s{sT1}, v{t1}")
    a(f"s_mov_b32 s{sK1}, {f2u(GK1)}")
    a(f"v_mov_b32 v{vK0}, {f2u(GK0)}")
    a("s_waitcnt lgkmcnt(0)")
    for t in range(4):
        if t == 3:
            a(f"s_cmp_lt_u32 s{sW}, 2")
            a(f"s_cbranch_scc0 K1_w1_done")
        A = vAcc + 16 * t
        for q in range(4):
            a(f"ds_read_b128 {vr(vCsr+4*q,4)}, v{t2} offset:{128*t+32*q}")
        a("s_waitcnt lgkmcnt(0)")
        for r in range(16):
            a(f"v_fma_f32 v{A+r}, -v{vMean}, v{vCsr+r}, v{A+r}")
        for r in range(16):
            a(f"v_mul_f32 v{A+r}, v{vRstd}, v{A+r}")
        gelu_block(a, [A + r for r in range(16)], vTmp, vK0, sK1)
        for r in range(8):
            a(f"v_cvt_pk_bf16_f32 v{vTmp+r}, v{A+2*r}, v{A+2*r+1}")
        a(f"buffer_store_dwordx4 {vr(vTmp,4)}, v{t1}, {sr(SRD_WS,4)}, 0 offen offset:{2048*(t&1)}" if t < 2 else
          f"buffer_store_dwordx4 {vr(vTmp,4)}, v{t3}, {sr(SRD_WS,4)}, 0 offen offset:{2048*(t&1)}")
        a(f"buffer_store_dwordx4 {vr(vTmp+4,4)}, v{t1}, {sr(SRD_WS,4)}, 0 offen offset:{2048*(t&1)+1024}" if t < 2 else
          f"buffer_store_dwordx4 {vr(vTmp+4,4)}, v{t3}, {sr(SRD_WS,4)}, 0 offen offset:{2048*(t&1)+1024}")
        if t == 1:
            a(f"v_add_u32 v{t3}, 4096, v{t1}")
        a("s_nop 1")
    a.label("K1_w1_done")
    stamp(a, SK)
    stamp_flush(a, SK, 200)
    a("s_endpgm")


def gen_k1(a):
    kernel_head(a, "k1_kernel")
    a("s_cmp_ge_u32 s2, 256")
    a("s_cbranch_scc1 K1_exit")
    load_ptrs(a)
    a("s_waitcnt lgkmcnt(0)")
    a("s_cmp_lt_u32 s2, 128")
    a("s_cbranch_scc1 K1_qk")
    a("s_cmp_lt_u32 s2, 192")
    a("s_cbranch_scc1 K1_v")
    k1_path(a, 'w1')
    a.label("K1_qk")
    k1_path(a, 'qk')
    a.label("K1_v")
    k1_path(a, 'v')
    a.label("K1_exit")
    a("s_endpgm")


import os
STAMP = os.environ.get("STAMP", "")
_stamp_n = {}
def stamp(a, kern):
    if STAMP != kern: return
    i = _stamp_n.get(kern, 0); _stamp_n[kern] = i + 1
    a(f"s_memtime s[{76+2*i}:{77+2*i}]")
def stamp_flush(a, kern, wg):
    if STAMP != kern: return
    n = _stamp_n.get(kern, 0)
    a("s_waitcnt vmcnt(0) lgkmcnt(0)")
    a(f"s_cmp_eq_u32 s2, {wg}")
    a(f"s_cbranch_scc0 ST_skip_{kern}")
    make_srd(a, SRD_F, P_DBG, 256)
    a("v_cmp_eq_u32 vcc, 0, v0")
    a("s_and_saveexec_b64 s[74:75], vcc")
    a(f"s_cbranch_execz ST_skip_{kern}")
    for i in range(n):
        a(f"s_sub_u32 s{76+2*i+1}, s{76+2*i}, s76")
        a(f"v_mov_b32 v1, s{76+2*i+1}")
        a(f"v_mov_b32 v2, {4*i}")
        a(f"buffer_store_dword v1, v2, s[{SRD_F}:{SRD_F+3}], 0 offen")
    a.label(f"ST_skip_{kern}")

def kd(a, name, vgpr, sgpr=102):
    a.raw(f".amdhsa_kernel {name}")
    a.raw(f"  .amdhsa_next_free_vgpr {vgpr}")
    a.raw(f"  .amdhsa_next_free_sgpr {sgpr}")
    a.raw(f"  .amdhsa_accum_offset {(vgpr+3)//4*4}")
    a.raw("  .amdhsa_group_segment_fixed_size 0")
    a.raw("  .amdhsa_kernarg_size 96")
    a.raw("  .amdhsa_user_sgpr_count 2")
    a.raw("  .amdhsa_user_sgpr_kernarg_segment_ptr 1")
    a.raw("  .amdhsa_system_sgpr_workgroup_id_x 1")
    a.raw(".end_amdhsa_kernel")


HEADER = """; gated_mix__mha_block__mixer_s_mlp__prompt -- generated by dev/gen.py (hand-designed kernels)
; Kernarg: 0 A_x, 8 A_wqkv, 16 A_wo, 24 B_x, 32 B_w1, 40 B_w2, 48 B_w3, 56 B_w4, 64 gate_w, 72 out, 80 debug, 88 ws
"""

if __name__ == "__main__":
    import gen_rest
    gen_rest.main()
```

```python
from gen import *
from gen_tp import *

K1_LDS = 139264
W1_RING = 57344


def qkv_path(a):
    sW, sT0, sT1, sMA, sWB, sRB = 60, 61, 62, 63, 64, 65
    vL, vHF, vI, vWr0 = 1, 2, 3, 4
    vAe, vAo, vWd = 5, 6, 7
    vAr0 = 8
    vAr = 12
    vWr = 16
    t1, t2, t3 = 17, 18, 19
    vAf = 20
    vWf = 28
    vAcc = 60
    vTmp = 124
    SLOT = 32768
    a(f"s_and_b32 s{sRB}, s2, 15")
    a(f"s_cmp_lt_u32 s{sW}, 4")
    a("s_cbranch_scc1 K1_qkv_comp")
    make_srd(a, SRD_A, P_X, 2048 * 896)
    make_srd(a, SRD_W, P_WQKV, 448 * 2688)
    a(f"s_sub_u32 s{sW}, s{sW}, 4")
    a(f"s_lshr_b32 s{sT1}, s2, 4")
    a(f"s_lshl_b32 s{sT0}, s{sRB}, 7")
    a(f"s_lshl_b32 s{sMA}, s{sW}, 5")
    a(f"s_add_u32 s{sT0}, s{sT0}, s{sMA}")
    a(f"s_lshl_b32 s{sMA}, s{sW}, 12")
    a(f"s_mul_i32 s{sWB}, s{sT1}, 224")
    a(f"s_mul_i32 s{sT1}, s{sW}, 56")
    a(f"s_add_u32 s{sWB}, s{sWB}, s{sT1}")
    a(f"v_lshrrev_b32 v{t1}, 3, v{vL}")
    a(f"v_add_u32 v{t1}, s{sT0}, v{t1}")
    a(f"v_mul_u32_u24 v{t1}, 896, v{t1}")
    a(f"v_and_b32 v{t2}, 7, v{vL}")
    a(f"v_lshrrev_b32 v{t3}, 4, v{vL}")
    a(f"v_xor_b32 v{t2}, v{t2}, v{t3}")
    a(f"v_lshlrev_b32 v{t2}, 4, v{t2}")
    a(f"v_add_u32 v{vAe}, v{t1}, v{t2}")
    a(f"v_xor_b32 v{t2}, 64, v{t2}")
    a(f"v_add_u32 v{t1}, 7168, v{t1}")
    a(f"v_add_u32 v{vAo}, v{t1}, v{t2}")
    a(f"v_lshrrev_b32 v{t1}, 2, v{vL}")
    a(f"v_mul_u32_u24 v{t1}, 2688, v{t1}")
    a(f"v_and_b32 v{t2}, 3, v{vL}")
    a(f"v_lshlrev_b32 v{t2}, 4, v{t2}")
    a(f"v_add_u32 v{vWd}, v{t1}, v{t2}")

    def issue(c):
        sl = (c % 4) * SLOT
        for q in range(4):
            a(f"s_add_u32 m0, s{sMA}, {sl + q*1024}")
            a(f"s_mov_b32 s{sT0}, {128*c + (q>>1)*14336}")
            a(f"buffer_load_dwordx4 v{vAo if q&1 else vAe}, {sr(SRD_A,4)}, s{sT0} offen lds")
            a(f"s_add_u32 m0, s{sMA}, {sl + 16384 + q*1024}")
            a(f"s_add_u32 s{sT0}, s{sWB}, {(64*c+16*q)*2688}")
            a(f"buffer_load_dwordx4 v{vWd}, {sr(SRD_W,4)}, s{sT0} offen lds")
    for c in range(3):
        issue(c)
    for c in range(7):
        a(f"s_waitcnt vmcnt({8*(min(c+2,6)-c)})")
        a("s_barrier")
        if c + 3 < 7:
            issue(c + 3)
    a("s_barrier")
    a("s_endpgm")

    a.label("K1_qkv_comp")
    make_srd(a, SRD_WS, P_WS, WS_SIZE)
    if 'k1pf' in os.environ.get('PF',''):
        make_srd(a, SRD_E, P_W1, 448 * 896)
        a(f"s_lshr_b32 s{sT1}, s2, 3")
        a(f"s_lshl_b32 s{sT1}, s{sT1}, 2")
        a(f"s_add_u32 s{sT1}, s{sT1}, s{sW}")
        a(f"v_lshlrev_b32 v{t1}, 4, v{vL}")
        l2_prefetch(a, SRD_E, 448 * 896, sT1, 96, t1, vTmp, sT0)
    a(f"s_lshl_b32 s{sT0}, s{sW}, 12")
    a(f"v_lshlrev_b32 v{t1}, 7, v{vI}")
    a(f"v_add_u32 v{t1}, s{sT0}, v{t1}")
    a(f"v_bfe_u32 v{t2}, v{vI}, 1, 3")
    for s in range(4):
        a(f"v_add_u32 v{t3}, {2*s}, v{vHF}")
        a(f"v_xor_b32 v{t3}, v{t3}, v{t2}")
        a(f"v_lshlrev_b32 v{t3}, 4, v{t3}")
        a(f"v_add_u32 v{vAr0+s}, v{t1}, v{t3}")
    a("s_cmp_lt_u32 s2, 128")
    a("s_cbranch_scc0 K1_v")
    for kind in ('qk', 'v'):
        if kind == 'v':
            a.label("K1_v")
        SK = "k1" + kind
        stamp(a, SK)

        sSl, sCnt = 66, 67

        def setaddr():
            for s in range(4):
                a(f"v_add_u32 v{vAr+s}, s{sSl}, v{vAr0+s}")
            a(f"v_add_u32 v{vWr}, s{sSl}, v{vWr0}")
            a(f"s_add_u32 s{sSl}, s{sSl}, {SLOT}")
            a(f"s_and_b32 s{sSl}, s{sSl}, {4*SLOT-1}")

        def reads(s):
            b = s & 1
            a(f"ds_read_b128 {vr(vAf+4*b,4)}, v{vAr+s}")
            for t in range(4):
                o = 16384 + t * 4096 + s * 1024
                a(f"ds_read_b64_tr_b16 {vr(vWf+16*b+4*t,2)}, v{vWr} offset:{o}")
                a(f"ds_read_b64_tr_b16 {vr(vWf+16*b+4*t+2,2)}, v{vWr} offset:{o+256}")
        a(f"s_mov_b32 s{sSl}, 0")
        a(f"s_mov_b32 s{sCnt}, 0")
        for r in range(64):
            a(f"v_mov_b32 v{vAcc+r}, 0")
        setaddr()
        a("s_barrier")
        stamp(a, SK)
        reads(0)
        a.raw(".p2align 6")
        a.label(f"K1_{kind}_loop")
        for s in range(4):
            b = s & 1
            if s < 3:
                reads(s + 1)
                a("s_waitcnt lgkmcnt(9)")
            else:
                a("s_waitcnt lgkmcnt(0)")
                a("s_barrier")
                setaddr()
                reads(0)
            for t in range(4):
                C = vr(vAcc + 16 * t, 16)
                X, W = vr(vAf + 4 * b, 4), vr(vWf + 16 * b + 4 * t, 4)
                if kind == 'v':
                    a(f"v_mfma_f32_32x32x16_bf16 {vr(vAcc+16*t,16)}, {X}, {W}, {C}")
                else:
                    a(f"v_mfma_f32_32x32x16_bf16 {vr(vAcc+16*t,16)}, {W}, {X}, {C}")
        a(f"s_add_u32 s{sCnt}, s{sCnt}, 1")
        a(f"s_cmp_lt_u32 s{sCnt}, 7")
        a(f"s_cbranch_scc1 K1_{kind}_loop")
        stamp(a, SK)
        a(f"s_lshr_b32 s{sT1}, s2, 4")
        a(f"s_lshl_b32 s{sT1}, s{sT1}, 19")
        a(f"s_lshl_b32 s{sT0}, s{sRB}, 2")
        a(f"s_add_u32 s{sT0}, s{sT0}, s{sW}")
        a(f"s_lshl_b32 s{sT0}, s{sT0}, 11")
        a(f"s_add_u32 s{sT0}, s{sT0}, s{sT1}")
        a(f"v_lshlrev_b32 v{t1}, 4, v{vL}")
        a(f"v_add_u32 v{t1}, s{sT0}, v{t1}")
        if kind == 'qk':
            a(f"s_cmp_lt_u32 s2, 64")
            a(f"s_cselect_b32 s{sT1}, {f2u(QSCALE)}, 1.0")
            a(f"v_mov_b32 v{t2}, 0x3f803f80")
            a(f"v_mov_b32 v{t3}, 0x00003f80")
            a(f"v_cmp_lt_u32 vcc, 31, v{vL}")
        else:
            a(f"v_mov_b32 v{t2}, 0x3f803f80")
            a(f"v_cmp_eq_u32 vcc, 28, v{vI}")
        a("s_nop 4")
        for t in range(4):
            A = vAcc + 16 * t
            P = vTmp + 8 * (t & 1)
            if kind == 'qk':
                for r in range(16):
                    a(f"v_mul_f32 v{A+r}, s{sT1}, v{A+r}")
            for r in range(8):
                a(f"v_cvt_pk_bf16_f32 v{P+r}, v{A+2*r}, v{A+2*r+1}")
            if kind == 'qk':
                a(f"v_cndmask_b32 v{P+6}, v{P+6}, v{t2}, vcc")
                a(f"v_cndmask_b32 v{P+7}, v{P+7}, v{t3}, vcc")
            else:
                for r in range(8):
                    a(f"v_cndmask_b32 v{P+r}, v{P+r}, v{t2}, vcc")
            a(f"s_mov_b32 s{sT0}, {t*131072}")
            a(f"buffer_store_dwordx4 {vr(P,4)}, v{t1}, {sr(SRD_WS,4)}, s{sT0} offen")
            a(f"buffer_store_dwordx4 {vr(P+4,4)}, v{t1}, {sr(SRD_WS,4)}, s{sT0} offen offset:1024")
        stamp(a, SK)
        stamp_flush(a, SK, 5)
        a("s_endpgm")


def w1_path(a):
    sW, sT0, sT1, sMA, sWB, sRB, sHalf, sK1, sST = 60, 61, 62, 63, 64, 65, 66, 67, 68
    vL, vHF, vI, vWr0 = 1, 2, 3, 4
    vWd = 5
    vAr0 = 8
    vAr = 12
    vWr = 16
    t1, t2, t3, t4 = 17, 18, 19, 6
    vSum, vSq, vG = 20, 21, 22
    vXr = 24
    vGr = 52
    vU = 80
    vK0 = 7
    vAf = 24
    vWf = 40
    vTmp = 72
    vP = 88
    vAcc = 96
    SLOT, NS = 16384, 5
    SK = "k1w1"
    stamp(a, SK)
    make_srd(a, SRD_A, P_X, 2048 * 896)
    make_srd(a, SRD_E, P_GATE, 896)
    make_srd(a, SRD_WS, P_WS, WS_SIZE)
    a(f"s_sub_u32 s{sT0}, s2, 192")
    a(f"s_and_b32 s{sRB}, s{sT0}, 31")
    a(f"s_lshr_b32 s{sHalf}, s{sT0}, 5")
    a(f"s_lshl_b32 s{sT0}, s{sRB}, 6")
    a(f"s_lshl_b32 s{sT1}, s{sW}, 3")
    a(f"s_add_u32 s{sT0}, s{sT0}, s{sT1}")
    a(f"v_lshrrev_b32 v{t1}, 3, v{vL}")
    a(f"v_add_u32 v{t2}, s{sT0}, v{t1}")
    a(f"v_mul_u32_u24 v{t3}, 896, v{t2}")
    a(f"v_and_b32 v{t4}, 7, v{vL}")
    a(f"v_lshl_add_u32 v{t3}, v{t4}, 4, v{t3}")
    for j in range(7):
        a(f"buffer_load_dwordx4 {vr(vXr+4*j,4)}, v{t3}, {sr(SRD_A,4)}, 0 offen offset:{128*j}")
    a(f"v_lshlrev_b32 v{t3}, 4, v{t4}")
    for j in range(7):
        a(f"buffer_load_dwordx4 {vr(vGr+4*j,4)}, v{t3}, {sr(SRD_E,4)}, 0 offen offset:{128*j}")
    ptiles = ((0, 1, 4, 5), (2, 3, 6))
    ops = [98] * 14

    def issue(i):
        p, c = divmod(i, 7)
        sl = W1_RING + (i % NS) * SLOT
        for n, t in enumerate(ptiles[p]):
            a(f"s_add_u32 m0, s{sMA}, {sl + n*4096}")
            a(f"s_add_u32 s{sT0}, s{sWB}, {64*c*896 + 64*t}")
            a(f"buffer_load_dwordx4 v{vWd}, {sr(SRD_W,4)}, s{sT0} offen lds")
            ops.append(i)

    a(f"s_cmp_lt_u32 s{sW}, 4")
    a("s_cbranch_scc1 K1_w1_ln")
    make_srd(a, SRD_W, P_W1, 448 * 896)
    a(f"s_sub_u32 s{sT1}, s{sW}, 4")
    a(f"s_lshl_b32 s{sMA}, s{sT1}, 10")
    a(f"s_mul_i32 s{sWB}, s{sT1}, {16*896}")
    a(f"s_mul_i32 s{sT1}, s{sHalf}, 448")
    a(f"s_add_u32 s{sWB}, s{sWB}, s{sT1}")
    a(f"v_lshrrev_b32 v{t3}, 2, v{vL}")
    a(f"v_mul_u32_u24 v{t3}, 896, v{t3}")
    a(f"v_and_b32 v{vWd}, 3, v{vL}")
    a(f"v_lshl_add_u32 v{vWd}, v{vWd}, 4, v{t3}")
    for i in range(3):
        issue(i)
    a("s_waitcnt vmcnt(12)")
    a("s_branch K1_w1_ln2")
    a.label("K1_w1_ln")
    a("s_waitcnt vmcnt(0)")
    a.label("K1_w1_ln2")
    a(f"s_mov_b32 s{sT0}, 0x3f803f80")
    a(f"v_mov_b32 v{vSum}, 0")
    a(f"v_mov_b32 v{vSq}, 0")
    a(f"v_mov_b32 v{vG}, 0")
    for d in range(28):
        a(f"v_dot2_f32_bf16 v{vSum}, v{vXr+d}, s{sT0}, v{vSum}")
        a(f"v_dot2_f32_bf16 v{vSq}, v{vXr+d}, v{vXr+d}, v{vSq}")
        a(f"v_dot2_f32_bf16 v{vG}, v{vXr+d}, v{vGr+d}, v{vG}")
    for d in range(28):
        a(f"v_lshlrev_b32 v{vU+2*d}, 16, v{vXr+d}")
        a(f"v_and_b32 v{vU+2*d+1}, 0xffff0000, v{vXr+d}")
    for v in (vSum, vSq, vG):
        a("s_nop 1")
        a(f"v_add_f32_dpp v{v}, v{v}, v{v} quad_perm:[1,0,3,2] row_mask:0xf bank_mask:0xf")
        a("s_nop 1")
        a(f"v_add_f32_dpp v{v}, v{v}, v{v} quad_perm:[2,3,0,1] row_mask:0xf bank_mask:0xf")
        a("s_nop 1")
        a(f"v_add_f32_dpp v{v}, v{v}, v{v} row_half_mirror row_mask:0xf bank_mask:0xf")
    a(f"v_mul_f32 v{vSum}, {f2u(1.0/448)}, v{vSum}")
    a(f"v_mul_f32 v{vSq}, {f2u(1.0/448)}, v{vSq}")
    a(f"v_fma_f32 v{vSq}, -v{vSum}, v{vSum}, v{vSq}")
    a(f"v_add_f32 v{vSq}, {f2u(1e-5)}, v{vSq}")
    a(f"v_rsq_f32 v{vSq}, v{vSq}")
    a(f"v_mul_f32 v{vG}, {f2u(-LOG2E)}, v{vG}")
    a(f"v_mul_f32 v{vSum}, v{vSum}, v{vSq}")
    a(f"v_exp_f32 v{vG}, v{vG}")
    for e in range(56):
        a(f"v_fma_f32 v{vU+e}, v{vU+e}, v{vSq}, -v{vSum}")
    a(f"v_add_f32 v{vG}, 1.0, v{vG}")
    a(f"v_rcp_f32 v{vG}, v{vG}")
    for d in range(28):
        a(f"v_cvt_pk_bf16_f32 v{vXr+d}, v{vU+2*d}, v{vU+2*d+1}")
    a(f"s_lshl_b32 s{sT0}, s{sW}, 2")
    a(f"v_lshrrev_b32 v{t3}, 4, v{vL}")
    a(f"v_add_u32 v{t3}, s{sT0}, v{t3}")
    a(f"v_and_b32 v{t3}, 7, v{t3}")
    a(f"v_xor_b32 v{t3}, v{t3}, v{t4}")
    a(f"v_lshlrev_b32 v{t3}, 4, v{t3}")
    a(f"s_lshl_b32 s{sT0}, s{sW}, 10")
    a(f"v_lshl_add_u32 v{t3}, v{t1}, 7, v{t3}")
    a(f"v_add_u32 v{t3}, s{sT0}, v{t3}")
    for j in range(7):
        a(f"ds_write_b128 v{t3}, {vr(vXr+4*j,4)} offset:{8192*j}")
    a(f"s_cmp_eq_u32 s{sHalf}, 0")
    a("s_cbranch_scc0 K1_w1_nog2")
    a(f"v_lshlrev_b32 v{t2}, 2, v{t2}")
    a(f"s_mov_b32 s{sT0}, {GOFF}")
    a(f"v_cmp_eq_u32 vcc, 0, v{t4}")
    a("s_and_saveexec_b64 s[58:59], vcc")
    a(f"buffer_store_dword v{vG}, v{t2}, {sr(SRD_WS,4)}, s{sT0} offen")
    a("s_mov_b64 exec, s[58:59]")
    a.label("K1_w1_nog2")
    a("s_waitcnt lgkmcnt(0)")
    stamp(a, SK)
    sG, sWi, sAo2, sWoff, sCnt, sWslot, sWg = 69, 70, 71, 72, 73, 74, 75
    a(f"s_lshr_b32 s{sG}, s{sW}, 2")
    a(f"s_and_b32 s{sWi}, s{sW}, 3")
    a(f"s_and_b32 s{sT0}, s{sWi}, 1")
    a(f"s_lshl_b32 s{sT0}, s{sT0}, 12")
    a(f"v_lshlrev_b32 v{t1}, 7, v{vI}")
    a(f"v_add_u32 v{t1}, s{sT0}, v{t1}")
    a(f"v_bfe_u32 v{t2}, v{vI}, 1, 3")
    for s in range(4):
        a(f"v_add_u32 v{t3}, {2*s}, v{vHF}")
        a(f"v_xor_b32 v{t3}, v{t3}, v{t2}")
        a(f"v_lshlrev_b32 v{t3}, 4, v{t3}")
        a(f"v_add_u32 v{vAr0+s}, v{t1}, v{t3}")
    a(f"s_lshr_b32 s{sT0}, s{sWi}, 1")
    a(f"s_lshl_b32 s{sT0}, s{sT0}, 13")
    a(f"s_add_u32 s{sT0}, s{sT0}, {W1_RING}")
    a(f"v_add_u32 v{vWr0}, s{sT0}, v{vWr0}")
    a(f"s_and_b32 s{sT1}, s{sWi}, 1")
    a(f"s_lshl_b32 s{sST}, s{sRB}, 1")
    a(f"s_add_u32 s{sST}, s{sST}, s{sT1}")
    a(f"s_mul_i32 s{sST}, s{sST}, {28*1024}")
    a(f"s_mul_i32 s{sT0}, s{sHalf}, {14*1024}")
    a(f"s_add_u32 s{sST}, s{sST}, s{sT0}")
    a(f"s_lshr_b32 s{sT0}, s{sWi}, 1")
    a(f"s_lshl_b32 s{sT0}, s{sT0}, 13")
    a(f"s_add_u32 s{sST}, s{sST}, s{sT0}")
    a(f"s_lshl_b32 s{sT0}, s{sG}, 12")
    a(f"s_add_u32 s{sST}, s{sST}, s{sT0}")
    a(f"s_add_u32 s{sST}, s{sST}, {HF}")
    a(f"v_lshlrev_b32 v{t1}, 4, v{vL}")
    a(f"s_mov_b32 s{sK1}, {f2u(GK1)}")
    a(f"v_mov_b32 v{vK0}, {f2u(GK0)}")

    def epi(t):
        A = vAcc + 16 * t
        L = gelu_list([A + r for r in range(16)], vTmp, vK0, sK1)
        for r in range(8):
            L.append(f"v_cvt_pk_bf16_f32 v{vP+r}, v{A+2*r}, v{A+2*r+1}")
        L.append(f"buffer_store_dwordx4 {vr(vP,4)}, v{t1}, {sr(SRD_WS,4)}, s{sST} offen offset:{2048*t}")
        L.append(f"buffer_store_dwordx4 {vr(vP+4,4)}, v{t1}, {sr(SRD_WS,4)}, s{sST} offen offset:{2048*t+1024}")
        L.append("s_nop 1")
        return L

    def setaddr():
        for s in range(4):
            a(f"v_add_u32 v{vAr+s}, s{sAo2}, v{vAr0+s}")
        a(f"v_add_u32 v{vWr}, s{sWoff}, v{vWr0}")
        a(f"s_add_u32 s{sAo2}, s{sAo2}, 8192")
        a(f"s_add_u32 s{sWoff}, s{sWoff}, {SLOT}")
        a(f"s_cmp_lt_u32 s{sWoff}, {NS*SLOT}")
        a(f"s_cselect_b32 s{sWoff}, s{sWoff}, 0")

    def rd_w(b, s, tt):
        o = tt * 4096 + s * 1024
        a(f"ds_read_b64_tr_b16 {vr(vWf+8*b+4*tt,2)}, v{vWr} offset:{o}")
        a(f"ds_read_b64_tr_b16 {vr(vWf+8*b+4*tt+2,2)}, v{vWr} offset:{o+256}")

    def rd_a(b, s):
        a(f"ds_read_b128 {vr(vAf+4*b,4)}, v{vAr+s}")

    a(f"s_mov_b32 s{sAo2}, 0")
    a(f"s_cmp_eq_u32 s{sG}, 0")
    a("s_cbranch_scc0 K1_w1_B")
    a(f"s_mov_b32 s{sWoff}, 0")
    a("s_barrier")
    setaddr()
    pass_loop(a, "K1A", vAf, vWf, vAcc, sCnt, setaddr, rd_a, rd_w, lambda post: None)
    stamp(a, SK)
    emit_with_barriers(a, ["s_nop 10"] + epi(0) + epi(1), 7)
    stamp(a, SK)
    stamp_flush(a, SK, 200)
    a("s_endpgm")
    a.label("K1_w1_B")
    def wait_for(i):
        last = max(k for k, t in enumerate(ops) if t == i)
        a(f"s_waitcnt vmcnt({len(ops)-1-last})")
    for i in range(8):
        wait_for(i)
        a("s_barrier")
        issue(i + 3)
    a(f"s_mov_b32 s{sWoff}, {(7%NS)*SLOT}")
    a(f"s_mov_b32 s{sWslot}, {W1_RING + (11%NS)*SLOT}")
    a(f"s_add_u32 s{sWg}, s{sWB}, {64*4*896}")
    setaddr()

    def atb(post):
        if not post:
            a("s_waitcnt vmcnt(6)")
        else:
            for n, t in enumerate(ptiles[1]):
                a(f"s_add_u32 s{sT1}, s{sMA}, s{sWslot}")
                a(f"s_add_u32 m0, s{sT1}, {n*4096}")
                a(f"s_add_u32 s{sT0}, s{sWg}, {64*t}")
                a(f"buffer_load_dwordx4 v{vWd}, {sr(SRD_W,4)}, s{sT0} offen lds")
            a(f"s_add_u32 s{sWg}, s{sWg}, {64*896}")
            a(f"s_add_u32 s{sWslot}, s{sWslot}, {SLOT}")
            a(f"s_cmp_lt_u32 s{sWslot}, {W1_RING + NS*SLOT}")
            a(f"s_cselect_b32 s{sWslot}, s{sWslot}, {W1_RING}")
    pass_loop(a, "K1B", vAf, vWf, vAcc, sCnt, setaddr, rd_a, rd_w, atb)
    a("s_nop 10")
    for x in epi(0):
        a(x)
    a(f"s_cmp_lt_u32 s{sWi}, 2")
    a("s_cbranch_scc0 K1_w1_done")
    for x in epi(1):
        a(x)
    a.label("K1_w1_done")
    a("s_endpgm")


def gen_k1(a):
    kernel_head(a, "k1_kernel")
    a("s_cmp_ge_u32 s2, 256")
    a("s_cbranch_scc1 K1_exit")
    load_ptrs(a)
    lane_consts(a, 1, 2, 3, 4, 17, 18, 8)
    a(f"v_lshrrev_b32 v17, 6, v0")
    a("s_nop 0")
    a(f"v_readfirstlane_b32 s60, v17")
    a("s_waitcnt lgkmcnt(0)")
    a("s_cmp_lt_u32 s2, 192")
    a("s_cbranch_scc1 K1_qkv")
    w1_path(a)
    a.label("K1_qkv")
    qkv_path(a)
    a.label("K1_exit")
    a("s_endpgm")
```

```python
from gen import *
STATS = 21 * MB
CS3 = 22 * MB
K2_W2 = 65536
K2_LDS = 65536 + 57344


def gen_k2(a):
    kernel_head(a, "k2_kernel")
    a("s_cmp_ge_u32 s2, 256")
    a("s_cbranch_scc1 K2_exit")
    stamp(a, "k2")
    load_ptrs(a)
    sW, sT0, sT1, sG0, sSlot, sStage, sThr, sH, sQB = 60, 61, 62, 63, 65, 66, 67, 68, 69
    sSlotW, sMode, sRB, sCT, sLq, sT2, sLo = 70, 71, 72, 73, 64, 74, 75
    vL, vHF, vI = 1, 2, 3
    vD16, vRd0, vRdV, vRdK = 4, 5, 6, 7
    t1, t2, t3, t4 = 8, 9, 10, 11
    vMa, vMb, vTa, vTb = 12, 13, 14, 15
    vWr0 = 16

    lane_consts(a, vL, vHF, vI, vWr0, t1, t2, 4)
    a(f"v_lshrrev_b32 v{t1}, 6, v0")
    a(f"v_lshlrev_b32 v{vD16}, 4, v{vL}")
    a(f"v_readfirstlane_b32 s{sW}, v{t1}")
    a(f"s_and_b32 s{sH}, s2, 7")
    a(f"s_lshl_b32 s{sH}, s{sH}, 1")
    a(f"s_bfe_u32 s{sT0}, s2, 0x10003")
    a(f"s_add_u32 s{sH}, s{sH}, s{sT0}")
    a(f"s_lshr_b32 s{sQB}, s2, 4")
    a("s_waitcnt lgkmcnt(0)")
    make_srd(a, SRD_WS, P_WS, WS_SIZE)
    a(f"s_cmp_lt_u32 s{sW}, 8")
    a("s_cbranch_scc1 K2_comp")

    vAo = 18
    vX = 22
    vW2 = 32
    vAcc2 = 48
    vA2 = 64
    a(f"s_sub_u32 s{sLq}, s{sW}, 8")
    a(f"s_mov_b32 s{sMode}, 0")
    a(f"s_cmp_ge_u32 s2, 224")
    a(f"s_cselect_b32 s{sMode}, 1, s{sMode}")
    a(f"s_cmp_ge_u32 s2, 252")
    a(f"s_cselect_b32 s{sMode}, 2, s{sMode}")
    a(f"s_lshl_b32 s{sG0}, s{sH}, 17")
    a(f"s_lshl_b32 s{sT0}, s{sLq}, 15")
    a(f"s_add_u32 s{sG0}, s{sG0}, s{sT0}")
    a(f"s_add_u32 s{sG0}, s{sG0}, {KF}")
    a(f"s_lshl_b32 s{sLo}, s{sLq}, 12")

    def issue_stage():
        a(f"s_add_u32 m0, s{sSlotW}, s{sLo}")
        a(f"s_add_u32 s{sT0}, s{sG0}, {2*MB}")
        a(f"buffer_load_dwordx4 v{vD16}, {sr(SRD_WS,4)}, s{sG0} offen lds")
        a(f"buffer_load_dwordx4 v{vD16}, {sr(SRD_WS,4)}, s{sG0} offen offset:1024 lds")
        a(f"s_add_u32 m0, m0, 2048")
        a(f"s_add_u32 s{sG0}, s{sG0}, 2048")
        a(f"buffer_load_dwordx4 v{vD16}, {sr(SRD_WS,4)}, s{sT0} offen lds")
        a(f"buffer_load_dwordx4 v{vD16}, {sr(SRD_WS,4)}, s{sT0} offen offset:1024 lds")
        a(f"s_add_u32 s{sSlotW}, s{sSlotW}, 16384")
        a(f"s_and_b32 s{sSlotW}, s{sSlotW}, 0xffff")

    a(f"s_mov_b32 s{sSlotW}, 0")
    for st in range(3):
        issue_stage()
    a(f"s_cmp_lt_u32 s{sMode}, 2")
    a("s_cbranch_scc1 K2_ldw")
    a("s_waitcnt vmcnt(8)")
    a("s_barrier")
    a(f"s_mov_b32 s{sStage}, 0")
    a.label("K2_ld_loop")
    a("s_waitcnt vmcnt(4)")
    a("s_barrier")
    issue_stage()
    a(f"s_add_u32 s{sStage}, s{sStage}, 1")
    a(f"s_cmp_lt_u32 s{sStage}, 13")
    a("s_cbranch_scc1 K2_ld_loop")
    a.label("K2_ld_tail")
    a("s_waitcnt vmcnt(4)")
    a("s_barrier")
    a("s_waitcnt vmcnt(0)")
    a("s_barrier")
    a("s_barrier")
    a("s_barrier")
    a("s_barrier")
    a("s_endpgm")

    a.label("K2_ldw")
    a(f"s_lshr_b32 s{sCT}, s{sLq}, 1")
    a(f"s_and_b32 s{sT2}, s{sLq}, 1")
    a(f"v_lshrrev_b32 v{t1}, 2, v{vL}")
    a(f"v_and_b32 v{t2}, 3, v{vL}")
    a(f"v_lshlrev_b32 v{t2}, 4, v{t2}")
    a(f"s_mul_i32 s{sT0}, s{sCT}, 28672")
    a(f"s_add_u32 s{sT0}, s{sT0}, {K2_W2}")
    a(f"v_add_u32 v{vWr0}, s{sT0}, v{vWr0}")
    a(f"s_lshl_b32 s{sT1}, s{sT2}, 10")
    a(f"s_add_u32 s{sStage}, s{sT0}, s{sT1}")
    a(f"s_and_b32 s{sRB}, s2, 31")
    a(f"s_lshl_b32 s{sRB}, s{sRB}, 1")
    a(f"s_add_u32 s{sRB}, s{sRB}, s{sT2}")
    make_srd(a, SRD_E, P_X, 2048 * 896)
    sWs, sWo2 = 56, 57
    vWd = 30
    a(f"s_lshl_b32 s{sT0}, s{sRB}, 5")
    a(f"v_add_u32 v{t4}, s{sT0}, v{vI}")
    a(f"s_cmp_eq_u32 s{sMode}, 1")
    a("s_cbranch_scc1 K2_ld_w3")
    make_srd(a, SRD_W, P_W2, 448 * 896)
    make_srd(a, SRD_A, P_WS, HF_SIZE, HF)
    a(f"v_mul_u32_u24 v{t1}, 896, v{t1}")
    a(f"v_add_u32 v{vWd}, v{t1}, v{t2}")
    a(f"s_lshr_b32 s{sWo2}, s2, 5")
    a(f"s_lshl_b32 s{sWo2}, s{sWo2}, 7")
    a(f"s_mov_b32 s{sWs}, {16*896}")
    for g, sh in enumerate((1, -1, 2, -2)):
        a(f"v_subrev_u32 v{t2}, {sh}, v{t4}" if sh > 0 else f"v_add_u32 v{t2}, {-sh}, v{t4}")
        a(f"v_lshrrev_b32 v{t3}, 5, v{t2}")
        a(f"v_mul_u32_u24 v{t3}, 28672, v{t3}")
        a(f"v_and_b32 v{vAo+g}, 31, v{t2}")
        a(f"v_lshl_add_u32 v{vAo+g}, v{vHF}, 5, v{vAo+g}")
        a(f"v_lshl_add_u32 v{vAo+g}, v{vAo+g}, 4, v{t3}")
        a(f"v_cmp_gt_u32 vcc, 2048, v{t2}")
        a(f"v_mov_b32 v{t3}, 0x80000000")
        a("s_nop 0")
        a(f"v_cndmask_b32 v{vAo+g}, v{t3}, v{vAo+g}, vcc")
    a("s_branch K2_ld_w")
    a.label("K2_ld_w3")
    make_srd(a, SRD_W, P_W3, 448 * 3584)
    make_srd(a, SRD_A, P_WS, 65536, VF + 448)
    a(f"v_mul_u32_u24 v{t1}, 3584, v{t1}")
    a(f"v_add_u32 v{vWd}, v{t1}, v{t2}")
    a(f"s_sub_u32 s{sWo2}, s2, 224")
    a(f"s_lshl_b32 s{sWo2}, s{sWo2}, 7")
    a(f"s_mov_b32 s{sWs}, {16*3584}")
    for g in range(4):
        a(f"v_mov_b32 v{vAo+g}, 0")
    a.label("K2_ld_w")
    a(f"s_lshl_b32 s{sT0}, s{sCT}, 6")
    a(f"s_add_u32 s{sWo2}, s{sWo2}, s{sT0}")
    a(f"s_mul_i32 s{sT0}, s{sWs}, s{sT2}")
    a(f"s_add_u32 s{sWo2}, s{sWo2}, s{sT0}")
    a(f"s_lshl_b32 s{sWs}, s{sWs}, 1")
    a(f"v_mul_u32_u24 v{t4}, 896, v{t4}")
    a(f"v_lshl_add_u32 v{t4}, v{vHF}, 3, v{t4}")

    ops = ["st0"] * 4 + ["st1"] * 4 + ["st2"] * 4
    def wait_for(tag):
        last = max(i for i, t in enumerate(ops) if t == tag)
        a(f"s_waitcnt vmcnt({len(ops)-1-last})")
    def w_dma(ts):
        for t in ts:
            a(f"s_add_u32 m0, s{sStage}, {2048*t}")
            a("s_nop 0")
            a(f"buffer_load_dwordx4 v{vWd}, {sr(SRD_W,4)}, s{sWo2} offen lds")
            a(f"s_add_u32 s{sWo2}, s{sWo2}, s{sWs}")
            ops.append("w")
    def a_loads(kss, tag):
        for ks in kss:
            a(f"s_mov_b32 s{sT0}, {1024*ks}")
            a(f"buffer_load_dwordx4 {vr(vA2+4*(ks%14),4)}, v{vAo+ks//7}, {sr(SRD_A,4)}, s{sT0} offen")
            ops.append(tag)
    def x_loads():
        a(f"s_lshr_b32 s{sT0}, s2, 5")
        a(f"s_lshl_b32 s{sT0}, s{sT0}, 7")
        a(f"s_lshl_b32 s{sT1}, s{sCT}, 6")
        a(f"s_add_u32 s{sT0}, s{sT0}, s{sT1}")
        for q in range(4):
            a(f"buffer_load_dwordx2 {vr(vX+2*q,2)}, v{t4}, {sr(SRD_E,4)}, s{sT0} offen offset:{16*q}")
            ops.append("x")
    def kstep_group(kss):
        def rd(ks):
            b = ks & 3
            a(f"ds_read_b64_tr_b16 {vr(vW2+4*b,2)}, v{vWr0} offset:{1024*ks}")
            a(f"ds_read_b64_tr_b16 {vr(vW2+4*b+2,2)}, v{vWr0} offset:{1024*ks+512}")
        for ks in kss:
            rd(ks)
        for n, ks in enumerate(kss):
            a(f"s_waitcnt lgkmcnt({2*(len(kss)-1-n)})")
            C = "0" if ks == 0 else vr(vAcc2, 16)
            a(f"v_mfma_f32_32x32x16_bf16 {vr(vAcc2,16)}, {vr(vW2+4*(ks&3),4)}, {vr(vA2+4*(ks%14),4)}, {C}")

    wait_for("st0")
    a("s_barrier")
    for j in range(13):
        wait_for(f"st{j+1}")
        a("s_barrier")
        issue_stage()
        ops.extend([f"st{j+3}"] * 4)
        if j == 0: w_dma(range(0, 7))
        if j == 1: w_dma(range(7, 14))
        if j == 2: a_loads(range(0, 7), "a0")
        if j == 3: a_loads(range(7, 14), "a0")
        if j == 4: x_loads()
        if j == 5:
            wait_for("a0")
            kstep_group([0, 1, 2, 3]); kstep_group([4, 5, 6])
        if j == 6:
            kstep_group([7, 8, 9, 10]); kstep_group([11, 12, 13])
            a_loads(range(14, 21), "a1")
        if j == 7: a_loads(range(21, 28), "a1")
        if j == 10:
            wait_for("a1")
            kstep_group([14, 15, 16, 17]); kstep_group([18, 19, 20])
        if j == 11:
            kstep_group([21, 22, 23, 24]); kstep_group([25, 26, 27])
    a("s_nop 12")
    a(f"s_cmp_eq_u32 s{sMode}, 1")
    a("s_cbranch_scc1 K2_cs3")
    a(f"v_mov_b32 v{t3}, 0")
    a(f"v_mov_b32 v{t4}, 0")
    for r in range(8):
        x = vX + r
        a(f"v_lshlrev_b32 v{t1}, 16, v{x}")
        a(f"v_and_b32 v{t2}, 0xffff0000, v{x}")
        a(f"v_add_f32 v{vAcc2+2*r}, v{vAcc2+2*r}, v{t1}")
        a(f"v_add_f32 v{vAcc2+2*r+1}, v{vAcc2+2*r+1}, v{t2}")
    for r in range(16):
        a(f"v_add_f32 v{t3}, v{t3}, v{vAcc2+r}")
        a(f"v_fmac_f32 v{t4}, v{vAcc2+r}, v{vAcc2+r}")
    for r in range(8):
        a(f"v_cvt_pk_bf16_f32 v{vW2+r}, v{vAcc2+2*r}, v{vAcc2+2*r+1}")
    a(f"s_lshr_b32 s{sT1}, s2, 5")
    a(f"s_lshl_b32 s{sT1}, s{sT1}, 1")
    a(f"s_add_u32 s{sT1}, s{sT1}, s{sCT}")
    a(f"s_mul_i32 s{sT0}, s{sRB}, {28*1024}")
    a(f"s_lshl_b32 s{sT2}, s{sT1}, 11")
    a(f"s_add_u32 s{sT0}, s{sT0}, s{sT2}")
    a(f"s_add_u32 s{sT0}, s{sT0}, {X1F}")
    a("s_waitcnt vmcnt(4)")
    a("s_barrier")
    a(f"buffer_store_dwordx4 {vr(vW2,4)}, v{vD16}, {sr(SRD_WS,4)}, s{sT0} offen")
    a(f"buffer_store_dwordx4 {vr(vW2+4,4)}, v{vD16}, {sr(SRD_WS,4)}, s{sT0} offen offset:1024")
    xhalf_sum(a, t3, t1)
    xhalf_sum(a, t4, t1)
    a(f"s_lshl_b32 s{sT0}, s{sRB}, 5")
    a(f"v_add_u32 v{t1}, s{sT0}, v{vI}")
    a(f"v_mul_u32_u24 v{t1}, 112, v{t1}")
    a(f"s_lshl_b32 s{sT1}, s{sT1}, 3")
    a(f"s_add_u32 s{sT1}, s{sT1}, {STATS}")
    a(f"buffer_store_dwordx2 v[{t3}:{t4}], v{t1}, {sr(SRD_WS,4)}, s{sT1} offen")
    a("s_waitcnt vmcnt(3)")
    a("s_branch K2_ld_tail2")
    a.label("K2_cs3")
    a(f"s_sub_u32 s{sT1}, s2, 224")
    a(f"s_lshl_b32 s{sT1}, s{sT1}, 1")
    a(f"s_add_u32 s{sT1}, s{sT1}, s{sCT}")
    a(f"s_lshl_b32 s{sT1}, s{sT1}, 7")
    a(f"s_add_u32 s{sT1}, s{sT1}, {CS3}")
    a(f"v_lshlrev_b32 v{t1}, 4, v{vHF}")
    a("s_waitcnt vmcnt(4)")
    a("s_barrier")
    a(f"v_cmp_eq_u32 vcc, 0, v{vI}")
    a(f"s_and_saveexec_b64 s[58:59], vcc")
    for q in range(4):
        a(f"buffer_store_dwordx4 {vr(vAcc2+4*q,4)}, v{t1}, {sr(SRD_WS,4)}, s{sT1} offen offset:{32*q}")
    a("s_mov_b64 exec, s[58:59]")
    a("s_waitcnt vmcnt(4)")
    a.label("K2_ld_tail2")
    a("s_barrier")
    a("s_barrier")
    a("s_barrier")
    a("s_barrier")
    a("s_endpgm")

    vFloor = 17
    vQ = 20
    vP = 36
    vK = 44
    vV = 52
    vO = 60
    vS = 92
    a.label("K2_comp")
    a(f"s_lshl_b32 s{sQB}, s{sQB}, 2")
    a(f"s_and_b32 s{sT0}, s{sW}, 1")
    a(f"s_lshl_b32 s{sT0}, s{sT0}, 1")
    a(f"s_add_u32 s{sQB}, s{sQB}, s{sT0}")
    a(f"s_lshl_b32 s{sT0}, s{sH}, 6")
    a(f"s_add_u32 s{sT0}, s{sT0}, s{sQB}")
    a(f"s_lshl_b32 s{sT0}, s{sT0}, 11")
    for q in range(4):
        a(f"buffer_load_dwordx4 {vr(vQ+4*q,4)}, v{vD16}, {sr(SRD_WS,4)}, s{sT0} offen offset:{1024*q}")
    a(f"s_lshr_b32 s{sT0}, s{sW}, 1")
    a(f"s_lshl_b32 s{sT0}, s{sT0}, 12")
    a(f"v_add_u32 v{vRd0}, s{sT0}, v{vD16}")
    for r in range(32):
        a(f"v_mov_b32 v{vO+r}, 0")
    a(f"v_mov_b32 v{vMa}, 0")
    a(f"v_mov_b32 v{vMb}, 0")
    a(f"v_mov_b32 v{vFloor}, 0xff800000")
    a(f"s_mov_b32 s{sThr}, 0xff800000")
    a(f"s_mov_b32 s{sStage}, 0")
    a(f"s_mov_b32 s{sSlot}, 0")
    a(f"v_cmp_lt_u32 vcc, 31, v{vL}")
    a("s_waitcnt vmcnt(0)")
    for q in (6, 7, 14, 15):
        a(f"v_cndmask_b32 v{vQ+q}, v{vQ+q}, 0, vcc")
    make_srd(a, SRD_W, P_W4, 1792 * 896)
    make_srd(a, SRD_E, P_WO, 448 * 896)
    a(f"s_lshl_b32 s{sT1}, s2, 3")
    a(f"s_add_u32 s{sT1}, s{sT1}, s{sW}")
    l2_prefetch(a, SRD_W, 1792 * 896, sT1, 2048, vD16, 156, sT0)
    l2_prefetch(a, SRD_E, 448 * 896, sT1, 2048, vD16, 156, sT0)
    stamp(a, "k2")
    a("s_barrier")
    a(f"ds_read_b128 {vr(vK,4)}, v{vRd0}")
    a(f"ds_read_b128 {vr(vK+4,4)}, v{vRd0} offset:1024")
    a("s_waitcnt lgkmcnt(0)")
    for b in range(2):
        a(f"v_mfma_f32_32x32x16_bf16 {vr(vS+16*b,16)}, {vr(vK,4)}, {vr(vQ+8*b,4)}, 0")
        a(f"v_mfma_f32_32x32x16_bf16 {vr(vS+16*b,16)}, {vr(vK+4,4)}, {vr(vQ+8*b+4,4)}, {vr(vS+16*b,16)}")
    a("s_nop 7")
    stamp(a, "k2")
    Oa, Ob = vO, vO + 16

    def body(p):
        S, Sn = vS + 32 * p, vS + 32 * (1 - p)
        if STAMP == "k2it":
            a("s_memtime s[76:77]")
            a("s_waitcnt lgkmcnt(0)")
            a(f"s_lshl_b32 s78, s{sStage}, 1")
            a("s_mov_b32 m0, s78"); a("s_nop 0"); a("v_writelane_b32 v158, s76, m0")
        a("s_barrier")
        if STAMP == "k2it":
            a("s_memtime s[76:77]")
            a("s_waitcnt lgkmcnt(0)")
            a(f"s_add_u32 s78, s78, 1")
            a("s_mov_b32 m0, s78"); a("s_nop 0"); a("v_writelane_b32 v158, s76, m0")
        a(f"v_add_u32 v{vRdV}, s{sSlot}, v{vRd0}")
        a(f"s_add_u32 s{sSlot}, s{sSlot}, 16384")
        a(f"s_and_b32 s{sSlot}, s{sSlot}, 0xffff")
        a(f"v_add_u32 v{vRdK}, s{sSlot}, v{vRd0}")
        a(f"ds_read_b128 {vr(vK,4)}, v{vRdK}")
        a(f"ds_read_b128 {vr(vK+4,4)}, v{vRdK} offset:1024")
        a(f"ds_read_b128 {vr(vV,4)}, v{vRdV} offset:2048")
        a(f"ds_read_b128 {vr(vV+4,4)}, v{vRdV} offset:3072")
        a(f"v_max3_f32 v{vTa}, v{S}, v{S+1}, v{S+2}")
        a(f"v_max3_f32 v{t1}, v{S+3}, v{S+4}, v{S+5}")
        for r in range(6, 14, 4):
            a(f"v_max3_f32 v{vTa}, v{vTa}, v{S+r}, v{S+r+1}")
            a(f"v_max3_f32 v{t1}, v{t1}, v{S+r+2}, v{S+r+3}")
        a(f"v_max3_f32 v{vTa}, v{vTa}, v{S+14}, v{S+15}")
        a(f"v_max3_f32 v{vTb}, v{S+16}, v{S+17}, v{S+18}")
        a(f"v_max_f32 v{vTa}, v{vTa}, v{t1}")
        a(f"v_max3_f32 v{t1}, v{S+19}, v{S+20}, v{S+21}")
        for r in range(22, 30, 4):
            a(f"v_max3_f32 v{vTb}, v{vTb}, v{S+r}, v{S+r+1}")
            a(f"v_max3_f32 v{t1}, v{t1}, v{S+r+2}, v{S+r+3}")
        a(f"v_max3_f32 v{vTb}, v{vTb}, v{S+30}, v{S+31}")
        a(f"v_max_f32 v{vTb}, v{vTb}, v{t1}")
        a(f"v_max_f32 v{t1}, v{vTa}, v{vTb}")
        a(f"v_cmp_lt_f32 vcc, s{sThr}, v{t1}")
        a(f"s_cbranch_vccnz A_slow{p}")
        a.label(f"A_ret{p}")
        a("s_waitcnt lgkmcnt(2)")
        a(f"v_mfma_f32_32x32x16_bf16 {vr(Sn,16)}, {vr(vK,4)}, {vr(vQ,4)}, 0")
        for r in range(4):
            a(f"v_exp_f32 v{S+r}, v{S+r}")
        a(f"v_mfma_f32_32x32x16_bf16 {vr(Sn+16,16)}, {vr(vK,4)}, {vr(vQ+8,4)}, 0")
        for r in range(4, 9):
            a(f"v_exp_f32 v{S+r}, v{S+r}")
        for r in range(4):
            a(f"v_cvt_pk_bf16_f32 v{vP+r}, v{S+2*r}, v{S+2*r+1}")
        a(f"v_exp_f32 v{S+9}, v{S+9}")
        a("s_waitcnt lgkmcnt(0)")
        a(f"v_mfma_f32_32x32x16_bf16 {vr(Oa,16)}, {vr(vV,4)}, {vr(vP,4)}, {vr(Oa,16)}")
        for r in range(10, 13):
            a(f"v_exp_f32 v{S+r}, v{S+r}")
        a(f"v_mfma_f32_32x32x16_bf16 {vr(Sn,16)}, {vr(vK+4,4)}, {vr(vQ+4,4)}, {vr(Sn,16)}")
        for r in range(13, 17):
            a(f"v_exp_f32 v{S+r}, v{S+r}")
        for r in range(4, 8):
            a(f"v_cvt_pk_bf16_f32 v{vP+r}, v{S+2*r}, v{S+2*r+1}")
        a(f"v_exp_f32 v{S+17}, v{S+17}")
        a(f"v_exp_f32 v{S+18}, v{S+18}")
        a(f"v_mfma_f32_32x32x16_bf16 {vr(Oa,16)}, {vr(vV+4,4)}, {vr(vP+4,4)}, {vr(Oa,16)}")
        for r in range(19, 22):
            a(f"v_exp_f32 v{S+r}, v{S+r}")
        a(f"v_mfma_f32_32x32x16_bf16 {vr(Sn+16,16)}, {vr(vK+4,4)}, {vr(vQ+12,4)}, {vr(Sn+16,16)}")
        for r in range(22, 25):
            a(f"v_exp_f32 v{S+r}, v{S+r}")
        for r in range(4):
            a(f"v_cvt_pk_bf16_f32 v{vP+r}, v{S+16+2*r}, v{S+16+2*r+1}")
        a(f"v_exp_f32 v{S+25}, v{S+25}")
        a(f"v_exp_f32 v{S+26}, v{S+26}")
        a(f"v_mfma_f32_32x32x16_bf16 {vr(Ob,16)}, {vr(vV,4)}, {vr(vP,4)}, {vr(Ob,16)}")
        for r in range(27, 32):
            a(f"v_exp_f32 v{S+r}, v{S+r}")
        a(f"s_add_u32 s{sStage}, s{sStage}, 1")
        for r in range(4, 8):
            a(f"v_cvt_pk_bf16_f32 v{vP+r}, v{S+16+2*r}, v{S+16+2*r+1}")
        a(f"s_cmp_lt_u32 s{sStage}, 16")
        a("s_nop 0")
        a(f"v_mfma_f32_32x32x16_bf16 {vr(Ob,16)}, {vr(vV+4,4)}, {vr(vP+4,4)}, {vr(Ob,16)}")

    a.raw(".p2align 6")
    a.label("A_loop")
    body(0)
    body(1)
    a("s_cbranch_scc1 A_loop")

    stamp(a, "k2")
    if STAMP == "k2it":
        a("s_cmp_eq_u32 s2, 100")
        a("s_cbranch_scc0 K2_itskip")
        a(f"s_cmp_eq_u32 s{sW}, {os.environ.get('ITW','0')}")
        a("s_cbranch_scc0 K2_itskip")
        make_srd(a, SRD_F, P_DBG, 256)
        a(f"v_lshlrev_b32 v159, 2, v{vL}")
        a(f"buffer_store_dword v158, v159, s[{SRD_F}:{SRD_F+3}], 0 offen")
        a.label("K2_itskip")
    a("s_barrier")
    a(f"s_mul_i32 s{sT0}, s{sW}, 9216")
    a(f"v_add_u32 v{t1}, s{sT0}, v{vD16}")
    a(f"v_lshlrev_b32 v{t2}, 2, v{vL}")
    a(f"v_add_u32 v{t2}, s{sT0}, v{t2}")
    a("s_nop 8")
    for sub in range(2):
        for q in range(4):
            a(f"ds_write_b128 v{t1}, {vr(vO+16*sub+4*q,4)} offset:{4608*sub+1024*q}")
    a(f"ds_write_b32 v{t2}, v{vMa} offset:4096")
    a(f"ds_write_b32 v{t2}, v{vMb} offset:{4608+4096}")
    a("s_waitcnt lgkmcnt(0)")
    a("s_barrier")
    a(f"s_cmp_lt_u32 s{sW}, 4")
    a("s_cbranch_scc0 K2_exit")
    a(f"s_and_b32 s{sT0}, s{sW}, 1")
    a(f"s_mul_i32 s{sT0}, s{sT0}, 9216")
    a(f"s_lshr_b32 s{sT1}, s{sW}, 1")
    a(f"s_mul_i32 s{sT2}, s{sT1}, 4608")
    a(f"s_add_u32 s{sT0}, s{sT0}, s{sT2}")
    a(f"v_add_u32 v{t1}, s{sT0}, v{vD16}")
    a(f"v_lshlrev_b32 v{t2}, 2, v{vL}")
    a(f"v_add_u32 v{t2}, s{sT0}, v{t2}")
    R, MM, PK = 92, 20, 24
    for kq in range(4):
        a(f"ds_read_b32 v{MM+kq}, v{t2} offset:{18432*kq+4096}")
    for kq in range(4):
        for q in range(4):
            a(f"ds_read_b128 {vr(R+16*kq+4*q,4)}, v{t1} offset:{18432*kq+1024*q}")
    a("s_waitcnt lgkmcnt(0)")
    a(f"v_max3_f32 v{t3}, v{MM}, v{MM+1}, v{MM+2}")
    a(f"v_max_f32 v{t3}, v{t3}, v{MM+3}")
    for kq in range(4):
        a(f"v_sub_f32 v{MM+kq}, v{MM+kq}, v{t3}")
    for kq in range(4):
        a(f"v_exp_f32 v{MM+kq}, v{MM+kq}")
    a("s_nop 0")
    for r in range(16):
        a(f"v_mul_f32 v{R+r}, v{R+r}, v{MM}")
    for kq in range(1, 4):
        for r in range(16):
            a(f"v_fmac_f32 v{R+r}, v{R+16*kq+r}, v{MM+kq}")
    a(f"v_mov_b32 v{t2}, v{R+12}")
    a(f"v_mov_b32 v{t3}, v{R+12}")
    a("s_nop 1")
    a(f"v_permlane32_swap_b32 v{t2}, v{t3}")
    a(f"v_rcp_f32 v{t3}, v{t3}")
    a(f"v_cmp_lt_u32 vcc, 31, v{vL}")
    for r in range(16):
        a(f"v_mul_f32 v{R+r}, v{R+r}, v{t3}")
    for r in range(8):
        a(f"v_cvt_pk_bf16_f32 v{PK+r}, v{R+2*r}, v{R+2*r+1}")
    a(f"v_cndmask_b32 v{PK+6}, v{PK+6}, 0, vcc")
    a(f"v_cndmask_b32 v{PK+7}, v{PK+7}, 0, vcc")
    a(f"s_add_u32 s{sT0}, s{sQB}, s{sT1}")
    a(f"s_lshl_b32 s{sT0}, s{sT0}, 4")
    a(f"s_add_u32 s{sT0}, s{sT0}, s{sH}")
    a(f"s_lshl_b32 s{sT0}, s{sT0}, 11")
    a(f"s_add_u32 s{sT0}, s{sT0}, {OF}")
    a(f"buffer_store_dwordx4 {vr(PK,4)}, v{vD16}, {sr(SRD_WS,4)}, s{sT0} offen")
    a(f"buffer_store_dwordx4 {vr(PK+4,4)}, v{vD16}, {sr(SRD_WS,4)}, s{sT0} offen offset:1024")
    stamp(a, "k2")
    stamp_flush(a, "k2", 100)
    a("s_endpgm")

    for p in range(2):
        S = vS + 32 * p
        a.label(f"A_slow{p}")
        a(f"v_cmp_lt_u32 vcc, 31, v{vL}")
        for sub, (vT, vM) in enumerate(((vTa, vMa), (vTb, vMb))):
            a(f"v_mov_b32 v{t1}, v{vT}")
            a("s_nop 1")
            a(f"v_permlane32_swap_b32 v{vT}, v{t1}")
            a("s_nop 1")
            a(f"v_max3_f32 v{vT}, v{vT}, v{t1}, v{vFloor}")
            a(f"v_add_f32 v{vM}, v{vM}, v{vT}")
            a(f"v_max_f32 v{t1}, 0, v{vT}")
            a(f"v_exp_f32 v{t1}, -v{t1}")
            for r in range(16):
                a(f"v_sub_f32 v{S+16*sub+r}, v{S+16*sub+r}, v{vT}")
            for r in range(16):
                a(f"v_mul_f32 v{vO+16*sub+r}, v{vO+16*sub+r}, v{t1}")
            a(f"v_sub_f32 v{t1}, 0, v{vM}")
            a(f"v_cvt_pk_bf16_f32 v{t2}, v{t1}, v{t1}")
            a(f"v_and_b32 v{t2}, 0xffff0000, v{t2}")
            a(f"v_sub_f32 v{t1}, v{t1}, v{t2}")
            a(f"v_cvt_pk_bf16_f32 v{t3}, v{t1}, v{t1}")
            a(f"v_and_b32 v{t3}, 0xffff0000, v{t3}")
            a(f"v_sub_f32 v{t1}, v{t1}, v{t3}")
            a(f"v_cvt_pk_bf16_f32 v{t2}, v{t2}, v{t3}")
            a(f"v_cvt_pk_bf16_f32 v{t3}, v{t1}, 0")
            a(f"v_cndmask_b32 v{vQ+8*sub+6}, v{vQ+8*sub+6}, v{t2}, vcc")
            a(f"v_cndmask_b32 v{vQ+8*sub+7}, v{vQ+8*sub+7}, v{t3}, vcc")
        a(f"v_mov_b32 v{vFloor}, 0")
        a(f"s_mov_b32 s{sThr}, 0x42000000")
        a(f"s_branch A_ret{p}")
    a.label("K2_exit")
    a("s_endpgm")
```

```python
from gen import *
from gen_tp import *
from gen_k2 import STATS, CS3

K3_RING = 114688
K3_CS = K3_RING + 5 * 8192
K3_LDS = K3_CS + 1024


def gen_k3(a):
    kernel_head(a, "k3_kernel")
    a("s_cmp_ge_u32 s2, 224")
    a("s_cbranch_scc1 K3_exit")
    stamp(a, "k3")
    load_ptrs(a)
    sW, sT0, sT1, sRB, sCB, sWB, sMA, sK1, sST = 60, 61, 62, 63, 64, 65, 66, 68, 69
    sAoff, sWoff, sCnt, sWslot, sWg, sG = 70, 71, 72, 73, 74, 75
    vL, vHF, vI, vWr0 = 1, 2, 3, 4
    vWd, vD16, vWr, vAr0, vAr = 5, 6, 7, 11, 17
    t1, t2, t3 = 8, 9, 10
    vMean, vK0, vRstd, vCsA = 12, 13, 14, 15
    vAf = 20
    vWf = 36
    vAcc = 68
    vTmp = 100
    vP = 116
    vCs = 124
    vSt = 140
    lane_consts(a, vL, vHF, vI, vWr0, t1, t2, 4)
    a(f"v_lshrrev_b32 v{t1}, 6, v0")
    a(f"v_lshlrev_b32 v{vD16}, 4, v{vL}")
    a(f"v_readfirstlane_b32 s{sW}, v{t1}")
    a("s_waitcnt lgkmcnt(0)")
    make_srd(a, SRD_WS, P_WS, WS_SIZE)
    a(f"s_and_b32 s{sRB}, s2, 15")
    a(f"s_lshr_b32 s{sCB}, s2, 4")
    a(f"s_lshr_b32 s{sG}, s{sW}, 2")
    a(f"s_and_b32 s{sW}, s{sW}, 3")
    a(f"s_lshl_b32 s{sRB}, s{sRB}, 2")
    a(f"s_add_u32 s{sRB}, s{sRB}, s{sW}")
    a(f"s_cmp_eq_u32 s{sG}, 0")
    a("s_cbranch_scc1 K3_common")
    make_srd(a, SRD_W, P_W3, 448 * 3584)
    a(f"s_lshl_b32 s{sWB}, s{sCB}, 8")
    a(f"s_mul_i32 s{sT0}, s{sW}, {16*3584}")
    a(f"s_add_u32 s{sWB}, s{sWB}, s{sT0}")
    a(f"s_lshl_b32 s{sMA}, s{sW}, 10")
    a(f"s_add_u32 s{sMA}, s{sMA}, {K3_RING}")
    a(f"v_lshrrev_b32 v{t1}, 2, v{vL}")
    a(f"v_mul_u32_u24 v{t1}, 3584, v{t1}")
    a(f"v_and_b32 v{t2}, 3, v{vL}")
    a(f"v_lshlrev_b32 v{t2}, 4, v{t2}")
    a(f"v_add_u32 v{vWd}, v{t1}, v{t2}")
    a(f"s_mul_i32 s{sT1}, s{sRB}, {28*1024}")
    a(f"s_add_u32 s{sT1}, s{sT1}, {X1F}")
    a(f"s_mul_i32 s{sAoff}, s{sW}, 28672")
    ops = []

    def issue(i):
        p, c = divmod(i, 7)
        if p == 0:
            a(f"s_add_u32 m0, s{sAoff}, {4096*c}")
            a(f"s_add_u32 s{sT0}, s{sT1}, {4096*c}")
            for s in range(4):
                a(f"buffer_load_dwordx4 v{vD16}, {sr(SRD_WS,4)}, s{sT0} offen offset:{1024*s} lds")
                ops.append(i)
        for tt in range(2):
            t = 2 * p + tt
            a(f"s_add_u32 m0, s{sMA}, {(i%5)*8192 + tt*4096}")
            a(f"s_add_u32 s{sT0}, s{sWB}, {64*c*3584 + 64*t}")
            a(f"buffer_load_dwordx4 v{vWd}, {sr(SRD_W,4)}, s{sT0} offen lds")
            ops.append(i)
    for i in range(3):
        issue(i)
    a(f"s_lshl_b32 s{sT0}, s{sCB}, 9")
    a(f"s_add_u32 s{sT0}, s{sT0}, {CS3}")
    a(f"s_mov_b32 m0, {K3_CS}")
    a("s_nop 0")
    a(f"buffer_load_dwordx4 v{vD16}, {sr(SRD_WS,4)}, s{sT0} offen lds")
    ops.append(99)
    a.label("K3_common")
    a(f"s_lshl_b32 s{sT0}, s{sRB}, 5")
    a(f"v_add_u32 v{t1}, s{sT0}, v{vI}")
    a(f"v_mul_u32_u24 v{t1}, 112, v{t1}")
    a(f"s_mov_b32 s{sT0}, {STATS}")
    for q in range(7):
        a(f"buffer_load_dwordx4 {vr(vSt+4*q,4)}, v{t1}, {sr(SRD_WS,4)}, s{sT0} offen offset:{16*q}")
        ops.append(99)
    a(f"v_lshlrev_b32 v{vCsA}, 4, v{vHF}")
    a(f"s_lshl_b32 s{sT0}, s{sG}, 8")
    a(f"s_add_u32 s{sT0}, s{sT0}, {K3_CS}")
    a(f"v_add_u32 v{vCsA}, s{sT0}, v{vCsA}")
    a(f"s_mul_i32 s{sST}, s{sRB}, {112*1024}")
    a(f"s_lshl_b32 s{sT0}, s{sCB}, 13")
    a(f"s_add_u32 s{sST}, s{sST}, s{sT0}")
    a(f"s_lshl_b32 s{sT0}, s{sG}, 12")
    a(f"s_add_u32 s{sST}, s{sST}, s{sT0}")
    a(f"s_add_u32 s{sST}, s{sST}, {H2F}")
    a(f"s_mov_b32 s{sK1}, {f2u(GK1)}")
    a(f"v_mov_b32 v{vK0}, {f2u(GK0)}")
    a(f"s_mul_i32 s{sT0}, s{sW}, 28672")
    a(f"v_add_u32 v{vAr0}, s{sT0}, v{vD16}")
    a(f"v_add_u32 v{vWr0}, {K3_RING}, v{vWr0}")

    sAo2 = 76 if not STAMP else 100
    def setaddr():
        a(f"v_add_u32 v{vAr}, s{sAo2}, v{vAr0}")
        a(f"v_add_u32 v{vWr}, s{sWoff}, v{vWr0}")
        a(f"s_add_u32 s{sAo2}, s{sAo2}, 4096")
        a(f"s_add_u32 s{sWoff}, s{sWoff}, 8192")
        a(f"s_cmp_lt_u32 s{sWoff}, {5*8192}")
        a(f"s_cselect_b32 s{sWoff}, s{sWoff}, 0")

    def rd_a(b, s):
        a(f"ds_read_b128 {vr(vAf+4*b,4)}, v{vAr} offset:{1024*s}")

    def rd_w(b, s, tt):
        o = tt * 4096 + s * 1024
        a(f"ds_read_b64_tr_b16 {vr(vWf+8*b+4*tt,2)}, v{vWr} offset:{o}")
        a(f"ds_read_b64_tr_b16 {vr(vWf+8*b+4*tt+2,2)}, v{vWr} offset:{o+512}")

    def epilogue():
        L = ["s_waitcnt vmcnt(0)"]
        for q in range(1, 14):
            L.append(f"v_add_f32 v{vSt}, v{vSt}, v{vSt+2*q}")
            L.append(f"v_add_f32 v{vSt+1}, v{vSt+1}, v{vSt+2*q+1}")
        L.append(f"v_mul_f32 v{vMean}, {f2u(1.0/448)}, v{vSt}")
        L.append(f"v_mul_f32 v{vRstd}, {f2u(1.0/448)}, v{vSt+1}")
        L.append(f"v_fma_f32 v{vRstd}, -v{vMean}, v{vMean}, v{vRstd}")
        L.append(f"v_add_f32 v{vRstd}, {f2u(1e-5)}, v{vRstd}")
        L.append(f"v_rsq_f32 v{vRstd}, v{vRstd}")
        for t in range(2):
            A = vAcc + 16 * t
            L += [f"ds_read_b128 {vr(vCs+4*q,4)}, v{vCsA} offset:{128*t+32*q}" for q in range(4)]
            L.append("s_waitcnt lgkmcnt(0)")
            for r in range(16):
                L.append(f"v_fma_f32 v{A+r}, -v{vMean}, v{vCs+r}, v{A+r}")
            for r in range(16):
                L.append(f"v_mul_f32 v{A+r}, v{vRstd}, v{A+r}")
            L += gelu_list([A + r for r in range(16)], vTmp, vK0, sK1)
            for r in range(8):
                L.append(f"v_cvt_pk_bf16_f32 v{vP+r}, v{A+2*r}, v{A+2*r+1}")
            L.append(f"buffer_store_dwordx4 {vr(vP,4)}, v{vD16}, {sr(SRD_WS,4)}, s{sST} offen offset:{2048*t} sc1")
            L.append(f"buffer_store_dwordx4 {vr(vP+4,4)}, v{vD16}, {sr(SRD_WS,4)}, s{sST} offen offset:{2048*t+1024} sc1")
            L.append("s_nop 1")
        return L

    a(f"s_mov_b32 s{sAo2}, 0")
    a(f"s_cmp_eq_u32 s{sG}, 0")
    a("s_cbranch_scc0 K3_B")
    if 'k3pf' in os.environ.get('PF',''):
        make_srd(a, SRD_W, P_W3, 448 * 3584)
        a(f"s_lshr_b32 s{sT1}, s2, 3")
        a(f"s_lshl_b32 s{sT1}, s{sT1}, 2")
        a(f"s_add_u32 s{sT1}, s{sT1}, s{sW}")
        l2_prefetch(a, SRD_W, 448 * 3584, sT1, 112, vD16, vTmp, sT0)
    a(f"s_mov_b32 s{sWoff}, 0")
    stamp(a, "k3")
    a("s_barrier")
    stamp(a, "k3")
    setaddr()
    pass_loop(a, "K3A", vAf, vWf, vAcc, sCnt, setaddr, rd_a, rd_w, lambda post: None)
    stamp(a, "k3")
    emit_with_barriers(a, epilogue(), 7)
    stamp(a, "k3")
    a("s_branch K34_publish")
    a.label("K3_B")
    def wait_for(i):
        last = max(k for k, t in enumerate(ops) if t == i)
        a(f"s_waitcnt vmcnt({len(ops)-1-last})")
    for i in range(8):
        wait_for(i)
        a("s_barrier")
        issue(i + 3)
    a(f"s_mov_b32 s{sWoff}, {(7%5)*8192}")
    a(f"s_mov_b32 s{sWslot}, {(11%5)*8192}")
    a(f"s_add_u32 s{sWg}, s{sWB}, {64*4*3584 + 128}")
    setaddr()

    def atb(post):
        if not post:
            a("s_waitcnt vmcnt(4)")
        else:
            a(f"s_add_u32 m0, s{sMA}, s{sWslot}")
            a(f"s_add_u32 s{sT0}, s{sWg}, 64")
            a(f"buffer_load_dwordx4 v{vWd}, {sr(SRD_W,4)}, s{sWg} offen lds")
            a(f"s_add_u32 m0, m0, 4096")
            a(f"s_add_u32 s{sWg}, s{sWg}, {64*3584}")
            a(f"buffer_load_dwordx4 v{vWd}, {sr(SRD_W,4)}, s{sT0} offen lds")
            a(f"s_add_u32 s{sWslot}, s{sWslot}, 8192")
            a(f"s_cmp_lt_u32 s{sWslot}, {5*8192}")
            a(f"s_cselect_b32 s{sWslot}, s{sWslot}, 0")
    pass_loop(a, "K3B", vAf, vWf, vAcc, sCnt, setaddr, rd_a, rd_w, atb)
    a("s_nop 10")
    for x in epilogue():
        a(x)
    a.label("K34_publish")
    import gen_k4
    gen_k4.phase2(a, sG, sW)
    a.label("K3_exit")
    a("s_endpgm")
```

```python
from gen import *

K4_LDS = 4 * 32768


def phase2(a, sGin, sWin):
    sW, sT0, sT1, sRB, sCB = 60, 61, 62, 63, 64
    sAg, sWg, sSlotW, sSlotR, sC, sMA, sMW = 65, 66, 67, 68, 69, 70, 71
    sAo, sWo, sG = 72, 73, 75
    vL, vHF, vI, vWr0 = 1, 2, 3, 4
    vWd, vD16, vWr, vAr0, vAr = 5, 6, 7, 8, 9
    t1, t2, t3 = 10, 11, 12
    vG = 13
    vX1 = 16
    vAf = 24
    vWf = 56
    vAccB = 88
    vAccA = 104
    vP = 120
    assert sGin == sG and sWin == sW
    a("s_waitcnt vmcnt(0)")
    a("s_barrier")
    make_srd(a, SRD_F, P_DBG, 256)
    a(f"s_and_b32 s{sT1}, s2, 15")
    a(f"s_lshl_b32 s{sT1}, s{sT1}, 2")
    a(f"v_cmp_eq_u32 vcc, 0, v0")
    a(f"s_and_saveexec_b64 s[52:53], vcc")
    a("s_cbranch_execz K4_nopub")
    a(f"v_mov_b32 v{t1}, 1")
    a(f"v_mov_b32 v{t2}, 0")
    a(f"buffer_atomic_add v{t1}, v{t2}, {sr(SRD_F,4)}, s{sT1} offen sc1")
    a.label("K4_nopub")
    a("s_mov_b64 exec, s[52:53]")
    lane_consts(a, vL, vHF, vI, vWr0, t1, t2, 4)
    a(f"s_and_b32 s{sRB}, s2, 15")
    a(f"s_lshl_b32 s{sRB}, s{sRB}, 1")
    a(f"s_bfe_u32 s{sT0}, s2, 0x10004")
    a(f"s_add_u32 s{sRB}, s{sRB}, s{sT0}")
    a(f"s_lshr_b32 s{sCB}, s2, 5")
    a(f"s_cmp_eq_u32 s{sG}, 0")
    a("s_cbranch_scc1 K4_comp")
    make_srd(a, SRD_W, P_W4, 1792 * 896)
    make_srd(a, SRD_E, P_WO, 448 * 896)
    a(f"s_mov_b32 s{sC}, s{sT1}")
    a(f"s_and_b32 s{sT0}, s{sW}, 1")
    a(f"s_lshr_b32 s{sT1}, s{sW}, 1")
    a(f"s_lshl_b32 s{sMA}, s{sT0}, 13")
    a(f"s_lshl_b32 s{sMW}, s{sT1}, 12")
    a(f"s_add_u32 s{sMA}, s{sMA}, s{sMW}")
    a(f"s_add_u32 s{sMW}, s{sMA}, 16384")
    a(f"s_lshl_b32 s{sAg}, s{sRB}, 1")
    a(f"s_add_u32 s{sAg}, s{sAg}, s{sT0}")
    a(f"s_lshl_b32 s{sAo}, s{sAg}, 15")
    a(f"s_mul_i32 s{sAg}, s{sAg}, {112*1024}")
    a(f"s_lshl_b32 s{sWg}, s{sT1}, 12")
    a(f"s_add_u32 s{sAg}, s{sAg}, s{sWg}")
    a(f"s_add_u32 s{sAo}, s{sAo}, s{sWg}")
    a(f"s_add_u32 s{sAg}, s{sAg}, {H2F}")
    a(f"s_add_u32 s{sAo}, s{sAo}, {OF}")
    a(f"s_lshl_b32 s{sWg}, s{sCB}, 1")
    a(f"s_add_u32 s{sWg}, s{sWg}, s{sT0}")
    a(f"s_lshl_b32 s{sWg}, s{sWg}, 6")
    a(f"s_mul_i32 s{sWo}, s{sT1}, {56*896}")
    a(f"s_add_u32 s{sWo}, s{sWo}, s{sWg}")
    a(f"s_mul_i32 s{sT1}, s{sT1}, {64*896}")
    a(f"s_add_u32 s{sWg}, s{sWg}, s{sT1}")
    a(f"v_lshrrev_b32 v{t1}, 2, v{vL}")
    a(f"v_mul_u32_u24 v{t1}, 896, v{t1}")
    a(f"v_and_b32 v{t2}, 3, v{vL}")
    a(f"v_lshlrev_b32 v{t2}, 4, v{t2}")
    a(f"v_add_u32 v{vWd}, v{t1}, v{t2}")

    def issue(kind):
        sA, sWW, srd = (sAg, sWg, SRD_W) if kind == 'w4' else (sAo, sWo, SRD_E)
        sc = " sc1" if kind == 'w4' else ""
        a(f"s_add_u32 s{sT1}, s{sMW}, s{sSlotW}")
        for j in range(4):
            a(f"s_add_u32 m0, s{sT1}, {1024*j}")
            ro = 16 * j if kind == 'w4' else 28 * (j >> 1) + 16 * (j & 1)
            a(f"s_add_u32 s{sT0}, s{sWW}, {ro*896}")
            a(f"buffer_load_dwordx4 v{vWd}, {sr(srd,4)}, s{sT0} offen lds")
        a(f"s_add_u32 m0, s{sMA}, s{sSlotW}")
        a("s_nop 0")
        for j in range(4):
            a(f"buffer_load_dwordx4 v{vD16}, {sr(SRD_WS,4)}, s{sA} offen offset:{1024*j}{sc} lds")
        a(f"s_add_u32 s{sA}, s{sA}, 8192")
        a(f"s_add_u32 s{sWW}, s{sWW}, {(128 if kind == 'w4' else 112)*896}")
        a(f"s_add_u32 s{sSlotW}, s{sSlotW}, 32768")
        a(f"s_and_b32 s{sSlotW}, s{sSlotW}, 0x1ffff")

    a(f"s_mov_b32 s{sSlotW}, 0")
    for c in range(3):
        issue('wo')
    a("s_waitcnt vmcnt(16)")
    a("s_barrier")
    issue('wo')
    a(f"v_mov_b32 v{t2}, 0")
    a(f"s_mov_b32 s{sT1}, 0")
    a.label("K4_poll")
    a(f"buffer_load_dword v{t1}, v{t2}, {sr(SRD_F,4)}, s{sC} offen sc1")
    a("s_waitcnt vmcnt(0)")
    a(f"v_readfirstlane_b32 s{sT0}, v{t1}")
    a(f"s_add_u32 s{sT1}, s{sT1}, 1")
    a(f"s_cmp_ge_u32 s{sT0}, 14")
    a("s_cbranch_scc1 K4_ready")
    a("s_sleep 2")
    a(f"s_cmp_lt_u32 s{sT1}, 0x100000")
    a("s_cbranch_scc1 K4_poll")
    a.label("K4_ready")
    a("s_barrier")
    issue('w4')
    a("s_barrier")
    issue('w4')
    a("s_barrier")
    issue('w4')
    a(f"s_mov_b32 s{sC}, 4")
    a.label("K4_ld1")
    a("s_waitcnt vmcnt(16)")
    a("s_barrier")
    issue('w4')
    a(f"s_add_u32 s{sC}, s{sC}, 1")
    a(f"s_cmp_lt_u32 s{sC}, 15")
    a("s_cbranch_scc1 K4_ld1")
    for n in (16, 8, 0):
        a(f"s_waitcnt vmcnt({n})")
        a("s_barrier")
    a("s_endpgm")

    a.label("K4_comp")
    make_srd(a, SRD_F, P_OUT, 2048 * 896)
    a(f"s_lshl_b32 s{sT0}, s{sRB}, 1")
    a(f"s_and_b32 s{sT1}, s{sW}, 1")
    a(f"s_add_u32 s{sT0}, s{sT0}, s{sT1}")
    a(f"s_lshl_b32 s{sT1}, s{sT0}, 7")
    a(f"s_add_u32 s{sT1}, s{sT1}, {GOFF}")
    a(f"v_lshlrev_b32 v{t1}, 2, v{vI}")
    a(f"buffer_load_dword v{vG}, v{t1}, {sr(SRD_WS,4)}, s{sT1} offen")
    a(f"s_mul_i32 s{sT0}, s{sT0}, {28*1024}")
    a(f"s_lshl_b32 s{sT1}, s{sCB}, 12")
    a(f"s_add_u32 s{sT0}, s{sT0}, s{sT1}")
    a(f"s_lshr_b32 s{sT1}, s{sW}, 1")
    a(f"s_lshl_b32 s{sT1}, s{sT1}, 11")
    a(f"s_add_u32 s{sT0}, s{sT0}, s{sT1}")
    a(f"s_add_u32 s{sT0}, s{sT0}, {X1F}")
    a(f"buffer_load_dwordx4 {vr(vX1,4)}, v{vD16}, {sr(SRD_WS,4)}, s{sT0} offen")
    a(f"buffer_load_dwordx4 {vr(vX1+4,4)}, v{vD16}, {sr(SRD_WS,4)}, s{sT0} offen offset:1024")
    a(f"s_and_b32 s{sT0}, s{sW}, 1")
    a(f"s_lshl_b32 s{sT0}, s{sT0}, 13")
    a(f"v_add_u32 v{vAr0}, s{sT0}, v{vD16}")
    a(f"s_lshr_b32 s{sT0}, s{sW}, 1")
    a(f"s_lshl_b32 s{sT0}, s{sT0}, 13")
    a(f"s_add_u32 s{sT0}, s{sT0}, 16384")
    a(f"v_add_u32 v{vWr0}, s{sT0}, v{vWr0}")

    def compute(acc):
        a(f"v_add_u32 v{vAr}, s{sSlotR}, v{vAr0}")
        a(f"v_add_u32 v{vWr}, s{sSlotR}, v{vWr0}")
        for s in range(8):
            a(f"ds_read_b128 {vr(vAf+4*s,4)}, v{vAr} offset:{1024*s}")
            a(f"ds_read_b64_tr_b16 {vr(vWf+4*s,2)}, v{vWr} offset:{1024*s}")
            a(f"ds_read_b64_tr_b16 {vr(vWf+4*s+2,2)}, v{vWr} offset:{1024*s+512}")
            if s >= 3:
                a(f"s_waitcnt lgkmcnt(9)")
                q = s - 3
                a(f"v_mfma_f32_32x32x16_bf16 {vr(acc,16)}, {vr(vWf+4*q,4)}, {vr(vAf+4*q,4)}, {vr(acc,16)}")
        for q in range(5, 8):
            a(f"s_waitcnt lgkmcnt({3*(7-q)})")
            a(f"v_mfma_f32_32x32x16_bf16 {vr(acc,16)}, {vr(vWf+4*q,4)}, {vr(vAf+4*q,4)}, {vr(acc,16)}")
        a(f"s_add_u32 s{sSlotR}, s{sSlotR}, 32768")
        a(f"s_and_b32 s{sSlotR}, s{sSlotR}, 0x1ffff")

    a(f"s_mov_b32 s{sSlotR}, 0")
    for r in range(16):
        a(f"v_mov_b32 v{vAccB+r}, 0")
        a(f"v_mov_b32 v{vAccA+r}, 0")
    a(f"s_mov_b32 s{sC}, 0")
    stamp(a, "k3")
    a.label("K4_c2")
    a("s_barrier")
    compute(vAccA)
    a(f"s_add_u32 s{sC}, s{sC}, 1")
    a(f"s_cmp_lt_u32 s{sC}, 4")
    a("s_cbranch_scc1 K4_c2")
    stamp(a, "k3")
    a.label("K4_c1")
    a("s_barrier")
    compute(vAccB)
    a(f"s_add_u32 s{sC}, s{sC}, 1")
    a(f"s_cmp_lt_u32 s{sC}, 18")
    a("s_cbranch_scc1 K4_c1")
    a("s_waitcnt vmcnt(0)")
    a("s_nop 12")
    stamp(a, "k3")
    a(f"v_sub_f32 v{t3}, 1.0, v{vG}")
    for r in range(8):
        x = vX1 + r
        a(f"v_lshlrev_b32 v{t1}, 16, v{x}")
        a(f"v_and_b32 v{t2}, 0xffff0000, v{x}")
        a(f"v_add_f32 v{vAccB+2*r}, v{vAccB+2*r}, v{t1}")
        a(f"v_add_f32 v{vAccB+2*r+1}, v{vAccB+2*r+1}, v{t2}")
    for r in range(16):
        a(f"v_mul_f32 v{vAccB+r}, v{vAccB+r}, v{t3}")
    for r in range(16):
        a(f"v_fmac_f32 v{vAccB+r}, v{vAccA+r}, v{vG}")
    for r in range(8):
        a(f"v_cvt_pk_bf16_f32 v{vP+r}, v{vAccB+2*r}, v{vAccB+2*r+1}")
    a(f"s_lshl_b32 s{sT0}, s{sRB}, 6")
    a(f"s_and_b32 s{sT1}, s{sW}, 1")
    a(f"s_lshl_b32 s{sT1}, s{sT1}, 5")
    a(f"s_add_u32 s{sT0}, s{sT0}, s{sT1}")
    a(f"v_add_u32 v{t1}, s{sT0}, v{vI}")
    a(f"v_mul_u32_u24 v{t1}, 896, v{t1}")
    a(f"v_lshl_add_u32 v{t1}, v{vHF}, 3, v{t1}")
    a(f"s_lshl_b32 s{sT0}, s{sCB}, 7")
    a(f"s_lshr_b32 s{sT1}, s{sW}, 1")
    a(f"s_lshl_b32 s{sT1}, s{sT1}, 6")
    a(f"s_add_u32 s{sT0}, s{sT0}, s{sT1}")
    for q in range(4):
        a(f"buffer_store_dwordx2 {vr(vP+2*q,2)}, v{t1}, {sr(SRD_F,4)}, s{sT0} offen offset:{16*q}")
    stamp(a, "k3")
    stamp_flush(a, "k3", 5)
```

```python
from gen import *

from gen_k2 import gen_k2, K2_LDS
from gen_k3 import gen_k3, K3_LDS

from gen_k1 import gen_k1, K1_LDS

def main():
    a = Asm()
    a.raw(HEADER.rstrip())
    a.raw(f"; @launch kernel=k1_kernel grid=(256,1,1) block=(768,1,1) lds={K1_LDS}")
    a.raw(f"; @launch kernel=k2_kernel grid=(256,1,1) block=(768,1,1) lds={K2_LDS}")
    a.raw(f"; @launch kernel=k3_kernel grid=(224,1,1) block=(512,1,1) lds={K3_LDS}")
    a.raw('.amdgcn_target "amdgcn-amd-amdhsa--gfx950"')
    a.raw(".text")
    gen_k1(a)
    gen_k2(a)
    gen_k3(a)
    a.raw('.section .rodata,"a"')
    for name, v in (("k1_kernel", 144), ("k2_kernel", 160), ("k3_kernel", 168)):
        a.raw(".p2align 6")
        kd(a, name, v)
    out = sys.argv[1] if len(sys.argv) > 1 else "gated_mix__mha_block__mixer_s_mlp__prompt.s"
    open(out, "w").write(a.text())
    print("wrote", out, len(a.lines), "lines")
```

```python
import struct, sys

MB = 1 << 20
QF, KF, VF, HF, GOFF, OF, X1F, H2F = 0, 2 * MB, 4 * MB, 6 * MB, 8 * MB, 9 * MB, 11 * MB, 13 * MB
WS_SIZE = 32 * MB
HF_SIZE = 64 * 28 * 1024

def f2u(x):
    return struct.unpack("<I", struct.pack("<f", x))[0]

LOG2E = 1.4426950408889634
QSCALE = (28 ** -0.5) * LOG2E
GK0 = -2.0 * 0.7978845608028654 * LOG2E
GK1 = GK0 * 0.044715


class Asm:
    def __init__(self):
        self.lines = []
    def __call__(self, s):
        self.lines.append("    " + s)
    def label(self, l):
        self.lines.append(l + ":")
    def raw(self, s):
        self.lines.append(s)
    def text(self):
        return "\n".join(self.lines) + "\n"


def vr(b, n):
    return f"v[{b}:{b+n-1}]"

def sr(b, n):
    return f"s[{b}:{b+n-1}]"

S_PTR = 16
P_X, P_WQKV, P_WO, P_BX, P_W1, P_W2, P_W3, P_W4 = 16, 18, 20, 22, 24, 26, 28, 30
P_GATE, P_OUT, P_DBG, P_WS = 32, 34, 36, 38
SRD_A, SRD_W, SRD_WS, SRD_E = 40, 44, 48, 52
SRD_F = 56


def kernel_head(a, name):
    a.raw(f".globl {name}")
    a.raw(".p2align 8")
    a.raw(f".type {name},@function")
    a.label(name)


def load_ptrs(a):
    a(f"s_load_dwordx16 s[16:31], s[0:1], 0")
    a(f"s_load_dwordx8 s[32:39], s[0:1], 64")


def make_srd(a, srd, ptr, size, off=0):
    if off:
        a(f"s_add_u32 s{srd}, s{ptr}, {off}")
        a(f"s_addc_u32 s{srd+1}, s{ptr+1}, 0")
    else:
        a(f"s_mov_b32 s{srd}, s{ptr}")
        a(f"s_mov_b32 s{srd+1}, s{ptr+1}")
    a(f"s_mov_b32 s{srd+2}, {size}")
    a(f"s_mov_b32 s{srd+3}, 0x00020000")


def xhalf_sum(a, v, t):
    a(f"v_mov_b32 v{t}, v{v}")
    a("s_nop 1")
    a(f"v_permlane32_swap_b32 v{v}, v{t}")
    a(f"v_add_f32 v{v}, v{v}, v{t}")


def gelu_inplace(a, x, t1, t2, sk0, sk1):
    a(f"v_mul_f32 v{t1}, v{x}, v{x}")
    a(f"v_mov_b32 v{t2}, s{sk0}")
    a(f"v_fmac_f32 v{t2}, s{sk1}, v{t1}")
    a(f"v_mul_f32 v{t2}, v{t2}, v{x}")
    a(f"v_exp_f32 v{t2}, v{t2}")
    a("s_nop 0")
    a(f"v_add_f32 v{t2}, 1.0, v{t2}")
    a(f"v_rcp_f32 v{t2}, v{t2}")
    a("s_nop 0")
    a(f"v_mul_f32 v{x}, v{x}, v{t2}")


def gelu_block(a, regs, tmp, sk0, sk1):
    n = len(regs)
    for i, x in enumerate(regs):
        a(f"v_mul_f32 v{tmp+i}, v{x}, v{x}")
    for i, x in enumerate(regs):
        a(f"v_fma_f32 v{tmp+i}, v{tmp+i}, s{sk1}, v{sk0}")
    for i, x in enumerate(regs):
        a(f"v_mul_f32 v{tmp+i}, v{tmp+i}, v{x}")
    for i, x in enumerate(regs):
        a(f"v_exp_f32 v{tmp+i}, v{tmp+i}")
    for i, x in enumerate(regs):
        a(f"v_add_f32 v{tmp+i}, 1.0, v{tmp+i}")
    for i, x in enumerate(regs):
        a(f"v_rcp_f32 v{tmp+i}, v{tmp+i}")
    for i, x in enumerate(regs):
        a(f"v_mul_f32 v{x}, v{x}, v{tmp+i}")


def lane_consts(a, vL, vHF, vI, vWr, t1, t2, khalf_rows):
    a(f"v_and_b32 v{vL}, 63, v0")
    a(f"v_lshrrev_b32 v{vHF}, 5, v{vL}")
    a(f"v_and_b32 v{vI}, 31, v{vL}")
    a(f"v_bfe_u32 v{t1}, v{vL}, 2, 2")
    a(f"v_mul_u32_u24 v{t2}, {khalf_rows}, v{vHF}")
    a(f"v_add_u32 v{t1}, v{t1}, v{t2}")
    a(f"v_lshlrev_b32 v{vWr}, 6, v{t1}")
    a(f"v_bfe_u32 v{t1}, v{vL}, 4, 1")
    a(f"v_lshlrev_b32 v{t1}, 5, v{t1}")
    a(f"v_and_b32 v{t2}, 3, v{vL}")
    a(f"v_lshlrev_b32 v{t2}, 3, v{t2}")
    a(f"v_add3_u32 v{vWr}, v{vWr}, v{t1}, v{t2}")


K1_SLOT = 36864
K1_GATE = 4 * K1_SLOT
K1_SCR = K1_GATE + 1024
K1_LDS = K1_SCR + 2048


def k1_path(a, kind):
    w1 = kind == 'w1'
    sW, sT0, sT1, sMA, sWB, sRB, sONE = 60, 61, 62, 63, 64, 65, 66
    sK1 = 67
    vL, vHF, vI, vWr0 = 1, 2, 3, 4
    vAe, vAo, vWd = 5, 6, 7
    vAr0 = 8
    vAr = 12
    vWr = 16
    t1, t2, t3 = 17, 18, 19
    vSum, vSq, vG = 20, 21, 22
    vCs = 24
    vAf = 28
    vGf = 36
    vWf = 44
    vAcc = 76
    vTmp = 140
    vCsr = 156
    vK0 = 172
    ntile = 4
    rowstride = 896 if w1 else 2688
    areg = 8192 if w1 else 16384

    SK = "k1" + kind
    stamp(a, SK)
    make_srd(a, SRD_A, P_X, 2048 * 896)
    if w1:
        make_srd(a, SRD_W, P_W1, 448 * 896)
        make_srd(a, SRD_E, P_GATE, 896)
    else:
        make_srd(a, SRD_W, P_WQKV, 448 * 2688)
    make_srd(a, SRD_WS, P_WS, WS_SIZE)
    lane_consts(a, vL, vHF, vI, vWr0, t1, t2, 8)
    a(f"v_lshrrev_b32 v{t1}, 6, v0")
    a("s_nop 0")
    a(f"v_readfirstlane_b32 s{sW}, v{t1}")
    a(f"s_mov_b32 s{sONE}, 0x3f803f80")
    if w1:
        a(f"s_sub_u32 s{sT0}, s2, 192")
        a(f"s_and_b32 s{sRB}, s{sT0}, 31")
        a(f"s_lshr_b32 s{sT1}, s{sT0}, 5")
        a(f"s_lshl_b32 s{sT0}, s{sRB}, 6")
        a(f"s_lshl_b32 s{sMA}, s{sW}, 4")
        a(f"s_add_u32 s{sT0}, s{sT0}, s{sMA}")
        a(f"s_lshl_b32 s{sMA}, s{sW}, 11")
        a(f"s_mul_i32 s{sWB}, s{sW}, {16*896}")
        a(f"s_mul_i32 s{sT1}, s{sT1}, 448")
        a(f"s_add_u32 s{sWB}, s{sWB}, s{sT1}")
    else:
        a(f"s_and_b32 s{sRB}, s2, 15")
        a(f"s_lshr_b32 s{sT1}, s2, 4")
        a(f"s_lshl_b32 s{sT0}, s{sRB}, 7")
        a(f"s_lshl_b32 s{sMA}, s{sW}, 5")
        a(f"s_add_u32 s{sT0}, s{sT0}, s{sMA}")
        a(f"s_lshl_b32 s{sMA}, s{sW}, 12")
        a(f"s_mul_i32 s{sWB}, s{sT1}, 224")
        a(f"s_mul_i32 s{sT1}, s{sW}, 56")
        a(f"s_add_u32 s{sWB}, s{sWB}, s{sT1}")
    a(f"v_lshrrev_b32 v{t1}, 3, v{vL}")
    a(f"v_add_u32 v{t1}, s{sT0}, v{t1}")
    a(f"v_mul_u32_u24 v{t1}, 896, v{t1}")
    a(f"v_and_b32 v{t2}, 7, v{vL}")
    a(f"v_lshrrev_b32 v{t3}, 4, v{vL}")
    a(f"v_xor_b32 v{t2}, v{t2}, v{t3}")
    a(f"v_lshlrev_b32 v{t2}, 4, v{t2}")
    a(f"v_add_u32 v{vAe}, v{t1}, v{t2}")
    a(f"v_xor_b32 v{t2}, 64, v{t2}")
    a(f"v_add_u32 v{t1}, 7168, v{t1}")
    a(f"v_add_u32 v{vAo}, v{t1}, v{t2}")
    a(f"v_lshrrev_b32 v{t1}, 2, v{vL}")
    a(f"v_mul_u32_u24 v{t1}, {rowstride}, v{t1}")
    a(f"v_and_b32 v{t2}, 3, v{vL}")
    a(f"v_lshlrev_b32 v{t2}, 4, v{t2}")
    a(f"v_add_u32 v{vWd}, v{t1}, v{t2}")
    if w1:
        a(f"s_and_b32 s{sT0}, s{sW}, 1")
        a(f"s_lshl_b32 s{sT0}, s{sT0}, 12")
    else:
        a(f"s_lshl_b32 s{sT0}, s{sW}, 12")
    a(f"v_lshlrev_b32 v{t1}, 7, v{vI}")
    a(f"v_add_u32 v{t1}, s{sT0}, v{t1}")
    a(f"v_bfe_u32 v{t2}, v{vI}, 1, 3")
    for s in range(4):
        a(f"v_add_u32 v{t3}, {2*s}, v{vHF}")
        a(f"v_xor_b32 v{t3}, v{t3}, v{t2}")
        a(f"v_lshlrev_b32 v{t3}, 4, v{t3}")
        a(f"v_add_u32 v{vAr0+s}, v{t1}, v{t3}")
    if w1:
        a(f"s_lshr_b32 s{sT0}, s{sW}, 1")
        a(f"s_lshl_b32 s{sT0}, s{sT0}, 14")
        a(f"v_add_u32 v{vWr0}, s{sT0}, v{vWr0}")
        a(f"v_mov_b32 v{vSum}, 0")
        a(f"v_mov_b32 v{vSq}, 0")
        a(f"v_mov_b32 v{vG}, 0")
        for t in range(4):
            a(f"v_mov_b32 v{vCs+t}, 0")
        a(f"v_lshlrev_b32 v{t1}, 4, v{vL}")
        a(f"s_mov_b32 m0, {K1_GATE}")
        a("s_nop 0")
        a(f"buffer_load_dwordx4 v{t1}, {sr(SRD_E,4)}, 0 offen lds")
        a(f"v_lshlrev_b32 v{t2}, 4, v{vHF}")
        a(f"v_add_u32 v{vK0}, {K1_GATE}, v{t2}")

    ndma = 9 if w1 else 8

    def issue(c):
        sl = (c % 4) * K1_SLOT
        if w1:
            for qq in range(2):
                a(f"s_add_u32 m0, s{sMA}, {sl + qq*1024}")
                a(f"s_mov_b32 s{sT0}, {128*c}")
                a(f"buffer_load_dwordx4 v{vAo if qq else vAe}, {sr(SRD_A,4)}, s{sT0} offen lds")
            for t in range(7):
                a(f"s_lshl_b32 s{sT1}, s{sW}, 10")
                a(f"s_add_u32 m0, s{sT1}, {sl + areg + t*4096}")
                a(f"s_add_u32 s{sT0}, s{sWB}, {64*c*896 + 64*t}")
                a(f"buffer_load_dwordx4 v{vWd}, {sr(SRD_W,4)}, s{sT0} offen lds")
        else:
            for qq in range(4):
                a(f"s_add_u32 m0, s{sMA}, {sl + qq*1024}")
                a(f"s_mov_b32 s{sT0}, {128*c + (qq>>1)*14336}")
                a(f"buffer_load_dwordx4 v{vAo if qq&1 else vAe}, {sr(SRD_A,4)}, s{sT0} offen lds")
            for s_ in range(4):
                a(f"s_add_u32 m0, s{sMA}, {sl + areg + s_*1024}")
                a(f"s_add_u32 s{sT0}, s{sWB}, {(64*c+16*s_)*2688}")
                a(f"buffer_load_dwordx4 v{vWd}, {sr(SRD_W,4)}, s{sT0} offen lds")

    for c in range(3):
        issue(c)

    nrd = 10 if w1 else 9
    stamp(a, SK)

    def reads(c, s):
        b = s & 1
        a(f"ds_read_b128 {vr(vAf+4*b,4)}, v{vAr+s}")
        if w1:
            a(f"ds_read_b128 {vr(vGf+4*b,4)}, v{vK0} offset:{32*(4*c+s)}")
        for t in range(ntile):
            o = areg + t * 4096 + s * 1024
            a(f"ds_read_b64_tr_b16 {vr(vWf+16*b+4*t,2)}, v{vWr} offset:{o}")
            a(f"ds_read_b64_tr_b16 {vr(vWf+16*b+4*t+2,2)}, v{vWr} offset:{o+256}")

    for c in range(7):
        ahead = min(c + 2, 6) - c
        a(f"s_waitcnt vmcnt({ahead*ndma})")
        a("s_barrier")
        stamp(a, SK)
        if c + 3 < 7:
            issue(c + 3)
        sl = (c % 4) * K1_SLOT
        for s in range(4):
            a(f"v_add_u32 v{vAr+s}, {sl}, v{vAr0+s}")
        a(f"v_add_u32 v{vWr}, {sl}, v{vWr0}")
        reads(c, 0)
        for s in range(4):
            b = s & 1
            if s < 3:
                reads(c, s + 1)
                a(f"s_waitcnt lgkmcnt({nrd})")
            else:
                a("s_waitcnt lgkmcnt(0)")
            for t in range(ntile):
                C = "0" if (c == 0 and s == 0) else vr(vAcc + 16 * t, 16)
                X, W = vr(vAf + 4 * b, 4), vr(vWf + 16 * b + 4 * t, 4)
                if kind == 'v':
                    a(f"v_mfma_f32_32x32x16_bf16 {vr(vAcc+16*t,16)}, {X}, {W}, {C}")
                else:
                    a(f"v_mfma_f32_32x32x16_bf16 {vr(vAcc+16*t,16)}, {W}, {X}, {C}")
                if w1:
                    for i in range(4):
                        a(f"v_dot2_f32_bf16 v{vCs+t}, v{vWf+16*b+4*t+i}, s{sONE}, v{vCs+t}")
            if w1:
                for i in range(4):
                    x = vAf + 4 * b + i
                    a(f"v_dot2_f32_bf16 v{vSum}, v{x}, s{sONE}, v{vSum}")
                    a(f"v_dot2_f32_bf16 v{vSq}, v{x}, v{x}, v{vSq}")
                    a(f"v_dot2_f32_bf16 v{vG}, v{x}, v{vGf+4*b+i}, v{vG}")
    a("s_nop 15")
    stamp(a, SK)
    if not w1:
        a(f"s_lshr_b32 s{sT1}, s2, 4")
        a(f"s_lshl_b32 s{sT1}, s{sT1}, 19")
        a(f"s_lshl_b32 s{sT0}, s{sRB}, 2")
        a(f"s_add_u32 s{sT0}, s{sT0}, s{sW}")
        a(f"s_lshl_b32 s{sT0}, s{sT0}, 11")
        a(f"s_add_u32 s{sT0}, s{sT0}, s{sT1}")
        a(f"v_lshlrev_b32 v{t1}, 4, v{vL}")
        a(f"v_add_u32 v{t1}, s{sT0}, v{t1}")
        if kind == 'qk':
            a(f"s_cmp_lt_u32 s2, 64")
            a(f"s_cselect_b32 s{sT1}, {f2u(QSCALE)}, 1.0")
            a(f"v_mov_b32 v{t2}, 0x3f803f80")
            a(f"v_mov_b32 v{t3}, 0x00003f80")
            a(f"v_cmp_lt_u32 vcc, 31, v{vL}")
        else:
            a(f"v_mov_b32 v{t2}, 0x3f803f80")
            a(f"v_cmp_eq_u32 vcc, 28, v{vI}")
        for t in range(4):
            A = vAcc + 16 * t
            P = vTmp + 8 * (t & 1)
            if kind == 'qk':
                for r in range(16):
                    a(f"v_mul_f32 v{A+r}, s{sT1}, v{A+r}")
            for r in range(8):
                a(f"v_cvt_pk_bf16_f32 v{P+r}, v{A+2*r}, v{A+2*r+1}")
            if kind == 'qk':
                a(f"v_cndmask_b32 v{P+6}, v{P+6}, v{t2}, vcc")
                a(f"v_cndmask_b32 v{P+7}, v{P+7}, v{t3}, vcc")
            else:
                for r in range(8):
                    a(f"v_cndmask_b32 v{P+r}, v{P+r}, v{t2}, vcc")
            a(f"s_mov_b32 s{sT0}, {t*131072}")
            a(f"buffer_store_dwordx4 {vr(P,4)}, v{t1}, {sr(SRD_WS,4)}, s{sT0} offen")
            a(f"buffer_store_dwordx4 {vr(P+4,4)}, v{t1}, {sr(SRD_WS,4)}, s{sT0} offen offset:1024")
        stamp(a, SK)
        stamp_flush(a, SK, 5)
        a("s_endpgm")
        return
    for v in (vSum, vSq, vG, vCs, vCs + 1, vCs + 2, vCs + 3):
        xhalf_sum(a, v, t1)
    vMean, vRstd = vSum, vSq
    a(f"v_mul_f32 v{vMean}, {f2u(1.0/448)}, v{vSum}")
    a(f"v_mul_f32 v{vSq}, {f2u(1.0/448)}, v{vSq}")
    a(f"v_fma_f32 v{vSq}, -v{vMean}, v{vMean}, v{vSq}")
    a(f"v_add_f32 v{vSq}, {f2u(1e-5)}, v{vSq}")
    a(f"v_rsq_f32 v{vRstd}, v{vSq}")
    a(f"s_lshl_b32 s{sT0}, s{sW}, 9")
    a(f"s_add_u32 s{sT0}, s{sT0}, {K1_SCR}")
    a(f"v_lshlrev_b32 v{t1}, 2, v{vI}")
    a(f"v_add_u32 v{t1}, s{sT0}, v{t1}")
    for t in range(4):
        a(f"ds_write_b32 v{t1}, v{vCs+t} offset:{128*t}")
    a(f"v_lshlrev_b32 v{t2}, 4, v{vHF}")
    a(f"v_add_u32 v{t2}, s{sT0}, v{t2}")
    a(f"v_mul_f32 v{vG}, {f2u(-LOG2E)}, v{vG}")
    a(f"v_exp_f32 v{vG}, v{vG}")
    a("s_nop 0")
    a(f"v_add_f32 v{vG}, 1.0, v{vG}")
    a(f"v_rcp_f32 v{vG}, v{vG}")
    a(f"s_and_b32 s{sT1}, s{sW}, 1")
    a(f"s_lshl_b32 s{sMA}, s{sRB}, 1")
    a(f"s_add_u32 s{sMA}, s{sMA}, s{sT1}")
    a(f"s_cmp_lt_u32 s2, 224")
    a(f"s_cbranch_scc0 K1_nogate")
    a(f"s_cmp_lt_u32 s{sW}, 2")
    a(f"s_cbranch_scc0 K1_nogate")
    a(f"s_lshl_b32 s{sT1}, s{sMA}, 7")
    a(f"s_add_u32 s{sT1}, s{sT1}, {GOFF}")
    a(f"v_lshlrev_b32 v{t3}, 2, v{vI}")
    a(f"buffer_store_dword v{vG}, v{t3}, {sr(SRD_WS,4)}, s{sT1} offen")
    a.label("K1_nogate")
    a(f"s_mul_i32 s{sT1}, s{sMA}, {28*1024}")
    a(f"s_sub_u32 s{sT0}, s2, 192")
    a(f"s_lshr_b32 s{sT0}, s{sT0}, 5")
    a(f"s_mul_i32 s{sT0}, s{sT0}, {14*1024}")
    a(f"s_add_u32 s{sT1}, s{sT1}, s{sT0}")
    a(f"s_lshr_b32 s{sT0}, s{sW}, 1")
    a(f"s_lshl_b32 s{sT0}, s{sT0}, 13")
    a(f"s_add_u32 s{sT1}, s{sT1}, s{sT0}")
    a(f"s_add_u32 s{sT1}, s{sT1}, {HF}")
    a(f"v_lshlrev_b32 v{t1}, 4, v{vL}")
    a(f"v_add_u32 v{t1}, s{sT1}, v{t1}")
    a(f"s_mov_b32 s{sK1}, {f2u(GK1)}")
    a(f"v_mov_b32 v{vK0}, {f2u(GK0)}")
    a("s_waitcnt lgkmcnt(0)")
    for t in range(4):
        if t == 3:
            a(f"s_cmp_lt_u32 s{sW}, 2")
            a(f"s_cbranch_scc0 K1_w1_done")
        A = vAcc + 16 * t
        for q in range(4):
            a(f"ds_read_b128 {vr(vCsr+4*q,4)}, v{t2} offset:{128*t+32*q}")
        a("s_waitcnt lgkmcnt(0)")
        for r in range(16):
            a(f"v_fma_f32 v{A+r}, -v{vMean}, v{vCsr+r}, v{A+r}")
        for r in range(16):
            a(f"v_mul_f32 v{A+r}, v{vRstd}, v{A+r}")
        gelu_block(a, [A + r for r in range(16)], vTmp, vK0, sK1)
        for r in range(8):
            a(f"v_cvt_pk_bf16_f32 v{vTmp+r}, v{A+2*r}, v{A+2*r+1}")
        a(f"buffer_store_dwordx4 {vr(vTmp,4)}, v{t1}, {sr(SRD_WS,4)}, 0 offen offset:{2048*(t&1)}" if t < 2 else
          f"buffer_store_dwordx4 {vr(vTmp,4)}, v{t3}, {sr(SRD_WS,4)}, 0 offen offset:{2048*(t&1)}")
        a(f"buffer_store_dwordx4 {vr(vTmp+4,4)}, v{t1}, {sr(SRD_WS,4)}, 0 offen offset:{2048*(t&1)+1024}" if t < 2 else
          f"buffer_store_dwordx4 {vr(vTmp+4,4)}, v{t3}, {sr(SRD_WS,4)}, 0 offen offset:{2048*(t&1)+1024}")
        if t == 1:
            a(f"v_add_u32 v{t3}, 4096, v{t1}")
        a("s_nop 1")
    a.label("K1_w1_done")
    stamp(a, SK)
    stamp_flush(a, SK, 200)
    a("s_endpgm")


def gen_k1(a):
    kernel_head(a, "k1_kernel")
    a("s_cmp_ge_u32 s2, 256")
    a("s_cbranch_scc1 K1_exit")
    load_ptrs(a)
    a("s_waitcnt lgkmcnt(0)")
    a("s_cmp_lt_u32 s2, 128")
    a("s_cbranch_scc1 K1_qk")
    a("s_cmp_lt_u32 s2, 192")
    a("s_cbranch_scc1 K1_v")
    k1_path(a, 'w1')
    a.label("K1_qk")
    k1_path(a, 'qk')
    a.label("K1_v")
    k1_path(a, 'v')
    a.label("K1_exit")
    a("s_endpgm")


import os
STAMP = os.environ.get("STAMP", "")
_stamp_n = {}
def stamp(a, kern):
    if STAMP != kern: return
    i = _stamp_n.get(kern, 0); _stamp_n[kern] = i + 1
    a(f"s_memtime s[{76+2*i}:{77+2*i}]")
def stamp_flush(a, kern, wg):
    if STAMP != kern: return
    n = _stamp_n.get(kern, 0)
    a("s_waitcnt vmcnt(0) lgkmcnt(0)")
    a(f"s_cmp_eq_u32 s2, {wg}")
    a(f"s_cbranch_scc0 ST_skip_{kern}")
    make_srd(a, SRD_F, P_DBG, 256)
    a("v_cmp_eq_u32 vcc, 0, v0")
    a("s_and_saveexec_b64 s[74:75], vcc")
    a(f"s_cbranch_execz ST_skip_{kern}")
    for i in range(n):
        a(f"s_sub_u32 s{76+2*i+1}, s{76+2*i}, s76")
        a(f"v_mov_b32 v1, s{76+2*i+1}")
        a(f"v_mov_b32 v2, {128+4*i}")
        a(f"buffer_store_dword v1, v2, s[{SRD_F}:{SRD_F+3}], 0 offen")
    a.label(f"ST_skip_{kern}")

def l2_prefetch(a, srd, nbytes, sIdx, nw, vD16, vdst, sT):
    n = (nbytes + 1024 * nw - 1) // (1024 * nw)
    a(f"s_lshl_b32 s{sT}, s{sIdx}, 10")
    for k in range(n):
        a(f"buffer_load_dwordx4 {vr(vdst,4)}, v{vD16}, {sr(srd,4)}, s{sT} offen")
        if k + 1 < n:
            a(f"s_add_u32 s{sT}, s{sT}, {1024*nw}")


def kd(a, name, vgpr, sgpr=102):
    a.raw(f".amdhsa_kernel {name}")
    a.raw(f"  .amdhsa_next_free_vgpr {vgpr}")
    a.raw(f"  .amdhsa_next_free_sgpr {sgpr}")
    a.raw(f"  .amdhsa_accum_offset {(vgpr+3)//4*4}")
    a.raw("  .amdhsa_group_segment_fixed_size 0")
    a.raw("  .amdhsa_kernarg_size 96")
    a.raw("  .amdhsa_user_sgpr_count 2")
    a.raw("  .amdhsa_user_sgpr_kernarg_segment_ptr 1")
    a.raw("  .amdhsa_system_sgpr_workgroup_id_x 1")
    a.raw(".end_amdhsa_kernel")


HEADER = """; gated_mix__mha_block__mixer_s_mlp__prompt -- generated by dev/gen.py (hand-designed kernels)
; Kernarg: 0 A_x, 8 A_wqkv, 16 A_wo, 24 B_x, 32 B_w1, 40 B_w2, 48 B_w3, 56 B_w4, 64 gate_w, 72 out, 80 debug, 88 ws
"""

if __name__ == "__main__":
    import gen_rest
    gen_rest.main()
```

```python
from gen import *
from gen_tp import *

K1_LDS = 155648
W1_RING = 57344


def qkv_path(a):
    sW, sT0, sT1, sMA, sWB, sRB = 60, 61, 62, 63, 64, 65
    vL, vHF, vI, vWr0 = 1, 2, 3, 4
    vAe, vAo, vWd = 5, 6, 7
    vAr0 = 8
    vAr = 12
    vWr = 16
    t1, t2, t3 = 17, 18, 19
    vAf = 20
    vWf = 28
    vAcc = 60
    vTmp = 124
    SLOT = 32768
    a(f"s_lshl_b32 s{sRB}, s90, 2")
    a(f"s_and_b32 s{sT0}, s92, 3")
    a(f"s_add_u32 s{sRB}, s{sRB}, s{sT0}")
    a(f"s_mul_i32 s93, s91, 6")
    a(f"s_lshr_b32 s{sT0}, s92, 2")
    a(f"s_add_u32 s93, s93, s{sT0}")
    a(f"s_cmp_lt_u32 s{sW}, 4")
    a("s_cbranch_scc1 K1_qkv_comp")
    make_srd(a, SRD_A, P_X, 2048 * 896)
    make_srd(a, SRD_W, P_WQKV, 448 * 2688)
    sH2 = 66
    a(f"s_sub_u32 s{sW}, s{sW}, 4")
    a(f"s_lshr_b32 s{sH2}, s{sW}, 2")
    a(f"s_and_b32 s{sW}, s{sW}, 3")
    a(f"s_mov_b32 s{sT1}, s93")
    a(f"s_lshl_b32 s{sT0}, s{sRB}, 7")
    a(f"s_lshl_b32 s{sMA}, s{sW}, 5")
    a(f"s_add_u32 s{sT0}, s{sT0}, s{sMA}")
    a(f"s_lshl_b32 s{sMA}, s{sH2}, 4")
    a(f"s_add_u32 s{sT0}, s{sT0}, s{sMA}")
    a(f"s_lshl_b32 s{sMA}, s{sW}, 12")
    a(f"s_lshl_b32 s{sWB}, s{sH2}, 11")
    a(f"s_add_u32 s{sMA}, s{sMA}, s{sWB}")
    a(f"s_mul_i32 s{sWB}, s{sT1}, 224")
    a(f"s_mul_i32 s{sT1}, s{sW}, 56")
    a(f"s_add_u32 s{sWB}, s{sWB}, s{sT1}")
    a(f"s_mul_i32 s{sT1}, s{sH2}, {32*2688}")
    a(f"s_add_u32 s{sWB}, s{sWB}, s{sT1}")
    a(f"v_lshrrev_b32 v{t1}, 3, v{vL}")
    a(f"v_add_u32 v{t1}, s{sT0}, v{t1}")
    a(f"v_mul_u32_u24 v{t1}, 896, v{t1}")
    a(f"v_and_b32 v{t2}, 7, v{vL}")
    a(f"v_lshrrev_b32 v{t3}, 4, v{vL}")
    a(f"v_xor_b32 v{t2}, v{t2}, v{t3}")
    a(f"v_lshlrev_b32 v{t2}, 4, v{t2}")
    a(f"v_add_u32 v{vAe}, v{t1}, v{t2}")
    a(f"v_xor_b32 v{t2}, 64, v{t2}")
    a(f"v_add_u32 v{t1}, 7168, v{t1}")
    a(f"v_add_u32 v{vAo}, v{t1}, v{t2}")
    a(f"v_lshrrev_b32 v{t1}, 2, v{vL}")
    a(f"v_mul_u32_u24 v{t1}, 2688, v{t1}")
    a(f"v_and_b32 v{t2}, 3, v{vL}")
    a(f"v_lshlrev_b32 v{t2}, 4, v{t2}")
    a(f"v_add_u32 v{vWd}, v{t1}, v{t2}")

    def issue(c):
        sl = (c % 4) * SLOT
        for q in range(2):
            a(f"s_add_u32 m0, s{sMA}, {sl + q*1024}")
            a(f"s_mov_b32 s{sT0}, {128*c}")
            a(f"buffer_load_dwordx4 v{vAo if q&1 else vAe}, {sr(SRD_A,4)}, s{sT0} offen lds")
            a(f"s_add_u32 m0, s{sMA}, {sl + 16384 + q*1024}")
            a(f"s_add_u32 s{sT0}, s{sWB}, {(64*c+16*q)*2688}")
            a(f"buffer_load_dwordx4 v{vWd}, {sr(SRD_W,4)}, s{sT0} offen lds")
    for c in range(3):
        issue(c)
    for c in range(7):
        a(f"s_waitcnt vmcnt({4*(min(c+2,6)-c)})")
        a("s_barrier")
        if c + 3 < 7:
            issue(c + 3)
    a("s_barrier")
    a("s_endpgm")

    a.label("K1_qkv_comp")
    make_srd(a, SRD_WS, P_WS, WS_SIZE)
    a(f"s_or_b32 s{sT0}, s2, s{sW}")
    a(f"s_cmp_eq_u32 s{sT0}, 0")
    a("s_cbranch_scc0 K1_noclr")
    a(f"v_lshlrev_b32 v{t1}, 8, v{vL}")
    a(f"v_mov_b32 v{t2}, 0")
    a(f"s_mov_b32 s{sT0}, {FLAGS}")
    a(f"buffer_store_dword v{t2}, v{t1}, {sr(SRD_WS,4)}, s{sT0} offen")
    a.label("K1_noclr")
    if 'k1pf' in os.environ.get('PF',''):
        make_srd(a, SRD_E, P_W1, 448 * 896)
        a(f"s_lshr_b32 s{sT1}, s2, 3")
        a(f"s_lshl_b32 s{sT1}, s{sT1}, 2")
        a(f"s_add_u32 s{sT1}, s{sT1}, s{sW}")
        a(f"v_lshlrev_b32 v{t1}, 4, v{vL}")
        l2_prefetch(a, SRD_E, 448 * 896, sT1, 96, t1, vTmp, sT0)
    a(f"s_lshl_b32 s{sT0}, s{sW}, 12")
    a(f"v_lshlrev_b32 v{t1}, 7, v{vI}")
    a(f"v_add_u32 v{t1}, s{sT0}, v{t1}")
    a(f"v_bfe_u32 v{t2}, v{vI}, 1, 3")
    for s in range(4):
        a(f"v_add_u32 v{t3}, {2*s}, v{vHF}")
        a(f"v_xor_b32 v{t3}, v{t3}, v{t2}")
        a(f"v_lshlrev_b32 v{t3}, 4, v{t3}")
        a(f"v_add_u32 v{vAr0+s}, v{t1}, v{t3}")
    a("s_cmp_lt_u32 s93, 8")
    a("s_cbranch_scc0 K1_v")
    for kind in ('qk', 'v'):
        if kind == 'v':
            a.label("K1_v")
        SK = "k1" + kind
        stamp(a, SK)

        sSl, sCnt = 66, 67

        def setaddr():
            for s in range(4):
                a(f"v_add_u32 v{vAr+s}, s{sSl}, v{vAr0+s}")
            a(f"v_add_u32 v{vWr}, s{sSl}, v{vWr0}")
            a(f"s_add_u32 s{sSl}, s{sSl}, {SLOT}")
            a(f"s_and_b32 s{sSl}, s{sSl}, {4*SLOT-1}")

        def reads(s):
            b = s & 1
            a(f"ds_read_b128 {vr(vAf+4*b,4)}, v{vAr+s}")
            for t in range(4):
                o = 16384 + t * 4096 + s * 1024
                a(f"ds_read_b64_tr_b16 {vr(vWf+16*b+4*t,2)}, v{vWr} offset:{o}")
                a(f"ds_read_b64_tr_b16 {vr(vWf+16*b+4*t+2,2)}, v{vWr} offset:{o+256}")
        a(f"s_mov_b32 s{sSl}, 0")
        a(f"s_mov_b32 s{sCnt}, 0")
        for r in range(64):
            a(f"v_mov_b32 v{vAcc+r}, 0")
        setaddr()
        a("s_barrier")
        stamp(a, SK)
        reads(0)
        a.raw(".p2align 6")
        a.label(f"K1_{kind}_loop")
        for s in range(4):
            b = s & 1
            if s < 3:
                reads(s + 1)
                a("s_waitcnt lgkmcnt(9)")
            else:
                a("s_waitcnt lgkmcnt(0)")
                a("s_barrier")
                setaddr()
                reads(0)
            for t in range(4):
                C = vr(vAcc + 16 * t, 16)
                X, W = vr(vAf + 4 * b, 4), vr(vWf + 16 * b + 4 * t, 4)
                if kind == 'v':
                    a(f"v_mfma_f32_32x32x16_bf16 {vr(vAcc+16*t,16)}, {X}, {W}, {C}")
                else:
                    a(f"v_mfma_f32_32x32x16_bf16 {vr(vAcc+16*t,16)}, {W}, {X}, {C}")
        a(f"s_add_u32 s{sCnt}, s{sCnt}, 1")
        a(f"s_cmp_lt_u32 s{sCnt}, 7")
        a(f"s_cbranch_scc1 K1_{kind}_loop")
        stamp(a, SK)
        a(f"s_lshl_b32 s{sT1}, s93, 19")
        a(f"s_lshl_b32 s{sT0}, s{sRB}, 2")
        a(f"s_add_u32 s{sT0}, s{sT0}, s{sW}")
        a(f"s_lshl_b32 s{sT0}, s{sT0}, 11")
        a(f"s_add_u32 s{sT0}, s{sT0}, s{sT1}")
        a(f"v_lshlrev_b32 v{t1}, 4, v{vL}")
        a(f"v_add_u32 v{t1}, s{sT0}, v{t1}")
        if kind == 'qk':
            a(f"s_cmp_lt_u32 s93, 4")
            a(f"s_cselect_b32 s{sT1}, {f2u(QSCALE)}, 1.0")
            a(f"v_mov_b32 v{t2}, 0x3f803f80")
            a(f"v_mov_b32 v{t3}, 0x00003f80")
            a(f"v_cmp_lt_u32 vcc, 31, v{vL}")
        else:
            a(f"v_mov_b32 v{t2}, 0x3f803f80")
            a(f"v_cmp_eq_u32 vcc, 28, v{vI}")
        a("s_nop 4")
        for t in range(4):
            A = vAcc + 16 * t
            P = vTmp + 8 * (t & 1)
            if kind == 'qk':
                for r in range(16):
                    a(f"v_mul_f32 v{A+r}, s{sT1}, v{A+r}")
            for r in range(8):
                a(f"v_cvt_pk_bf16_f32 v{P+r}, v{A+2*r}, v{A+2*r+1}")
            if kind == 'qk':
                a(f"v_cndmask_b32 v{P+6}, v{P+6}, v{t2}, vcc")
                a(f"v_cndmask_b32 v{P+7}, v{P+7}, v{t3}, vcc")
            else:
                for r in range(8):
                    a(f"v_cndmask_b32 v{P+r}, v{P+r}, v{t2}, vcc")
            a(f"s_mov_b32 s{sT0}, {t*131072}")
            a(f"buffer_store_dwordx4 {vr(P,4)}, v{t1}, {sr(SRD_WS,4)}, s{sT0} offen")
            a(f"buffer_store_dwordx4 {vr(P+4,4)}, v{t1}, {sr(SRD_WS,4)}, s{sT0} offen offset:1024")
        stamp(a, SK)
        stamp_flush(a, SK, 5)
        rt_end(a, "k1", kind)
        a("s_endpgm")


def w1_path(a):
    sW, sT0, sT1, sMA, sWB, sRB, sHalf, sK1, sST = 60, 61, 62, 63, 64, 65, 66, 67, 68
    vL, vHF, vI, vWr0 = 1, 2, 3, 4
    vWd = 5
    vAr0 = 8
    vAr = 12
    vWr = 16
    t1, t2, t3, t4 = 17, 18, 19, 6
    vSum, vSq, vG = 20, 21, 22
    vXr = 24
    vGr = 52
    vU = 80
    vK0 = 7
    vAf = 24
    vWf = 40
    vTmp = 72
    vP = 88
    vAcc = 96
    SLOT, NS = 16384, 6
    SK = "k1w1"
    stamp(a, SK)
    make_srd(a, SRD_A, P_X, 2048 * 896)
    make_srd(a, SRD_E, P_GATE, 896)
    make_srd(a, SRD_WS, P_WS, WS_SIZE)
    a(f"s_lshl_b32 s{sRB}, s90, 3")
    a(f"s_add_u32 s{sRB}, s{sRB}, s92")
    a(f"s_sub_u32 s{sRB}, s{sRB}, 24")
    a(f"s_mov_b32 s{sHalf}, s91")
    ptiles = ((0, 1, 4, 5), (2, 3, 6))
    ops = []

    def issue(i):
        p, c = divmod(i, 7)
        sl = W1_RING + (i % NS) * SLOT
        for n, t in enumerate(ptiles[p]):
            a(f"s_add_u32 m0, s{sMA}, {sl + n*4096}")
            a(f"s_add_u32 s{sT0}, s{sWB}, {64*c*896 + 64*t}")
            a(f"buffer_load_dwordx4 v{vWd}, {sr(SRD_W,4)}, s{sT0} offen lds")
            ops.append(i)

    a(f"s_cmp_lt_u32 s{sW}, 8")
    a("s_cbranch_scc1 K1_w1_ln")
    make_srd(a, SRD_W, P_W1, 448 * 896)
    a(f"s_sub_u32 s{sT1}, s{sW}, 8")
    a(f"s_lshl_b32 s{sMA}, s{sT1}, 10")
    a(f"s_mul_i32 s{sWB}, s{sT1}, {16*896}")
    a(f"s_mul_i32 s{sT1}, s{sHalf}, 448")
    a(f"s_add_u32 s{sWB}, s{sWB}, s{sT1}")
    a(f"v_lshrrev_b32 v{t3}, 2, v{vL}")
    a(f"v_mul_u32_u24 v{t3}, 896, v{t3}")
    a(f"v_and_b32 v{vWd}, 3, v{vL}")
    a(f"v_lshl_add_u32 v{vWd}, v{vWd}, 4, v{t3}")
    for i in range(6):
        issue(i)
    for i in range(15):
        if i < 14:
            last = max(k for k, t in enumerate(ops) if t == i)
            a(f"s_waitcnt vmcnt({len(ops)-1-last})")
        a("s_barrier")
        if i >= 2 and i + 4 < 14:
            issue(i + 4)
    a("s_endpgm")
    a.label("K1_w1_ln")
    a(f"s_lshl_b32 s{sT0}, s{sRB}, 6")
    a(f"s_lshl_b32 s{sT1}, s{sW}, 3")
    a(f"s_add_u32 s{sT0}, s{sT0}, s{sT1}")
    a(f"v_lshrrev_b32 v{t1}, 3, v{vL}")
    a(f"v_add_u32 v{t2}, s{sT0}, v{t1}")
    a(f"v_mul_u32_u24 v{t3}, 896, v{t2}")
    a(f"v_and_b32 v{t4}, 7, v{vL}")
    a(f"v_lshl_add_u32 v{t3}, v{t4}, 4, v{t3}")
    for j in range(7):
        a(f"buffer_load_dwordx4 {vr(vXr+4*j,4)}, v{t3}, {sr(SRD_A,4)}, 0 offen offset:{128*j}")
    a(f"v_lshlrev_b32 v{vWd}, 4, v{t4}")
    for j in range(7):
        a(f"buffer_load_dwordx4 {vr(vGr+4*j,4)}, v{vWd}, {sr(SRD_E,4)}, 0 offen offset:{128*j}")
    a(f"s_lshl_b32 s{sT0}, s{sW}, 2")
    a(f"v_lshrrev_b32 v{t3}, 4, v{vL}")
    a(f"v_add_u32 v{t3}, s{sT0}, v{t3}")
    a(f"v_and_b32 v{t3}, 7, v{t3}")
    a(f"v_xor_b32 v{t3}, v{t3}, v{t4}")
    a(f"v_lshlrev_b32 v{t3}, 4, v{t3}")
    a(f"s_lshl_b32 s{sT0}, s{sW}, 10")
    a(f"v_lshl_add_u32 v{t3}, v{t1}, 7, v{t3}")
    a(f"v_add_u32 v{t3}, s{sT0}, v{t3}")
    a(f"v_lshlrev_b32 v{t2}, 2, v{t2}")
    a(f"s_mov_b32 s{sT0}, 0x3f803f80")
    a(f"v_mov_b32 v{vSum}, 0")
    a(f"v_mov_b32 v{vSq}, 0")
    a(f"v_mov_b32 v{vG}, 0")
    a("s_waitcnt vmcnt(0)")
    for d in range(28):
        a(f"v_dot2_f32_bf16 v{vSum}, v{vXr+d}, s{sT0}, v{vSum}")
        a(f"v_dot2_f32_bf16 v{vSq}, v{vXr+d}, v{vXr+d}, v{vSq}")
        a(f"v_dot2_f32_bf16 v{vG}, v{vXr+d}, v{vGr+d}, v{vG}")
    for d in range(28):
        a(f"v_lshlrev_b32 v{vU+2*d}, 16, v{vXr+d}")
        a(f"v_and_b32 v{vU+2*d+1}, 0xffff0000, v{vXr+d}")
    for v in (vSum, vSq, vG):
        a("s_nop 1")
        a(f"v_add_f32_dpp v{v}, v{v}, v{v} quad_perm:[1,0,3,2] row_mask:0xf bank_mask:0xf")
        a("s_nop 1")
        a(f"v_add_f32_dpp v{v}, v{v}, v{v} quad_perm:[2,3,0,1] row_mask:0xf bank_mask:0xf")
        a("s_nop 1")
        a(f"v_add_f32_dpp v{v}, v{v}, v{v} row_half_mirror row_mask:0xf bank_mask:0xf")
    a(f"v_mul_f32 v{vSum}, {f2u(1.0/448)}, v{vSum}")
    a(f"v_mul_f32 v{vSq}, {f2u(1.0/448)}, v{vSq}")
    a(f"v_fma_f32 v{vSq}, -v{vSum}, v{vSum}, v{vSq}")
    a(f"v_add_f32 v{vSq}, {f2u(1e-5)}, v{vSq}")
    a(f"v_rsq_f32 v{vSq}, v{vSq}")
    a(f"v_mul_f32 v{vG}, {f2u(-LOG2E)}, v{vG}")
    a(f"v_mul_f32 v{vSum}, v{vSum}, v{vSq}")
    a(f"v_exp_f32 v{vG}, v{vG}")
    for e in range(56):
        a(f"v_fma_f32 v{vU+e}, v{vU+e}, v{vSq}, -v{vSum}")
    a(f"v_add_f32 v{vG}, 1.0, v{vG}")
    a(f"v_rcp_f32 v{vG}, v{vG}")
    for d in range(28):
        a(f"v_cvt_pk_bf16_f32 v{vXr+d}, v{vU+2*d}, v{vU+2*d+1}")
    for j in range(7):
        a(f"ds_write_b128 v{t3}, {vr(vXr+4*j,4)} offset:{8192*j}")
    a(f"s_cmp_eq_u32 s{sHalf}, 0")
    a("s_cbranch_scc0 K1_w1_nog2")
    a(f"s_mov_b32 s{sT0}, {GOFF}")
    a(f"v_cmp_eq_u32 vcc, 0, v{t4}")
    a("s_and_saveexec_b64 s[58:59], vcc")
    a(f"buffer_store_dword v{vG}, v{t2}, {sr(SRD_WS,4)}, s{sT0} offen")
    a("s_mov_b64 exec, s[58:59]")
    a.label("K1_w1_nog2")
    a("s_waitcnt lgkmcnt(0)")
    stamp(a, SK)
    sG, sWi, sAo2, sWoff, sCnt, sWslot, sWg = 69, 70, 71, 72, 73, 74, 75
    a(f"s_lshr_b32 s{sG}, s{sW}, 2")
    a(f"s_and_b32 s{sWi}, s{sW}, 3")
    a(f"s_and_b32 s{sT0}, s{sWi}, 1")
    a(f"s_lshl_b32 s{sT0}, s{sT0}, 12")
    a(f"v_lshlrev_b32 v{t1}, 7, v{vI}")
    a(f"v_add_u32 v{t1}, s{sT0}, v{t1}")
    a(f"v_bfe_u32 v{t2}, v{vI}, 1, 3")
    for s in range(4):
        a(f"v_add_u32 v{t3}, {2*s}, v{vHF}")
        a(f"v_xor_b32 v{t3}, v{t3}, v{t2}")
        a(f"v_lshlrev_b32 v{t3}, 4, v{t3}")
        a(f"v_add_u32 v{vAr0+s}, v{t1}, v{t3}")
    a(f"s_lshr_b32 s{sT0}, s{sWi}, 1")
    a(f"s_lshl_b32 s{sT0}, s{sT0}, 13")
    a(f"s_add_u32 s{sT0}, s{sT0}, {W1_RING}")
    a(f"v_add_u32 v{vWr0}, s{sT0}, v{vWr0}")
    a(f"s_and_b32 s{sT1}, s{sWi}, 1")
    a(f"s_lshl_b32 s{sST}, s{sRB}, 1")
    a(f"s_add_u32 s{sST}, s{sST}, s{sT1}")
    a(f"s_mul_i32 s{sST}, s{sST}, {28*1024}")
    a(f"s_mul_i32 s{sT0}, s{sHalf}, {14*1024}")
    a(f"s_add_u32 s{sST}, s{sST}, s{sT0}")
    a(f"s_lshr_b32 s{sT0}, s{sWi}, 1")
    a(f"s_lshl_b32 s{sT0}, s{sT0}, 13")
    a(f"s_add_u32 s{sST}, s{sST}, s{sT0}")
    a(f"s_lshl_b32 s{sT0}, s{sG}, 12")
    a(f"s_add_u32 s{sST}, s{sST}, s{sT0}")
    a(f"s_add_u32 s{sST}, s{sST}, {HF}")
    a(f"v_lshlrev_b32 v{t1}, 4, v{vL}")
    a(f"s_mov_b32 s{sK1}, {f2u(GK1)}")
    a(f"v_mov_b32 v{vK0}, {f2u(GK0)}")

    def epi(t):
        A = vAcc + 16 * t
        L = gelu_list([A + r for r in range(16)], vTmp, vK0, sK1)
        for r in range(8):
            L.append(f"v_cvt_pk_bf16_f32 v{vP+r}, v{A+2*r}, v{A+2*r+1}")
        L.append(f"buffer_store_dwordx4 {vr(vP,4)}, v{t1}, {sr(SRD_WS,4)}, s{sST} offen offset:{2048*t}")
        L.append(f"buffer_store_dwordx4 {vr(vP+4,4)}, v{t1}, {sr(SRD_WS,4)}, s{sST} offen offset:{2048*t+1024}")
        L.append("s_nop 1")
        return L

    def setaddr():
        for s in range(4):
            a(f"v_add_u32 v{vAr+s}, s{sAo2}, v{vAr0+s}")
        a(f"v_add_u32 v{vWr}, s{sWoff}, v{vWr0}")
        a(f"s_add_u32 s{sAo2}, s{sAo2}, 8192")
        a(f"s_add_u32 s{sWoff}, s{sWoff}, {SLOT}")
        a(f"s_cmp_lt_u32 s{sWoff}, {NS*SLOT}")
        a(f"s_cselect_b32 s{sWoff}, s{sWoff}, 0")

    def rd_w(b, s, tt):
        o = tt * 4096 + s * 1024
        a(f"ds_read_b64_tr_b16 {vr(vWf+8*b+4*tt,2)}, v{vWr} offset:{o}")
        a(f"ds_read_b64_tr_b16 {vr(vWf+8*b+4*tt+2,2)}, v{vWr} offset:{o+256}")

    def rd_a(b, s):
        a(f"ds_read_b128 {vr(vAf+4*b,4)}, v{vAr+s}")

    a(f"s_mov_b32 s{sAo2}, 0")
    a(f"s_cmp_eq_u32 s{sG}, 0")
    a("s_cbranch_scc0 K1_w1_B")
    a(f"s_mov_b32 s{sWoff}, 0")
    a("s_barrier")
    setaddr()
    pass_loop(a, "K1A", vAf, vWf, vAcc, sCnt, setaddr, rd_a, rd_w, lambda post: None)
    stamp(a, SK)
    emit_with_barriers(a, ["s_nop 10"] + epi(0) + epi(1), 7)
    stamp(a, SK)
    stamp_flush(a, SK, 200)
    a("s_endpgm")
    a.label("K1_w1_B")
    for i in range(8):
        a("s_barrier")
    a(f"s_mov_b32 s{sWoff}, {(7%NS)*SLOT}")
    setaddr()
    pass_loop(a, "K1B", vAf, vWf, vAcc, sCnt, setaddr, rd_a, rd_w, lambda post: None)
    a("s_nop 10")
    for x in epi(0):
        a(x)
    a(f"s_cmp_lt_u32 s{sWi}, 2")
    a("s_cbranch_scc0 K1_w1_done")
    for x in epi(1):
        a(x)
    a.label("K1_w1_done")
    rt_end(a, "k1", "w1")
    a("s_endpgm")


def gen_k1(a):
    kernel_head(a, "k1_kernel")
    a("s_cmp_ge_u32 s2, 256")
    a("s_cbranch_scc1 K1_exit")
    rt_begin(a, "k1")
    load_ptrs(a)
    lane_consts(a, 1, 2, 3, 4, 17, 18, 8)
    a(f"v_lshrrev_b32 v17, 6, v0")
    a("s_nop 0")
    a(f"v_readfirstlane_b32 s60, v17")
    a("s_and_b32 s90, s2, 3")
    a("s_bfe_u32 s91, s2, 0x10002")
    a("s_lshr_b32 s92, s2, 3")
    a("s_waitcnt lgkmcnt(0)")
    a("s_cmp_lt_u32 s92, 24")
    a("s_cbranch_scc1 K1_qkv")
    w1_path(a)
    a.label("K1_qkv")
    qkv_path(a)
    a.label("K1_exit")
    a("s_endpgm")
```

```python
from gen import *
from gen_tp import *
from gen_k2 import STATS, CS3

K3_RING = 114688
K3_CS = K3_RING + 5 * 8192
K3_LDS = K3_CS + 1024


def gen_k3(a):
    kernel_head(a, "k3_kernel")
    a("s_cmp_ge_u32 s2, 224")
    a("s_cbranch_scc1 K3_exit")
    stamp(a, "k3")
    load_ptrs(a)
    sW, sT0, sT1, sRB, sCB, sWB, sMA, sK1, sST = 60, 61, 62, 63, 64, 65, 66, 68, 69
    sAoff, sWoff, sCnt, sWslot, sWg, sG = 70, 71, 72, 73, 74, 75
    vL, vHF, vI, vWr0 = 1, 2, 3, 4
    vWd, vD16, vWr, vAr0, vAr = 5, 6, 7, 11, 17
    t1, t2, t3 = 8, 9, 10
    vMean, vK0, vRstd, vCsA = 12, 13, 14, 15
    vAf = 20
    vWf = 36
    vAcc = 68
    vTmp = 100
    vP = 116
    vCs = 124
    vSt = 140
    lane_consts(a, vL, vHF, vI, vWr0, t1, t2, 4)
    a(f"v_lshrrev_b32 v{t1}, 6, v0")
    a(f"v_lshlrev_b32 v{vD16}, 4, v{vL}")
    a(f"v_readfirstlane_b32 s{sW}, v{t1}")
    a("s_waitcnt lgkmcnt(0)")
    make_srd(a, SRD_WS, P_WS, WS_SIZE)
    a(f"s_and_b32 s{sRB}, s2, 3")
    a(f"s_lshl_b32 s{sRB}, s{sRB}, 2")
    a(f"s_bfe_u32 s{sT0}, s2, 0x20003")
    a(f"s_add_u32 s{sRB}, s{sRB}, s{sT0}")
    a(f"s_bfe_u32 s{sCB}, s2, 0x10002")
    a(f"s_mul_i32 s{sCB}, s{sCB}, 7")
    a(f"s_lshr_b32 s{sT0}, s2, 5")
    a(f"s_add_u32 s{sCB}, s{sCB}, s{sT0}")
    a(f"s_mov_b32 s90, s{sRB}")
    a(f"s_mov_b32 s91, s{sCB}")
    a(f"s_lshr_b32 s{sG}, s{sW}, 2")
    a(f"s_and_b32 s{sW}, s{sW}, 3")
    a(f"s_lshl_b32 s{sRB}, s{sRB}, 2")
    a(f"s_add_u32 s{sRB}, s{sRB}, s{sW}")
    a(f"s_cmp_eq_u32 s{sG}, 0")
    a("s_cbranch_scc1 K3_common")
    make_srd(a, SRD_W, P_W3, 448 * 3584)
    a(f"s_lshl_b32 s{sWB}, s{sCB}, 8")
    a(f"s_mul_i32 s{sT0}, s{sW}, {16*3584}")
    a(f"s_add_u32 s{sWB}, s{sWB}, s{sT0}")
    a(f"s_lshl_b32 s{sMA}, s{sW}, 10")
    a(f"s_add_u32 s{sMA}, s{sMA}, {K3_RING}")
    a(f"v_lshrrev_b32 v{t1}, 2, v{vL}")
    a(f"v_mul_u32_u24 v{t1}, 3584, v{t1}")
    a(f"v_and_b32 v{t2}, 3, v{vL}")
    a(f"v_lshlrev_b32 v{t2}, 4, v{t2}")
    a(f"v_add_u32 v{vWd}, v{t1}, v{t2}")
    a(f"s_mul_i32 s{sT1}, s{sRB}, {28*1024}")
    a(f"s_add_u32 s{sT1}, s{sT1}, {X1F}")
    a(f"s_mul_i32 s{sAoff}, s{sW}, 28672")
    ops = []

    def issue(i):
        p, c = divmod(i, 7)
        if p == 0:
            a(f"s_add_u32 m0, s{sAoff}, {4096*c}")
            a(f"s_add_u32 s{sT0}, s{sT1}, {4096*c}")
            for s in range(4):
                a(f"buffer_load_dwordx4 v{vD16}, {sr(SRD_WS,4)}, s{sT0} offen offset:{1024*s} lds")
                ops.append(i)
        for tt in range(2):
            t = 2 * p + tt
            a(f"s_add_u32 m0, s{sMA}, {(i%5)*8192 + tt*4096}")
            a(f"s_add_u32 s{sT0}, s{sWB}, {64*c*3584 + 64*t}")
            a(f"buffer_load_dwordx4 v{vWd}, {sr(SRD_W,4)}, s{sT0} offen lds")
            ops.append(i)
    for i in range(3):
        issue(i)
    a(f"s_lshl_b32 s{sT0}, s{sCB}, 9")
    a(f"s_add_u32 s{sT0}, s{sT0}, {CS3}")
    a(f"s_mov_b32 m0, {K3_CS}")
    a("s_nop 0")
    a(f"buffer_load_dwordx4 v{vD16}, {sr(SRD_WS,4)}, s{sT0} offen lds")
    ops.append(99)
    a.label("K3_common")
    a(f"s_lshl_b32 s{sT0}, s{sRB}, 5")
    a(f"v_add_u32 v{t1}, s{sT0}, v{vI}")
    a(f"v_mul_u32_u24 v{t1}, 112, v{t1}")
    a(f"s_mov_b32 s{sT0}, {STATS}")
    for q in range(7):
        a(f"buffer_load_dwordx4 {vr(vSt+4*q,4)}, v{t1}, {sr(SRD_WS,4)}, s{sT0} offen offset:{16*q}")
        ops.append(99)
    a(f"v_lshlrev_b32 v{vCsA}, 4, v{vHF}")
    a(f"s_lshl_b32 s{sT0}, s{sG}, 8")
    a(f"s_add_u32 s{sT0}, s{sT0}, {K3_CS}")
    a(f"v_add_u32 v{vCsA}, s{sT0}, v{vCsA}")
    a(f"s_mul_i32 s{sST}, s{sRB}, {112*1024}")
    a(f"s_lshl_b32 s{sT0}, s{sCB}, 13")
    a(f"s_add_u32 s{sST}, s{sST}, s{sT0}")
    a(f"s_lshl_b32 s{sT0}, s{sG}, 12")
    a(f"s_add_u32 s{sST}, s{sST}, s{sT0}")
    a(f"s_add_u32 s{sST}, s{sST}, {H2F}")
    a(f"s_mov_b32 s{sK1}, {f2u(GK1)}")
    a(f"v_mov_b32 v{vK0}, {f2u(GK0)}")
    a(f"s_mul_i32 s{sT0}, s{sW}, 28672")
    a(f"v_add_u32 v{vAr0}, s{sT0}, v{vD16}")
    a(f"v_add_u32 v{vWr0}, {K3_RING}, v{vWr0}")

    sAo2 = 76 if not STAMP else 100
    def setaddr():
        a(f"v_add_u32 v{vAr}, s{sAo2}, v{vAr0}")
        a(f"v_add_u32 v{vWr}, s{sWoff}, v{vWr0}")
        a(f"s_add_u32 s{sAo2}, s{sAo2}, 4096")
        a(f"s_add_u32 s{sWoff}, s{sWoff}, 8192")
        a(f"s_cmp_lt_u32 s{sWoff}, {5*8192}")
        a(f"s_cselect_b32 s{sWoff}, s{sWoff}, 0")

    def rd_a(b, s):
        a(f"ds_read_b128 {vr(vAf+4*b,4)}, v{vAr} offset:{1024*s}")

    def rd_w(b, s, tt):
        o = tt * 4096 + s * 1024
        a(f"ds_read_b64_tr_b16 {vr(vWf+8*b+4*tt,2)}, v{vWr} offset:{o}")
        a(f"ds_read_b64_tr_b16 {vr(vWf+8*b+4*tt+2,2)}, v{vWr} offset:{o+512}")

    def epilogue():
        L = ["s_waitcnt vmcnt(0)"]
        for q in range(1, 14):
            L.append(f"v_add_f32 v{vSt}, v{vSt}, v{vSt+2*q}")
            L.append(f"v_add_f32 v{vSt+1}, v{vSt+1}, v{vSt+2*q+1}")
        L.append(f"v_mul_f32 v{vMean}, {f2u(1.0/448)}, v{vSt}")
        L.append(f"v_mul_f32 v{vRstd}, {f2u(1.0/448)}, v{vSt+1}")
        L.append(f"v_fma_f32 v{vRstd}, -v{vMean}, v{vMean}, v{vRstd}")
        L.append(f"v_add_f32 v{vRstd}, {f2u(1e-5)}, v{vRstd}")
        L.append(f"v_rsq_f32 v{vRstd}, v{vRstd}")
        for t in range(2):
            A = vAcc + 16 * t
            L += [f"ds_read_b128 {vr(vCs+4*q,4)}, v{vCsA} offset:{128*t+32*q}" for q in range(4)]
            L.append("s_waitcnt lgkmcnt(0)")
            for r in range(16):
                L.append(f"v_fma_f32 v{A+r}, -v{vMean}, v{vCs+r}, v{A+r}")
            for r in range(16):
                L.append(f"v_mul_f32 v{A+r}, v{vRstd}, v{A+r}")
            L += gelu_list([A + r for r in range(16)], vTmp, vK0, sK1)
            for r in range(8):
                L.append(f"v_cvt_pk_bf16_f32 v{vP+r}, v{A+2*r}, v{A+2*r+1}")
            L.append(f"buffer_store_dwordx4 {vr(vP,4)}, v{vD16}, {sr(SRD_WS,4)}, s{sST} offen offset:{2048*t} sc1")
            L.append(f"buffer_store_dwordx4 {vr(vP+4,4)}, v{vD16}, {sr(SRD_WS,4)}, s{sST} offen offset:{2048*t+1024} sc1")
            L.append("s_nop 1")
        return L

    a(f"s_mov_b32 s{sAo2}, 0")
    a(f"s_cmp_eq_u32 s{sG}, 0")
    a("s_cbranch_scc0 K3_B")
    if 'k3pf' in os.environ.get('PF',''):
        make_srd(a, SRD_W, P_W3, 448 * 3584)
        a(f"s_lshr_b32 s{sT1}, s2, 3")
        a(f"s_lshl_b32 s{sT1}, s{sT1}, 2")
        a(f"s_add_u32 s{sT1}, s{sT1}, s{sW}")
        l2_prefetch(a, SRD_W, 448 * 3584, sT1, 112, vD16, vTmp, sT0)
    a(f"s_mov_b32 s{sWoff}, 0")
    stamp(a, "k3")
    a("s_barrier")
    stamp(a, "k3")
    setaddr()
    pass_loop(a, "K3A", vAf, vWf, vAcc, sCnt, setaddr, rd_a, rd_w, lambda post: None)
    stamp(a, "k3")
    emit_with_barriers(a, epilogue(), 7)
    a("s_barrier")
    stamp(a, "k3")
    a("s_branch K34_publish")
    a.label("K3_B")
    def wait_for(i):
        last = max(k for k, t in enumerate(ops) if t == i)
        a(f"s_waitcnt vmcnt({len(ops)-1-last})")
    for i in range(8):
        wait_for(i)
        a("s_barrier")
        issue(i + 3)
    a(f"s_mov_b32 s{sWoff}, {(7%5)*8192}")
    a(f"s_mov_b32 s{sWslot}, {(11%5)*8192}")
    a(f"s_add_u32 s{sWg}, s{sWB}, {64*4*3584 + 128}")
    setaddr()

    def atb(post):
        if not post:
            a(f"s_cmp_lt_u32 s{sCnt}, 4")
            a("s_cbranch_scc1 K3B_w4")
            a("s_waitcnt vmcnt(0)")
            a.label("K3B_w4")
            a("s_waitcnt vmcnt(4)")
        else:
            a(f"s_cmp_lt_u32 s{sCnt}, 3")
            a("s_cbranch_scc0 K3B_noiss")
            a(f"s_add_u32 m0, s{sMA}, s{sWslot}")
            a(f"s_add_u32 s{sT0}, s{sWg}, 64")
            a(f"buffer_load_dwordx4 v{vWd}, {sr(SRD_W,4)}, s{sWg} offen lds")
            a(f"s_add_u32 m0, m0, 4096")
            a(f"s_add_u32 s{sWg}, s{sWg}, {64*3584}")
            a(f"buffer_load_dwordx4 v{vWd}, {sr(SRD_W,4)}, s{sT0} offen lds")
            a(f"s_add_u32 s{sWslot}, s{sWslot}, 8192")
            a(f"s_cmp_lt_u32 s{sWslot}, {5*8192}")
            a(f"s_cselect_b32 s{sWslot}, s{sWslot}, 0")
            a.label("K3B_noiss")
    pass_loop(a, "K3B", vAf, vWf, vAcc, sCnt, setaddr, rd_a, rd_w, atb)
    a("s_barrier")
    a("s_nop 10")
    for x in epilogue():
        a(x)
    a.label("K34_publish")
    import gen_k4
    gen_k4.phase2(a, sG, sW)
    a.label("K3_exit")
    a("s_endpgm")
```

```python
from gen import *

K4_LDS = 4 * 32768


def phase2(a, sGin, sWin):
    sW, sT0, sT1, sRB, sCB = 60, 61, 62, 63, 64
    sAg, sWg, sSlotW, sSlotR, sC, sMA, sMW = 65, 66, 67, 68, 69, 70, 71
    sAo, sWo, sG = 72, 73, 75
    vL, vHF, vI, vWr0 = 1, 2, 3, 4
    vWd, vD16, vWr, vAr0, vAr = 5, 6, 7, 8, 9
    t1, t2, t3 = 10, 11, 12
    vG = 13
    vX1 = 16
    vAf = 24
    vWf = 56
    vAccB = 88
    vAccA = 104
    vP = 120
    assert sGin == sG and sWin == sW
    sP, sMask, sCnt2 = 74, 76 if not STAMP else 100, 77 if not STAMP else 101
    lane_consts(a, vL, vHF, vI, vWr0, t1, t2, 4)
    a(f"s_and_b32 s{sRB}, s2, 31")
    a(f"s_lshr_b32 s{sCB}, s2, 5")
    a(f"s_cmp_eq_u32 s{sG}, 0")
    a("s_cbranch_scc0 K4_comp")
    make_srd(a, SRD_W, P_W4, 1792 * 896)
    make_srd(a, SRD_E, P_WO, 448 * 896)
    a(f"s_lshr_b32 s{sC}, s{sRB}, 1")
    a(f"s_lshl_b32 s{sC}, s{sC}, 8")
    a(f"s_add_u32 s{sC}, s{sC}, {FLAGS}")
    a(f"s_and_b32 s{sT0}, s{sW}, 1")
    a(f"s_lshr_b32 s{sT1}, s{sW}, 1")
    a(f"s_lshl_b32 s{sMA}, s{sT0}, 13")
    a(f"s_lshl_b32 s{sMW}, s{sT1}, 12")
    a(f"s_add_u32 s{sMA}, s{sMA}, s{sMW}")
    a(f"s_add_u32 s{sMW}, s{sMA}, 16384")
    a(f"s_lshl_b32 s{sAg}, s{sRB}, 1")
    a(f"s_add_u32 s{sAg}, s{sAg}, s{sT0}")
    a(f"s_lshl_b32 s{sAo}, s{sAg}, 15")
    a(f"s_mul_i32 s{sAg}, s{sAg}, {112*1024}")
    a(f"s_lshl_b32 s{sWg}, s{sT1}, 12")
    a(f"s_add_u32 s{sAg}, s{sAg}, s{sWg}")
    a(f"s_add_u32 s{sAo}, s{sAo}, s{sWg}")
    a(f"s_add_u32 s{sAg}, s{sAg}, {H2F}")
    a(f"s_add_u32 s{sAo}, s{sAo}, {OF}")
    a(f"s_lshl_b32 s{sWg}, s{sCB}, 1")
    a(f"s_add_u32 s{sWg}, s{sWg}, s{sT0}")
    a(f"s_lshl_b32 s{sWg}, s{sWg}, 6")
    a(f"s_mul_i32 s{sWo}, s{sT1}, {56*896}")
    a(f"s_add_u32 s{sWo}, s{sWo}, s{sWg}")
    a(f"s_mul_i32 s{sT1}, s{sT1}, {64*896}")
    a(f"s_add_u32 s{sWg}, s{sWg}, s{sT1}")
    a(f"v_lshrrev_b32 v{t1}, 2, v{vL}")
    a(f"v_mul_u32_u24 v{t1}, 896, v{t1}")
    a(f"v_and_b32 v{t2}, 3, v{vL}")
    a(f"v_lshlrev_b32 v{t2}, 4, v{t2}")
    a(f"v_add_u32 v{vWd}, v{t1}, v{t2}")
    a(f"s_mov_b32 s{sP}, 0")
    a(f"s_mov_b32 s{sMask}, 0")
    a(f"v_mov_b32 v{t3}, 0")

    pl = [0]
    def issue(kind):
        if kind == 'wo':
            sA, sWW, srd, sc = sAo, sWo, SRD_E, ""
        else:
            pl[0] += 1
            n = pl[0]
            sA, sWW, srd, sc = 78 if not STAMP else 98, 79 if not STAMP else 99, SRD_W, " sc1"
            a(f"s_lshl_b32 s{sT0}, s{sP}, 13")
            a(f"s_add_u32 s{sA}, s{sAg}, s{sT0}")
            a(f"s_mul_i32 s{sT0}, s{sP}, {128*896}")
            a(f"s_add_u32 s{sWW}, s{sWg}, s{sT0}")
            a(f"s_add_u32 s{sP}, s{sP}, 1")
            a(f"s_cmp_lt_u32 s{sP}, 14")
            a(f"s_cselect_b32 s{sP}, s{sP}, 0")
        a(f"s_add_u32 s{sT1}, s{sMW}, s{sSlotW}")
        for j in range(4):
            a(f"s_add_u32 m0, s{sT1}, {1024*j}")
            ro = 16 * j if kind == 'w4' else 28 * (j >> 1) + 16 * (j & 1)
            a(f"s_add_u32 s{sT0}, s{sWW}, {ro*896}")
            a(f"buffer_load_dwordx4 v{vWd}, {sr(srd,4)}, s{sT0} offen lds")
        a(f"s_add_u32 m0, s{sMA}, s{sSlotW}")
        a("s_nop 0")
        for j in range(4):
            a(f"buffer_load_dwordx4 v{vD16}, {sr(SRD_WS,4)}, s{sA} offen offset:{1024*j}{sc} lds")
        if kind == 'wo':
            a(f"s_add_u32 s{sA}, s{sA}, 8192")
            a(f"s_add_u32 s{sWW}, s{sWW}, {112*896}")
        a(f"s_add_u32 s{sSlotW}, s{sSlotW}, 32768")
        a(f"s_and_b32 s{sSlotW}, s{sSlotW}, 0x1ffff")

    a(f"s_mov_b32 s{sSlotW}, 0")
    for c in range(3):
        issue('wo')
    a("s_waitcnt vmcnt(16)")
    a("s_barrier")
    issue('wo')
    a(f"s_cmp_eq_u32 s{sW}, 0")
    a("s_cbranch_scc0 K4_ready")
    a(f"s_mov_b32 s{sCnt2}, 0")
    a.label("K4_poll")
    a(f"buffer_load_dword v{t1}, v{t3}, {sr(SRD_WS,4)}, s{sC} offen sc1")
    a("s_waitcnt vmcnt(0)")
    a(f"v_readfirstlane_b32 s{sMask}, v{t1}")
    a(f"s_add_u32 s{sCnt2}, s{sCnt2}, 1")
    a(f"s_cmp_eq_u32 s{sMask}, 0x3fff")
    a("s_cbranch_scc1 K4_ready")
    a("s_sleep 4")
    a(f"s_cmp_lt_u32 s{sCnt2}, 0x80000")
    a("s_cbranch_scc1 K4_poll")
    a.label("K4_ready")
    a(f"s_mov_b32 s{sSlotR}, 1")
    a.label("K4_ld1")
    a("s_waitcnt vmcnt(16)")
    a("s_barrier")
    issue('w4')
    a(f"s_add_u32 s{sSlotR}, s{sSlotR}, 1")
    a(f"s_cmp_lt_u32 s{sSlotR}, 15")
    a("s_cbranch_scc1 K4_ld1")
    for n in (16, 8, 0):
        a(f"s_waitcnt vmcnt({n})")
        a("s_barrier")
    stamp(a, "k3")
    stamp_flush(a, "k3", 5)
    a("s_endpgm")

    a.label("K4_comp")
    a(f"s_lshl_b32 s{sT0}, s{sRB}, 1")
    a(f"s_and_b32 s{sT1}, s{sW}, 1")
    a(f"s_add_u32 s{sT0}, s{sT0}, s{sT1}")
    a(f"s_lshl_b32 s{sT1}, s{sT0}, 7")
    a(f"s_add_u32 s{sT1}, s{sT1}, {GOFF}")
    a(f"v_lshlrev_b32 v{t1}, 2, v{vI}")
    a(f"buffer_load_dword v{vG}, v{t1}, {sr(SRD_WS,4)}, s{sT1} offen")
    a(f"s_mul_i32 s{sT0}, s{sT0}, {28*1024}")
    a(f"s_lshl_b32 s{sT1}, s{sCB}, 12")
    a(f"s_add_u32 s{sT0}, s{sT0}, s{sT1}")
    a(f"s_lshr_b32 s{sT1}, s{sW}, 1")
    a(f"s_lshl_b32 s{sT1}, s{sT1}, 11")
    a(f"s_add_u32 s{sT0}, s{sT0}, s{sT1}")
    a(f"s_add_u32 s{sT0}, s{sT0}, {X1F}")
    a(f"buffer_load_dwordx4 {vr(vX1,4)}, v{vD16}, {sr(SRD_WS,4)}, s{sT0} offen")
    a(f"buffer_load_dwordx4 {vr(vX1+4,4)}, v{vD16}, {sr(SRD_WS,4)}, s{sT0} offen offset:1024")
    a(f"s_and_b32 s{sT0}, s{sW}, 1")
    a(f"s_lshl_b32 s{sT0}, s{sT0}, 13")
    a(f"v_add_u32 v{vAr0}, s{sT0}, v{vD16}")
    a(f"s_lshr_b32 s{sT0}, s{sW}, 1")
    a(f"s_lshl_b32 s{sT0}, s{sT0}, 13")
    a(f"s_add_u32 s{sT0}, s{sT0}, 16384")
    a(f"v_add_u32 v{vWr0}, s{sT0}, v{vWr0}")

    def compute(acc):
        a(f"v_add_u32 v{vAr}, s{sSlotR}, v{vAr0}")
        a(f"v_add_u32 v{vWr}, s{sSlotR}, v{vWr0}")
        for s in range(8):
            a(f"ds_read_b128 {vr(vAf+4*s,4)}, v{vAr} offset:{1024*s}")
            a(f"ds_read_b64_tr_b16 {vr(vWf+4*s,2)}, v{vWr} offset:{1024*s}")
            a(f"ds_read_b64_tr_b16 {vr(vWf+4*s+2,2)}, v{vWr} offset:{1024*s+512}")
            if s >= 3:
                a(f"s_waitcnt lgkmcnt(9)")
                q = s - 3
                a(f"v_mfma_f32_32x32x16_bf16 {vr(acc,16)}, {vr(vWf+4*q,4)}, {vr(vAf+4*q,4)}, {vr(acc,16)}")
        for q in range(5, 8):
            a(f"s_waitcnt lgkmcnt({3*(7-q)})")
            a(f"v_mfma_f32_32x32x16_bf16 {vr(acc,16)}, {vr(vWf+4*q,4)}, {vr(vAf+4*q,4)}, {vr(acc,16)}")
        a(f"s_add_u32 s{sSlotR}, s{sSlotR}, 32768")
        a(f"s_and_b32 s{sSlotR}, s{sSlotR}, 0x1ffff")

    a(f"s_mov_b32 s{sSlotR}, 0")
    for r in range(16):
        a(f"v_mov_b32 v{vAccB+r}, 0")
        a(f"v_mov_b32 v{vAccA+r}, 0")
    a(f"s_mov_b32 s{sC}, 0")
    a("s_waitcnt vmcnt(0)")
    a("s_barrier")
    a(f"s_cmp_eq_u32 s{sW}, 0")
    a("s_cbranch_scc0 K4_nopub")
    a(f"s_lshl_b32 s{sT1}, s90, 8")
    a(f"s_add_u32 s{sT1}, s{sT1}, {FLAGS}")
    a(f"s_lshl_b32 s{sT0}, 1, s91")
    a(f"v_mov_b32 v{t1}, s{sT0}")
    a(f"v_mov_b32 v{t2}, 0")
    a(f"v_cmp_eq_u32 vcc, 0, v{vL}")
    a(f"s_and_saveexec_b64 s[52:53], vcc")
    a(f"buffer_atomic_or v{t1}, v{t2}, {sr(SRD_WS,4)}, s{sT1} offen sc1")
    a("s_mov_b64 exec, s[52:53]")
    a.label("K4_nopub")
    make_srd(a, SRD_F, P_OUT, 2048 * 896)
    a("s_branch K4_c2b")
    a.label("K4_c2")
    a("s_barrier")
    a.label("K4_c2b")
    compute(vAccA)
    a(f"s_add_u32 s{sC}, s{sC}, 1")
    a(f"s_cmp_lt_u32 s{sC}, 4")
    a("s_cbranch_scc1 K4_c2")
    a.label("K4_c1")
    a("s_barrier")
    compute(vAccB)
    a(f"s_add_u32 s{sC}, s{sC}, 1")
    a(f"s_cmp_lt_u32 s{sC}, 18")
    a("s_cbranch_scc1 K4_c1")
    a("s_waitcnt vmcnt(0)")
    a("s_nop 12")
    a(f"v_sub_f32 v{t3}, 1.0, v{vG}")
    for r in range(8):
        x = vX1 + r
        a(f"v_lshlrev_b32 v{t1}, 16, v{x}")
        a(f"v_and_b32 v{t2}, 0xffff0000, v{x}")
        a(f"v_add_f32 v{vAccB+2*r}, v{vAccB+2*r}, v{t1}")
        a(f"v_add_f32 v{vAccB+2*r+1}, v{vAccB+2*r+1}, v{t2}")
    for r in range(16):
        a(f"v_mul_f32 v{vAccB+r}, v{vAccB+r}, v{t3}")
    for r in range(16):
        a(f"v_fmac_f32 v{vAccB+r}, v{vAccA+r}, v{vG}")
    for r in range(8):
        a(f"v_cvt_pk_bf16_f32 v{vP+r}, v{vAccB+2*r}, v{vAccB+2*r+1}")
    a(f"s_lshl_b32 s{sT0}, s{sRB}, 6")
    a(f"s_and_b32 s{sT1}, s{sW}, 1")
    a(f"s_lshl_b32 s{sT1}, s{sT1}, 5")
    a(f"s_add_u32 s{sT0}, s{sT0}, s{sT1}")
    a(f"v_add_u32 v{t1}, s{sT0}, v{vI}")
    a(f"v_mul_u32_u24 v{t1}, 896, v{t1}")
    a(f"v_lshl_add_u32 v{t1}, v{vHF}, 3, v{t1}")
    a(f"s_lshl_b32 s{sT0}, s{sCB}, 7")
    a(f"s_lshr_b32 s{sT1}, s{sW}, 1")
    a(f"s_lshl_b32 s{sT1}, s{sT1}, 6")
    a(f"s_add_u32 s{sT0}, s{sT0}, s{sT1}")
    for q in range(4):
        a(f"buffer_store_dwordx2 {vr(vP+2*q,2)}, v{t1}, {sr(SRD_F,4)}, s{sT0} offen offset:{16*q}")
```

```python
import struct, sys

MB = 1 << 20
QF, KF, VF, HF, GOFF, OF, X1F, H2F = 0, 2 * MB, 4 * MB, 6 * MB, 8 * MB, 9 * MB, 11 * MB, 13 * MB
WS_SIZE = 32 * MB
FLAGS = 23 * MB
F12 = 23 * MB + 65536
TOK_LDS = 155648
HF_SIZE = 64 * 28 * 1024

def f2u(x):
    return struct.unpack("<I", struct.pack("<f", x))[0]

LOG2E = 1.4426950408889634
QSCALE = (28 ** -0.5) * LOG2E
GK0 = -2.0 * 0.7978845608028654 * LOG2E
GK1 = GK0 * 0.044715


class Asm:
    def __init__(self):
        self.lines = []
    def __call__(self, s):
        self.lines.append("    " + s)
    def label(self, l):
        self.lines.append(l + ":")
    def raw(self, s):
        self.lines.append(s)
    def text(self):
        return "\n".join(self.lines) + "\n"


def vr(b, n):
    return f"v[{b}:{b+n-1}]"

def sr(b, n):
    return f"s[{b}:{b+n-1}]"

S_PTR = 16
P_X, P_WQKV, P_WO, P_BX, P_W1, P_W2, P_W3, P_W4 = 16, 18, 20, 22, 24, 26, 28, 30
P_GATE, P_OUT, P_DBG, P_WS = 32, 34, 36, 38
SRD_A, SRD_W, SRD_WS, SRD_E = 40, 44, 48, 52
SRD_F = 56


def kernel_head(a, name):
    a.raw(f".globl {name}")
    a.raw(".p2align 8")
    a.raw(f".type {name},@function")
    a.label(name)


def load_ptrs(a):
    a(f"s_load_dwordx16 s[16:31], s[0:1], 0")
    a(f"s_load_dwordx8 s[32:39], s[0:1], 64")


def make_srd(a, srd, ptr, size, off=0):
    if off:
        a(f"s_add_u32 s{srd}, s{ptr}, {off}")
        a(f"s_addc_u32 s{srd+1}, s{ptr+1}, 0")
    else:
        a(f"s_mov_b32 s{srd}, s{ptr}")
        a(f"s_mov_b32 s{srd+1}, s{ptr+1}")
    a(f"s_mov_b32 s{srd+2}, {size}")
    a(f"s_mov_b32 s{srd+3}, 0x00020000")


def xhalf_sum(a, v, t):
    a(f"v_mov_b32 v{t}, v{v}")
    a("s_nop 1")
    a(f"v_permlane32_swap_b32 v{v}, v{t}")
    a(f"v_add_f32 v{v}, v{v}, v{t}")


def gelu_inplace(a, x, t1, t2, sk0, sk1):
    a(f"v_mul_f32 v{t1}, v{x}, v{x}")
    a(f"v_mov_b32 v{t2}, s{sk0}")
    a(f"v_fmac_f32 v{t2}, s{sk1}, v{t1}")
    a(f"v_mul_f32 v{t2}, v{t2}, v{x}")
    a(f"v_exp_f32 v{t2}, v{t2}")
    a("s_nop 0")
    a(f"v_add_f32 v{t2}, 1.0, v{t2}")
    a(f"v_rcp_f32 v{t2}, v{t2}")
    a("s_nop 0")
    a(f"v_mul_f32 v{x}, v{x}, v{t2}")


def gelu_block(a, regs, tmp, sk0, sk1):
    n = len(regs)
    for i, x in enumerate(regs):
        a(f"v_mul_f32 v{tmp+i}, v{x}, v{x}")
    for i, x in enumerate(regs):
        a(f"v_fma_f32 v{tmp+i}, v{tmp+i}, s{sk1}, v{sk0}")
    for i, x in enumerate(regs):
        a(f"v_mul_f32 v{tmp+i}, v{tmp+i}, v{x}")
    for i, x in enumerate(regs):
        a(f"v_exp_f32 v{tmp+i}, v{tmp+i}")
    for i, x in enumerate(regs):
        a(f"v_add_f32 v{tmp+i}, 1.0, v{tmp+i}")
    for i, x in enumerate(regs):
        a(f"v_rcp_f32 v{tmp+i}, v{tmp+i}")
    for i, x in enumerate(regs):
        a(f"v_mul_f32 v{x}, v{x}, v{tmp+i}")


def lane_consts(a, vL, vHF, vI, vWr, t1, t2, khalf_rows):
    a(f"v_and_b32 v{vL}, 63, v0")
    a(f"v_lshrrev_b32 v{vHF}, 5, v{vL}")
    a(f"v_and_b32 v{vI}, 31, v{vL}")
    a(f"v_bfe_u32 v{t1}, v{vL}, 2, 2")
    a(f"v_mul_u32_u24 v{t2}, {khalf_rows}, v{vHF}")
    a(f"v_add_u32 v{t1}, v{t1}, v{t2}")
    a(f"v_lshlrev_b32 v{vWr}, 6, v{t1}")
    a(f"v_bfe_u32 v{t1}, v{vL}, 4, 1")
    a(f"v_lshlrev_b32 v{t1}, 5, v{t1}")
    a(f"v_and_b32 v{t2}, 3, v{vL}")
    a(f"v_lshlrev_b32 v{t2}, 3, v{t2}")
    a(f"v_add3_u32 v{vWr}, v{vWr}, v{t1}, v{t2}")


K1_SLOT = 36864
K1_GATE = 4 * K1_SLOT
K1_SCR = K1_GATE + 1024
K1_LDS = K1_SCR + 2048


def k1_path(a, kind):
    w1 = kind == 'w1'
    sW, sT0, sT1, sMA, sWB, sRB, sONE = 60, 61, 62, 63, 64, 65, 66
    sK1 = 67
    vL, vHF, vI, vWr0 = 1, 2, 3, 4
    vAe, vAo, vWd = 5, 6, 7
    vAr0 = 8
    vAr = 12
    vWr = 16
    t1, t2, t3 = 17, 18, 19
    vSum, vSq, vG = 20, 21, 22
    vCs = 24
    vAf = 28
    vGf = 36
    vWf = 44
    vAcc = 76
    vTmp = 140
    vCsr = 156
    vK0 = 172
    ntile = 4
    rowstride = 896 if w1 else 2688
    areg = 8192 if w1 else 16384

    SK = "k1" + kind
    stamp(a, SK)
    make_srd(a, SRD_A, P_X, 2048 * 896)
    if w1:
        make_srd(a, SRD_W, P_W1, 448 * 896)
        make_srd(a, SRD_E, P_GATE, 896)
    else:
        make_srd(a, SRD_W, P_WQKV, 448 * 2688)
    make_srd(a, SRD_WS, P_WS, WS_SIZE)
    lane_consts(a, vL, vHF, vI, vWr0, t1, t2, 8)
    a(f"v_lshrrev_b32 v{t1}, 6, v0")
    a("s_nop 0")
    a(f"v_readfirstlane_b32 s{sW}, v{t1}")
    a(f"s_mov_b32 s{sONE}, 0x3f803f80")
    if w1:
        a(f"s_sub_u32 s{sT0}, s2, 192")
        a(f"s_and_b32 s{sRB}, s{sT0}, 31")
        a(f"s_lshr_b32 s{sT1}, s{sT0}, 5")
        a(f"s_lshl_b32 s{sT0}, s{sRB}, 6")
        a(f"s_lshl_b32 s{sMA}, s{sW}, 4")
        a(f"s_add_u32 s{sT0}, s{sT0}, s{sMA}")
        a(f"s_lshl_b32 s{sMA}, s{sW}, 11")
        a(f"s_mul_i32 s{sWB}, s{sW}, {16*896}")
        a(f"s_mul_i32 s{sT1}, s{sT1}, 448")
        a(f"s_add_u32 s{sWB}, s{sWB}, s{sT1}")
    else:
        a(f"s_and_b32 s{sRB}, s2, 15")
        a(f"s_lshr_b32 s{sT1}, s2, 4")
        a(f"s_lshl_b32 s{sT0}, s{sRB}, 7")
        a(f"s_lshl_b32 s{sMA}, s{sW}, 5")
        a(f"s_add_u32 s{sT0}, s{sT0}, s{sMA}")
        a(f"s_lshl_b32 s{sMA}, s{sW}, 12")
        a(f"s_mul_i32 s{sWB}, s{sT1}, 224")
        a(f"s_mul_i32 s{sT1}, s{sW}, 56")
        a(f"s_add_u32 s{sWB}, s{sWB}, s{sT1}")
    a(f"v_lshrrev_b32 v{t1}, 3, v{vL}")
    a(f"v_add_u32 v{t1}, s{sT0}, v{t1}")
    a(f"v_mul_u32_u24 v{t1}, 896, v{t1}")
    a(f"v_and_b32 v{t2}, 7, v{vL}")
    a(f"v_lshrrev_b32 v{t3}, 4, v{vL}")
    a(f"v_xor_b32 v{t2}, v{t2}, v{t3}")
    a(f"v_lshlrev_b32 v{t2}, 4, v{t2}")
    a(f"v_add_u32 v{vAe}, v{t1}, v{t2}")
    a(f"v_xor_b32 v{t2}, 64, v{t2}")
    a(f"v_add_u32 v{t1}, 7168, v{t1}")
    a(f"v_add_u32 v{vAo}, v{t1}, v{t2}")
    a(f"v_lshrrev_b32 v{t1}, 2, v{vL}")
    a(f"v_mul_u32_u24 v{t1}, {rowstride}, v{t1}")
    a(f"v_and_b32 v{t2}, 3, v{vL}")
    a(f"v_lshlrev_b32 v{t2}, 4, v{t2}")
    a(f"v_add_u32 v{vWd}, v{t1}, v{t2}")
    if w1:
        a(f"s_and_b32 s{sT0}, s{sW}, 1")
        a(f"s_lshl_b32 s{sT0}, s{sT0}, 12")
    else:
        a(f"s_lshl_b32 s{sT0}, s{sW}, 12")
    a(f"v_lshlrev_b32 v{t1}, 7, v{vI}")
    a(f"v_add_u32 v{t1}, s{sT0}, v{t1}")
    a(f"v_bfe_u32 v{t2}, v{vI}, 1, 3")
    for s in range(4):
        a(f"v_add_u32 v{t3}, {2*s}, v{vHF}")
        a(f"v_xor_b32 v{t3}, v{t3}, v{t2}")
        a(f"v_lshlrev_b32 v{t3}, 4, v{t3}")
        a(f"v_add_u32 v{vAr0+s}, v{t1}, v{t3}")
    if w1:
        a(f"s_lshr_b32 s{sT0}, s{sW}, 1")
        a(f"s_lshl_b32 s{sT0}, s{sT0}, 14")
        a(f"v_add_u32 v{vWr0}, s{sT0}, v{vWr0}")
        a(f"v_mov_b32 v{vSum}, 0")
        a(f"v_mov_b32 v{vSq}, 0")
        a(f"v_mov_b32 v{vG}, 0")
        for t in range(4):
            a(f"v_mov_b32 v{vCs+t}, 0")
        a(f"v_lshlrev_b32 v{t1}, 4, v{vL}")
        a(f"s_mov_b32 m0, {K1_GATE}")
        a("s_nop 0")
        a(f"buffer_load_dwordx4 v{t1}, {sr(SRD_E,4)}, 0 offen lds")
        a(f"v_lshlrev_b32 v{t2}, 4, v{vHF}")
        a(f"v_add_u32 v{vK0}, {K1_GATE}, v{t2}")

    ndma = 9 if w1 else 8

    def issue(c):
        sl = (c % 4) * K1_SLOT
        if w1:
            for qq in range(2):
                a(f"s_add_u32 m0, s{sMA}, {sl + qq*1024}")
                a(f"s_mov_b32 s{sT0}, {128*c}")
                a(f"buffer_load_dwordx4 v{vAo if qq else vAe}, {sr(SRD_A,4)}, s{sT0} offen lds")
            for t in range(7):
                a(f"s_lshl_b32 s{sT1}, s{sW}, 10")
                a(f"s_add_u32 m0, s{sT1}, {sl + areg + t*4096}")
                a(f"s_add_u32 s{sT0}, s{sWB}, {64*c*896 + 64*t}")
                a(f"buffer_load_dwordx4 v{vWd}, {sr(SRD_W,4)}, s{sT0} offen lds")
        else:
            for qq in range(4):
                a(f"s_add_u32 m0, s{sMA}, {sl + qq*1024}")
                a(f"s_mov_b32 s{sT0}, {128*c + (qq>>1)*14336}")
                a(f"buffer_load_dwordx4 v{vAo if qq&1 else vAe}, {sr(SRD_A,4)}, s{sT0} offen lds")
            for s_ in range(4):
                a(f"s_add_u32 m0, s{sMA}, {sl + areg + s_*1024}")
                a(f"s_add_u32 s{sT0}, s{sWB}, {(64*c+16*s_)*2688}")
                a(f"buffer_load_dwordx4 v{vWd}, {sr(SRD_W,4)}, s{sT0} offen lds")

    for c in range(3):
        issue(c)

    nrd = 10 if w1 else 9
    stamp(a, SK)

    def reads(c, s):
        b = s & 1
        a(f"ds_read_b128 {vr(vAf+4*b,4)}, v{vAr+s}")
        if w1:
            a(f"ds_read_b128 {vr(vGf+4*b,4)}, v{vK0} offset:{32*(4*c+s)}")
        for t in range(ntile):
            o = areg + t * 4096 + s * 1024
            a(f"ds_read_b64_tr_b16 {vr(vWf+16*b+4*t,2)}, v{vWr} offset:{o}")
            a(f"ds_read_b64_tr_b16 {vr(vWf+16*b+4*t+2,2)}, v{vWr} offset:{o+256}")

    for c in range(7):
        ahead = min(c + 2, 6) - c
        a(f"s_waitcnt vmcnt({ahead*ndma})")
        a("s_barrier")
        stamp(a, SK)
        if c + 3 < 7:
            issue(c + 3)
        sl = (c % 4) * K1_SLOT
        for s in range(4):
            a(f"v_add_u32 v{vAr+s}, {sl}, v{vAr0+s}")
        a(f"v_add_u32 v{vWr}, {sl}, v{vWr0}")
        reads(c, 0)
        for s in range(4):
            b = s & 1
            if s < 3:
                reads(c, s + 1)
                a(f"s_waitcnt lgkmcnt({nrd})")
            else:
                a("s_waitcnt lgkmcnt(0)")
            for t in range(ntile):
                C = "0" if (c == 0 and s == 0) else vr(vAcc + 16 * t, 16)
                X, W = vr(vAf + 4 * b, 4), vr(vWf + 16 * b + 4 * t, 4)
                if kind == 'v':
                    a(f"v_mfma_f32_32x32x16_bf16 {vr(vAcc+16*t,16)}, {X}, {W}, {C}")
                else:
                    a(f"v_mfma_f32_32x32x16_bf16 {vr(vAcc+16*t,16)}, {W}, {X}, {C}")
                if w1:
                    for i in range(4):
                        a(f"v_dot2_f32_bf16 v{vCs+t}, v{vWf+16*b+4*t+i}, s{sONE}, v{vCs+t}")
            if w1:
                for i in range(4):
                    x = vAf + 4 * b + i
                    a(f"v_dot2_f32_bf16 v{vSum}, v{x}, s{sONE}, v{vSum}")
                    a(f"v_dot2_f32_bf16 v{vSq}, v{x}, v{x}, v{vSq}")
                    a(f"v_dot2_f32_bf16 v{vG}, v{x}, v{vGf+4*b+i}, v{vG}")
    a("s_nop 15")
    stamp(a, SK)
    if not w1:
        a(f"s_lshr_b32 s{sT1}, s2, 4")
        a(f"s_lshl_b32 s{sT1}, s{sT1}, 19")
        a(f"s_lshl_b32 s{sT0}, s{sRB}, 2")
        a(f"s_add_u32 s{sT0}, s{sT0}, s{sW}")
        a(f"s_lshl_b32 s{sT0}, s{sT0}, 11")
        a(f"s_add_u32 s{sT0}, s{sT0}, s{sT1}")
        a(f"v_lshlrev_b32 v{t1}, 4, v{vL}")
        a(f"v_add_u32 v{t1}, s{sT0}, v{t1}")
        if kind == 'qk':
            a(f"s_cmp_lt_u32 s2, 64")
            a(f"s_cselect_b32 s{sT1}, {f2u(QSCALE)}, 1.0")
            a(f"v_mov_b32 v{t2}, 0x3f803f80")
            a(f"v_mov_b32 v{t3}, 0x00003f80")
            a(f"v_cmp_lt_u32 vcc, 31, v{vL}")
        else:
            a(f"v_mov_b32 v{t2}, 0x3f803f80")
            a(f"v_cmp_eq_u32 vcc, 28, v{vI}")
        for t in range(4):
            A = vAcc + 16 * t
            P = vTmp + 8 * (t & 1)
            if kind == 'qk':
                for r in range(16):
                    a(f"v_mul_f32 v{A+r}, s{sT1}, v{A+r}")
            for r in range(8):
                a(f"v_cvt_pk_bf16_f32 v{P+r}, v{A+2*r}, v{A+2*r+1}")
            if kind == 'qk':
                a(f"v_cndmask_b32 v{P+6}, v{P+6}, v{t2}, vcc")
                a(f"v_cndmask_b32 v{P+7}, v{P+7}, v{t3}, vcc")
            else:
                for r in range(8):
                    a(f"v_cndmask_b32 v{P+r}, v{P+r}, v{t2}, vcc")
            a(f"s_mov_b32 s{sT0}, {t*131072}")
            a(f"buffer_store_dwordx4 {vr(P,4)}, v{t1}, {sr(SRD_WS,4)}, s{sT0} offen")
            a(f"buffer_store_dwordx4 {vr(P+4,4)}, v{t1}, {sr(SRD_WS,4)}, s{sT0} offen offset:1024")
        stamp(a, SK)
        stamp_flush(a, SK, 5)
        a("s_endpgm")
        return
    for v in (vSum, vSq, vG, vCs, vCs + 1, vCs + 2, vCs + 3):
        xhalf_sum(a, v, t1)
    vMean, vRstd = vSum, vSq
    a(f"v_mul_f32 v{vMean}, {f2u(1.0/448)}, v{vSum}")
    a(f"v_mul_f32 v{vSq}, {f2u(1.0/448)}, v{vSq}")
    a(f"v_fma_f32 v{vSq}, -v{vMean}, v{vMean}, v{vSq}")
    a(f"v_add_f32 v{vSq}, {f2u(1e-5)}, v{vSq}")
    a(f"v_rsq_f32 v{vRstd}, v{vSq}")
    a(f"s_lshl_b32 s{sT0}, s{sW}, 9")
    a(f"s_add_u32 s{sT0}, s{sT0}, {K1_SCR}")
    a(f"v_lshlrev_b32 v{t1}, 2, v{vI}")
    a(f"v_add_u32 v{t1}, s{sT0}, v{t1}")
    for t in range(4):
        a(f"ds_write_b32 v{t1}, v{vCs+t} offset:{128*t}")
    a(f"v_lshlrev_b32 v{t2}, 4, v{vHF}")
    a(f"v_add_u32 v{t2}, s{sT0}, v{t2}")
    a(f"v_mul_f32 v{vG}, {f2u(-LOG2E)}, v{vG}")
    a(f"v_exp_f32 v{vG}, v{vG}")
    a("s_nop 0")
    a(f"v_add_f32 v{vG}, 1.0, v{vG}")
    a(f"v_rcp_f32 v{vG}, v{vG}")
    a(f"s_and_b32 s{sT1}, s{sW}, 1")
    a(f"s_lshl_b32 s{sMA}, s{sRB}, 1")
    a(f"s_add_u32 s{sMA}, s{sMA}, s{sT1}")
    a(f"s_cmp_lt_u32 s2, 224")
    a(f"s_cbranch_scc0 K1_nogate")
    a(f"s_cmp_lt_u32 s{sW}, 2")
    a(f"s_cbranch_scc0 K1_nogate")
    a(f"s_lshl_b32 s{sT1}, s{sMA}, 7")
    a(f"s_add_u32 s{sT1}, s{sT1}, {GOFF}")
    a(f"v_lshlrev_b32 v{t3}, 2, v{vI}")
    a(f"buffer_store_dword v{vG}, v{t3}, {sr(SRD_WS,4)}, s{sT1} offen")
    a.label("K1_nogate")
    a(f"s_mul_i32 s{sT1}, s{sMA}, {28*1024}")
    a(f"s_sub_u32 s{sT0}, s2, 192")
    a(f"s_lshr_b32 s{sT0}, s{sT0}, 5")
    a(f"s_mul_i32 s{sT0}, s{sT0}, {14*1024}")
    a(f"s_add_u32 s{sT1}, s{sT1}, s{sT0}")
    a(f"s_lshr_b32 s{sT0}, s{sW}, 1")
    a(f"s_lshl_b32 s{sT0}, s{sT0}, 13")
    a(f"s_add_u32 s{sT1}, s{sT1}, s{sT0}")
    a(f"s_add_u32 s{sT1}, s{sT1}, {HF}")
    a(f"v_lshlrev_b32 v{t1}, 4, v{vL}")
    a(f"v_add_u32 v{t1}, s{sT1}, v{t1}")
    a(f"s_mov_b32 s{sK1}, {f2u(GK1)}")
    a(f"v_mov_b32 v{vK0}, {f2u(GK0)}")
    a("s_waitcnt lgkmcnt(0)")
    for t in range(4):
        if t == 3:
            a(f"s_cmp_lt_u32 s{sW}, 2")
            a(f"s_cbranch_scc0 K1_w1_done")
        A = vAcc + 16 * t
        for q in range(4):
            a(f"ds_read_b128 {vr(vCsr+4*q,4)}, v{t2} offset:{128*t+32*q}")
        a("s_waitcnt lgkmcnt(0)")
        for r in range(16):
            a(f"v_fma_f32 v{A+r}, -v{vMean}, v{vCsr+r}, v{A+r}")
        for r in range(16):
            a(f"v_mul_f32 v{A+r}, v{vRstd}, v{A+r}")
        gelu_block(a, [A + r for r in range(16)], vTmp, vK0, sK1)
        for r in range(8):
            a(f"v_cvt_pk_bf16_f32 v{vTmp+r}, v{A+2*r}, v{A+2*r+1}")
        a(f"buffer_store_dwordx4 {vr(vTmp,4)}, v{t1}, {sr(SRD_WS,4)}, 0 offen offset:{2048*(t&1)}" if t < 2 else
          f"buffer_store_dwordx4 {vr(vTmp,4)}, v{t3}, {sr(SRD_WS,4)}, 0 offen offset:{2048*(t&1)}")
        a(f"buffer_store_dwordx4 {vr(vTmp+4,4)}, v{t1}, {sr(SRD_WS,4)}, 0 offen offset:{2048*(t&1)+1024}" if t < 2 else
          f"buffer_store_dwordx4 {vr(vTmp+4,4)}, v{t3}, {sr(SRD_WS,4)}, 0 offen offset:{2048*(t&1)+1024}")
        if t == 1:
            a(f"v_add_u32 v{t3}, 4096, v{t1}")
        a("s_nop 1")
    a.label("K1_w1_done")
    stamp(a, SK)
    stamp_flush(a, SK, 200)
    a("s_endpgm")


def gen_k1(a):
    kernel_head(a, "k1_kernel")
    a("s_cmp_ge_u32 s2, 256")
    a("s_cbranch_scc1 K1_exit")
    load_ptrs(a)
    a("s_waitcnt lgkmcnt(0)")
    a("s_cmp_lt_u32 s2, 128")
    a("s_cbranch_scc1 K1_qk")
    a("s_cmp_lt_u32 s2, 192")
    a("s_cbranch_scc1 K1_v")
    k1_path(a, 'w1')
    a.label("K1_qk")
    k1_path(a, 'qk')
    a.label("K1_v")
    k1_path(a, 'v')
    a.label("K1_exit")
    a("s_endpgm")


import os
STAMP = os.environ.get("STAMP", "")
_stamp_n = {}
def stamp(a, kern):
    if STAMP != kern: return
    i = _stamp_n.get(kern, 0); _stamp_n[kern] = i + 1
    a(f"s_memtime s[{76+2*i}:{77+2*i}]")
def stamp_flush(a, kern, wg):
    if STAMP != kern: return
    n = _stamp_n.get(kern, 0)
    a("s_waitcnt vmcnt(0) lgkmcnt(0)")
    a(f"s_cmp_eq_u32 s2, {wg}")
    a(f"s_cbranch_scc0 ST_skip_{kern}")
    make_srd(a, SRD_F, P_DBG, 256)
    a("v_cmp_eq_u32 vcc, 0, v0")
    a("s_and_saveexec_b64 s[74:75], vcc")
    a(f"s_cbranch_execz ST_skip_{kern}")
    for i in range(n):
        a(f"s_sub_u32 s{76+2*i+1}, s{76+2*i}, s76")
        a(f"v_mov_b32 v1, s{76+2*i+1}")
        a(f"v_mov_b32 v2, {128+4*i}")
        a(f"buffer_store_dword v1, v2, s[{SRD_F}:{SRD_F+3}], 0 offen")
    a.label(f"ST_skip_{kern}")

def l2_prefetch(a, srd, nbytes, sIdx, nw, vD16, vdst, sT):
    n = (nbytes + 1024 * nw - 1) // (1024 * nw)
    a(f"s_lshl_b32 s{sT}, s{sIdx}, 10")
    for k in range(n):
        a(f"buffer_load_dwordx4 {vr(vdst,4)}, v{vD16}, {sr(srd,4)}, s{sT} offen")
        if k + 1 < n:
            a(f"s_add_u32 s{sT}, s{sT}, {1024*nw}")


RT = os.environ.get("RT", "")
def rt_begin(a, kern):
    if RT != kern: return
    a("s_memrealtime s[96:97]")
def rt_end(a, kern, tag):
    if RT != kern: return
    a("s_memrealtime s[98:99]")
    a("s_waitcnt vmcnt(0) lgkmcnt(0)")
    make_srd(a, SRD_F, P_WS, WS_SIZE)
    a("v_and_b32 v3, 63, v0")
    a("v_cmp_eq_u32 vcc, 0, v3")
    a("s_and_saveexec_b64 s[94:95], vcc")
    a("v_mov_b32 v4, s96")
    a("v_mov_b32 v5, s98")
    a("v_lshrrev_b32 v3, 6, v0")
    a("v_lshlrev_b32 v3, 3, v3")
    a("s_lshl_b32 s93, s2, 7")
    a(f"s_add_u32 s93, s93, {24*MB}")
    a(f"buffer_store_dwordx2 v[4:5], v3, s[{SRD_F}:{SRD_F+3}], s93 offen")
    a("s_mov_b64 exec, s[94:95]")


def kd(a, name, vgpr, sgpr=102):
    a.raw(f".amdhsa_kernel {name}")
    a.raw(f"  .amdhsa_next_free_vgpr {vgpr}")
    a.raw(f"  .amdhsa_next_free_sgpr {sgpr}")
    a.raw(f"  .amdhsa_accum_offset {(vgpr+3)//4*4}")
    a.raw("  .amdhsa_group_segment_fixed_size 0")
    a.raw("  .amdhsa_kernarg_size 96")
    a.raw("  .amdhsa_user_sgpr_count 2")
    a.raw("  .amdhsa_user_sgpr_kernarg_segment_ptr 1")
    a.raw("  .amdhsa_system_sgpr_workgroup_id_x 1")
    a.raw(".end_amdhsa_kernel")


HEADER = """; gated_mix__mha_block__mixer_s_mlp__prompt -- generated by dev/gen.py (hand-designed kernels)
; Kernarg: 0 A_x, 8 A_wqkv, 16 A_wo, 24 B_x, 32 B_w1, 40 B_w2, 48 B_w3, 56 B_w4, 64 gate_w, 72 out, 80 debug, 88 ws
"""

if __name__ == "__main__":
    import gen_rest
    gen_rest.main()
```

```python
from gen import *
from gen_tp import *

K1_LDS = 155648
W1_RING = 57344


def token_cas(a, tag):
    make_srd(a, SRD_F, P_DBG, 256)
    a("s_or_b32 s88, s88, 1")
    a("s_mov_b32 s85, 1")
    a("v_mov_b32 v158, s88")
    a("v_mov_b32 v159, 0")
    a("v_mov_b32 v157, 0")
    a("v_cmp_eq_u32 vcc, 0, v1")
    a("s_and_saveexec_b64 s[86:87], vcc")
    a(f"buffer_atomic_cmpswap v[158:159], v157, {sr(SRD_F,4)}, 0 offen sc0 sc1")
    a("s_mov_b64 exec, s[86:87]")


def qkv_path(a):
    sW, sT0, sT1, sMA, sWB, sRB = 60, 61, 62, 63, 64, 65
    vL, vHF, vI, vWr0 = 1, 2, 3, 4
    vAe, vAo, vWd = 5, 6, 7
    vAr0 = 8
    vAr = 12
    vWr = 16
    t1, t2, t3 = 17, 18, 19
    vAf = 20
    vWf = 28
    vAcc = 60
    vTmp = 124
    SLOT = 32768
    a(f"s_lshl_b32 s{sRB}, s90, 2")
    a(f"s_and_b32 s{sT0}, s92, 3")
    a(f"s_add_u32 s{sRB}, s{sRB}, s{sT0}")
    a(f"s_mul_i32 s93, s91, 6")
    a(f"s_lshr_b32 s{sT0}, s92, 2")
    a(f"s_add_u32 s93, s93, s{sT0}")
    a(f"s_lshl_b32 s94, s93, 8")
    a(f"s_lshl_b32 s{sT0}, s{sRB}, 2")
    a(f"s_add_u32 s94, s94, s{sT0}")
    a(f"s_add_u32 s94, s94, {F12}")
    a(f"s_cmp_lt_u32 s{sW}, 4")
    a("s_cbranch_scc1 K1_qkv_comp")
    make_srd(a, SRD_A, P_X, 2048 * 896)
    make_srd(a, SRD_W, P_WQKV, 448 * 2688)
    sH2 = 66
    a(f"s_sub_u32 s{sW}, s{sW}, 4")
    a(f"s_lshr_b32 s{sH2}, s{sW}, 2")
    a(f"s_and_b32 s{sW}, s{sW}, 3")
    a(f"s_mov_b32 s{sT1}, s93")
    a(f"s_lshl_b32 s{sT0}, s{sRB}, 7")
    a(f"s_lshl_b32 s{sMA}, s{sW}, 5")
    a(f"s_add_u32 s{sT0}, s{sT0}, s{sMA}")
    a(f"s_lshl_b32 s{sMA}, s{sH2}, 4")
    a(f"s_add_u32 s{sT0}, s{sT0}, s{sMA}")
    a(f"s_lshl_b32 s{sMA}, s{sW}, 12")
    a(f"s_lshl_b32 s{sWB}, s{sH2}, 11")
    a(f"s_add_u32 s{sMA}, s{sMA}, s{sWB}")
    a(f"s_mul_i32 s{sWB}, s{sT1}, 224")
    a(f"s_mul_i32 s{sT1}, s{sW}, 56")
    a(f"s_add_u32 s{sWB}, s{sWB}, s{sT1}")
    a(f"s_mul_i32 s{sT1}, s{sH2}, {32*2688}")
    a(f"s_add_u32 s{sWB}, s{sWB}, s{sT1}")
    a(f"v_lshrrev_b32 v{t1}, 3, v{vL}")
    a(f"v_add_u32 v{t1}, s{sT0}, v{t1}")
    a(f"v_mul_u32_u24 v{t1}, 896, v{t1}")
    a(f"v_and_b32 v{t2}, 7, v{vL}")
    a(f"v_lshrrev_b32 v{t3}, 4, v{vL}")
    a(f"v_xor_b32 v{t2}, v{t2}, v{t3}")
    a(f"v_lshlrev_b32 v{t2}, 4, v{t2}")
    a(f"v_add_u32 v{vAe}, v{t1}, v{t2}")
    a(f"v_xor_b32 v{t2}, 64, v{t2}")
    a(f"v_add_u32 v{t1}, 7168, v{t1}")
    a(f"v_add_u32 v{vAo}, v{t1}, v{t2}")
    a(f"v_lshrrev_b32 v{t1}, 2, v{vL}")
    a(f"v_mul_u32_u24 v{t1}, 2688, v{t1}")
    a(f"v_and_b32 v{t2}, 3, v{vL}")
    a(f"v_lshlrev_b32 v{t2}, 4, v{t2}")
    a(f"v_add_u32 v{vWd}, v{t1}, v{t2}")

    def issue(c):
        sl = (c % 4) * SLOT
        for q in range(2):
            a(f"s_add_u32 m0, s{sMA}, {sl + q*1024}")
            a(f"s_mov_b32 s{sT0}, {128*c}")
            a(f"buffer_load_dwordx4 v{vAo if q&1 else vAe}, {sr(SRD_A,4)}, s{sT0} offen lds")
            a(f"s_add_u32 m0, s{sMA}, {sl + 16384 + q*1024}")
            a(f"s_add_u32 s{sT0}, s{sWB}, {(64*c+16*q)*2688}")
            a(f"buffer_load_dwordx4 v{vWd}, {sr(SRD_W,4)}, s{sT0} offen lds")
    for c in range(3):
        issue(c)
    for c in range(7):
        a(f"s_waitcnt vmcnt({4*(min(c+2,6)-c)})")
        a("s_barrier")
        if c + 3 < 7:
            issue(c + 3)
    a("s_barrier")
    a("s_branch K12_mid")

    a.label("K1_qkv_comp")
    make_srd(a, SRD_WS, P_WS, WS_SIZE)
    a(f"s_or_b32 s{sT0}, s2, s{sW}")
    a(f"s_cmp_eq_u32 s{sT0}, 0")
    a("s_cbranch_scc0 K1_noclr")
    a(f"v_lshlrev_b32 v{t1}, 8, v{vL}")
    a(f"v_mov_b32 v{t2}, 0")
    a(f"s_mov_b32 s{sT0}, {FLAGS}")
    a(f"buffer_store_dword v{t2}, v{t1}, {sr(SRD_WS,4)}, s{sT0} offen")
    a.label("K1_noclr")
    a(f"s_cmp_eq_u32 s{sW}, 0")
    a("s_cbranch_scc0 K1_notok1")
    token_cas(a, 1)
    a.label("K1_notok1")
    if 'k1pf' in os.environ.get('PF',''):
        make_srd(a, SRD_E, P_W1, 448 * 896)
        a(f"s_lshr_b32 s{sT1}, s2, 3")
        a(f"s_lshl_b32 s{sT1}, s{sT1}, 2")
        a(f"s_add_u32 s{sT1}, s{sT1}, s{sW}")
        a(f"v_lshlrev_b32 v{t1}, 4, v{vL}")
        l2_prefetch(a, SRD_E, 448 * 896, sT1, 96, t1, vTmp, sT0)
    a(f"s_lshl_b32 s{sT0}, s{sW}, 12")
    a(f"v_lshlrev_b32 v{t1}, 7, v{vI}")
    a(f"v_add_u32 v{t1}, s{sT0}, v{t1}")
    a(f"v_bfe_u32 v{t2}, v{vI}, 1, 3")
    for s in range(4):
        a(f"v_add_u32 v{t3}, {2*s}, v{vHF}")
        a(f"v_xor_b32 v{t3}, v{t3}, v{t2}")
        a(f"v_lshlrev_b32 v{t3}, 4, v{t3}")
        a(f"v_add_u32 v{vAr0+s}, v{t1}, v{t3}")
    a("s_cmp_lt_u32 s93, 8")
    a("s_cbranch_scc0 K1_v")
    for kind in ('qk', 'v'):
        if kind == 'v':
            a.label("K1_v")
        SK = "k1" + kind
        stamp(a, SK)

        sSl, sCnt = 66, 67

        def setaddr():
            for s in range(4):
                a(f"v_add_u32 v{vAr+s}, s{sSl}, v{vAr0+s}")
            a(f"v_add_u32 v{vWr}, s{sSl}, v{vWr0}")
            a(f"s_add_u32 s{sSl}, s{sSl}, {SLOT}")
            a(f"s_and_b32 s{sSl}, s{sSl}, {4*SLOT-1}")

        def reads(s):
            b = s & 1
            a(f"ds_read_b128 {vr(vAf+4*b,4)}, v{vAr+s}")
            for t in range(4):
                o = 16384 + t * 4096 + s * 1024
                a(f"ds_read_b64_tr_b16 {vr(vWf+16*b+4*t,2)}, v{vWr} offset:{o}")
                a(f"ds_read_b64_tr_b16 {vr(vWf+16*b+4*t+2,2)}, v{vWr} offset:{o+256}")
        a(f"s_mov_b32 s{sSl}, 0")
        a(f"s_mov_b32 s{sCnt}, 0")
        for r in range(64):
            a(f"v_mov_b32 v{vAcc+r}, 0")
        setaddr()
        a("s_barrier")
        stamp(a, SK)
        reads(0)
        a.raw(".p2align 6")
        a.label(f"K1_{kind}_loop")
        for s in range(4):
            b = s & 1
            if s < 3:
                reads(s + 1)
                a("s_waitcnt lgkmcnt(9)")
            else:
                a("s_waitcnt lgkmcnt(0)")
                a("s_barrier")
                setaddr()
                reads(0)
            for t in range(4):
                C = vr(vAcc + 16 * t, 16)
                X, W = vr(vAf + 4 * b, 4), vr(vWf + 16 * b + 4 * t, 4)
                if kind == 'v':
                    a(f"v_mfma_f32_32x32x16_bf16 {vr(vAcc+16*t,16)}, {X}, {W}, {C}")
                else:
                    a(f"v_mfma_f32_32x32x16_bf16 {vr(vAcc+16*t,16)}, {W}, {X}, {C}")
        a(f"s_add_u32 s{sCnt}, s{sCnt}, 1")
        a(f"s_cmp_lt_u32 s{sCnt}, 7")
        a(f"s_cbranch_scc1 K1_{kind}_loop")
        stamp(a, SK)
        a(f"s_lshl_b32 s{sT1}, s93, 19")
        a(f"s_lshl_b32 s{sT0}, s{sRB}, 2")
        a(f"s_add_u32 s{sT0}, s{sT0}, s{sW}")
        a(f"s_lshl_b32 s{sT0}, s{sT0}, 11")
        a(f"s_add_u32 s{sT0}, s{sT0}, s{sT1}")
        a(f"v_lshlrev_b32 v{t1}, 4, v{vL}")
        a(f"v_add_u32 v{t1}, s{sT0}, v{t1}")
        if kind == 'qk':
            a(f"s_cmp_lt_u32 s93, 4")
            a(f"s_cselect_b32 s{sT1}, {f2u(QSCALE)}, 1.0")
            a(f"v_mov_b32 v{t2}, 0x3f803f80")
            a(f"v_mov_b32 v{t3}, 0x00003f80")
            a(f"v_cmp_lt_u32 vcc, 31, v{vL}")
        else:
            a(f"v_mov_b32 v{t2}, 0x3f803f80")
            a(f"v_cmp_eq_u32 vcc, 28, v{vI}")
        a("s_nop 4")
        for t in range(4):
            A = vAcc + 16 * t
            P = vTmp + 8 * (t & 1)
            if kind == 'qk':
                for r in range(16):
                    a(f"v_mul_f32 v{A+r}, s{sT1}, v{A+r}")
            for r in range(8):
                a(f"v_cvt_pk_bf16_f32 v{P+r}, v{A+2*r}, v{A+2*r+1}")
            if kind == 'qk':
                a(f"v_cndmask_b32 v{P+6}, v{P+6}, v{t2}, vcc")
                a(f"v_cndmask_b32 v{P+7}, v{P+7}, v{t3}, vcc")
            else:
                for r in range(8):
                    a(f"v_cndmask_b32 v{P+r}, v{P+r}, v{t2}, vcc")
            a(f"s_mov_b32 s{sT0}, {t*131072}")
            a(f"buffer_store_dwordx4 {vr(P,4)}, v{t1}, {sr(SRD_WS,4)}, s{sT0} offen sc1")
            a(f"buffer_store_dwordx4 {vr(P+4,4)}, v{t1}, {sr(SRD_WS,4)}, s{sT0} offen offset:1024 sc1")
        stamp(a, SK)
        stamp_flush(a, SK, 5)
        rt_end(a, "k1", kind)
        a("s_branch K12_mid")


def w1_path(a):
    sW, sT0, sT1, sMA, sWB, sRB, sHalf, sK1, sST = 60, 61, 62, 63, 64, 65, 66, 67, 68
    vL, vHF, vI, vWr0 = 1, 2, 3, 4
    vWd = 5
    vAr0 = 8
    vAr = 12
    vWr = 16
    t1, t2, t3, t4 = 17, 18, 19, 6
    vSum, vSq, vG = 20, 21, 22
    vXr = 24
    vGr = 52
    vU = 80
    vK0 = 7
    vAf = 24
    vWf = 40
    vTmp = 72
    vP = 88
    vAcc = 96
    SLOT, NS = 16384, 6
    SK = "k1w1"
    stamp(a, SK)
    make_srd(a, SRD_A, P_X, 2048 * 896)
    make_srd(a, SRD_E, P_GATE, 896)
    make_srd(a, SRD_WS, P_WS, WS_SIZE)
    a(f"s_lshl_b32 s{sRB}, s90, 3")
    a(f"s_add_u32 s{sRB}, s{sRB}, s92")
    a(f"s_sub_u32 s{sRB}, s{sRB}, 24")
    a(f"s_mov_b32 s{sHalf}, s91")
    a(f"s_lshl_b32 s94, s{sRB}, 3")
    a(f"s_lshl_b32 s{sT0}, s{sHalf}, 2")
    a(f"s_add_u32 s94, s94, s{sT0}")
    a(f"s_add_u32 s94, s94, {F12 + 4096}")
    ptiles = ((0, 1, 4, 5), (2, 3, 6))
    ops = []

    def issue(i):
        p, c = divmod(i, 7)
        sl = W1_RING + (i % NS) * SLOT
        for n, t in enumerate(ptiles[p]):
            a(f"s_add_u32 m0, s{sMA}, {sl + n*4096}")
            a(f"s_add_u32 s{sT0}, s{sWB}, {64*c*896 + 64*t}")
            a(f"buffer_load_dwordx4 v{vWd}, {sr(SRD_W,4)}, s{sT0} offen lds")
            ops.append(i)

    a(f"s_cmp_lt_u32 s{sW}, 8")
    a("s_cbranch_scc1 K1_w1_ln")
    make_srd(a, SRD_W, P_W1, 448 * 896)
    a(f"s_sub_u32 s{sT1}, s{sW}, 8")
    a(f"s_lshl_b32 s{sMA}, s{sT1}, 10")
    a(f"s_mul_i32 s{sWB}, s{sT1}, {16*896}")
    a(f"s_mul_i32 s{sT1}, s{sHalf}, 448")
    a(f"s_add_u32 s{sWB}, s{sWB}, s{sT1}")
    a(f"v_lshrrev_b32 v{t3}, 2, v{vL}")
    a(f"v_mul_u32_u24 v{t3}, 896, v{t3}")
    a(f"v_and_b32 v{vWd}, 3, v{vL}")
    a(f"v_lshl_add_u32 v{vWd}, v{vWd}, 4, v{t3}")
    for i in range(6):
        issue(i)
    for i in range(15):
        if i < 14:
            last = max(k for k, t in enumerate(ops) if t == i)
            a(f"s_waitcnt vmcnt({len(ops)-1-last})")
        a("s_barrier")
        if i >= 2 and i + 4 < 14:
            issue(i + 4)
    a("s_branch K12_mid")
    a.label("K1_w1_ln")
    a(f"s_lshl_b32 s{sT0}, s{sRB}, 6")
    a(f"s_lshl_b32 s{sT1}, s{sW}, 3")
    a(f"s_add_u32 s{sT0}, s{sT0}, s{sT1}")
    a(f"v_lshrrev_b32 v{t1}, 3, v{vL}")
    a(f"v_add_u32 v{t2}, s{sT0}, v{t1}")
    a(f"v_mul_u32_u24 v{t3}, 896, v{t2}")
    a(f"v_and_b32 v{t4}, 7, v{vL}")
    a(f"v_lshl_add_u32 v{t3}, v{t4}, 4, v{t3}")
    for j in range(7):
        a(f"buffer_load_dwordx4 {vr(vXr+4*j,4)}, v{t3}, {sr(SRD_A,4)}, 0 offen offset:{128*j}")
    a(f"v_lshlrev_b32 v{vWd}, 4, v{t4}")
    for j in range(7):
        a(f"buffer_load_dwordx4 {vr(vGr+4*j,4)}, v{vWd}, {sr(SRD_E,4)}, 0 offen offset:{128*j}")
    a(f"s_lshl_b32 s{sT0}, s{sW}, 2")
    a(f"v_lshrrev_b32 v{t3}, 4, v{vL}")
    a(f"v_add_u32 v{t3}, s{sT0}, v{t3}")
    a(f"v_and_b32 v{t3}, 7, v{t3}")
    a(f"v_xor_b32 v{t3}, v{t3}, v{t4}")
    a(f"v_lshlrev_b32 v{t3}, 4, v{t3}")
    a(f"s_lshl_b32 s{sT0}, s{sW}, 10")
    a(f"v_lshl_add_u32 v{t3}, v{t1}, 7, v{t3}")
    a(f"v_add_u32 v{t3}, s{sT0}, v{t3}")
    a(f"v_lshlrev_b32 v{t2}, 2, v{t2}")
    a(f"s_mov_b32 s{sT0}, 0x3f803f80")
    a(f"v_mov_b32 v{vSum}, 0")
    a(f"v_mov_b32 v{vSq}, 0")
    a(f"v_mov_b32 v{vG}, 0")
    a("s_waitcnt vmcnt(0)")
    for d in range(28):
        a(f"v_dot2_f32_bf16 v{vSum}, v{vXr+d}, s{sT0}, v{vSum}")
        a(f"v_dot2_f32_bf16 v{vSq}, v{vXr+d}, v{vXr+d}, v{vSq}")
        a(f"v_dot2_f32_bf16 v{vG}, v{vXr+d}, v{vGr+d}, v{vG}")
    for d in range(28):
        a(f"v_lshlrev_b32 v{vU+2*d}, 16, v{vXr+d}")
        a(f"v_and_b32 v{vU+2*d+1}, 0xffff0000, v{vXr+d}")
    for v in (vSum, vSq, vG):
        a("s_nop 1")
        a(f"v_add_f32_dpp v{v}, v{v}, v{v} quad_perm:[1,0,3,2] row_mask:0xf bank_mask:0xf")
        a("s_nop 1")
        a(f"v_add_f32_dpp v{v}, v{v}, v{v} quad_perm:[2,3,0,1] row_mask:0xf bank_mask:0xf")
        a("s_nop 1")
        a(f"v_add_f32_dpp v{v}, v{v}, v{v} row_half_mirror row_mask:0xf bank_mask:0xf")
    a(f"v_mul_f32 v{vSum}, {f2u(1.0/448)}, v{vSum}")
    a(f"v_mul_f32 v{vSq}, {f2u(1.0/448)}, v{vSq}")
    a(f"v_fma_f32 v{vSq}, -v{vSum}, v{vSum}, v{vSq}")
    a(f"v_add_f32 v{vSq}, {f2u(1e-5)}, v{vSq}")
    a(f"v_rsq_f32 v{vSq}, v{vSq}")
    a(f"v_mul_f32 v{vG}, {f2u(-LOG2E)}, v{vG}")
    a(f"v_mul_f32 v{vSum}, v{vSum}, v{vSq}")
    a(f"v_exp_f32 v{vG}, v{vG}")
    for e in range(56):
        a(f"v_fma_f32 v{vU+e}, v{vU+e}, v{vSq}, -v{vSum}")
    a(f"v_add_f32 v{vG}, 1.0, v{vG}")
    a(f"v_rcp_f32 v{vG}, v{vG}")
    for d in range(28):
        a(f"v_cvt_pk_bf16_f32 v{vXr+d}, v{vU+2*d}, v{vU+2*d+1}")
    for j in range(7):
        a(f"ds_write_b128 v{t3}, {vr(vXr+4*j,4)} offset:{8192*j}")
    a(f"s_cmp_eq_u32 s{sHalf}, 0")
    a("s_cbranch_scc0 K1_w1_nog2")
    a(f"s_mov_b32 s{sT0}, {GOFF}")
    a(f"v_cmp_eq_u32 vcc, 0, v{t4}")
    a("s_and_saveexec_b64 s[58:59], vcc")
    a(f"buffer_store_dword v{vG}, v{t2}, {sr(SRD_WS,4)}, s{sT0} offen")
    a("s_mov_b64 exec, s[58:59]")
    a.label("K1_w1_nog2")
    a("s_waitcnt lgkmcnt(0)")
    stamp(a, SK)
    sG, sWi, sAo2, sWoff, sCnt, sWslot, sWg = 69, 70, 71, 72, 73, 74, 75
    a(f"s_lshr_b32 s{sG}, s{sW}, 2")
    a(f"s_and_b32 s{sWi}, s{sW}, 3")
    a(f"s_and_b32 s{sT0}, s{sWi}, 1")
    a(f"s_lshl_b32 s{sT0}, s{sT0}, 12")
    a(f"v_lshlrev_b32 v{t1}, 7, v{vI}")
    a(f"v_add_u32 v{t1}, s{sT0}, v{t1}")
    a(f"v_bfe_u32 v{t2}, v{vI}, 1, 3")
    for s in range(4):
        a(f"v_add_u32 v{t3}, {2*s}, v{vHF}")
        a(f"v_xor_b32 v{t3}, v{t3}, v{t2}")
        a(f"v_lshlrev_b32 v{t3}, 4, v{t3}")
        a(f"v_add_u32 v{vAr0+s}, v{t1}, v{t3}")
    a(f"s_lshr_b32 s{sT0}, s{sWi}, 1")
    a(f"s_lshl_b32 s{sT0}, s{sT0}, 13")
    a(f"s_add_u32 s{sT0}, s{sT0}, {W1_RING}")
    a(f"v_add_u32 v{vWr0}, s{sT0}, v{vWr0}")
    a(f"s_and_b32 s{sT1}, s{sWi}, 1")
    a(f"s_lshl_b32 s{sST}, s{sRB}, 1")
    a(f"s_add_u32 s{sST}, s{sST}, s{sT1}")
    a(f"s_mul_i32 s{sST}, s{sST}, {28*1024}")
    a(f"s_mul_i32 s{sT0}, s{sHalf}, {14*1024}")
    a(f"s_add_u32 s{sST}, s{sST}, s{sT0}")
    a(f"s_lshr_b32 s{sT0}, s{sWi}, 1")
    a(f"s_lshl_b32 s{sT0}, s{sT0}, 13")
    a(f"s_add_u32 s{sST}, s{sST}, s{sT0}")
    a(f"s_lshl_b32 s{sT0}, s{sG}, 12")
    a(f"s_add_u32 s{sST}, s{sST}, s{sT0}")
    a(f"s_add_u32 s{sST}, s{sST}, {HF}")
    a(f"v_lshlrev_b32 v{t1}, 4, v{vL}")
    a(f"s_mov_b32 s{sK1}, {f2u(GK1)}")
    a(f"v_mov_b32 v{vK0}, {f2u(GK0)}")

    def epi(t):
        A = vAcc + 16 * t
        L = gelu_list([A + r for r in range(16)], vTmp, vK0, sK1)
        for r in range(8):
            L.append(f"v_cvt_pk_bf16_f32 v{vP+r}, v{A+2*r}, v{A+2*r+1}")
        L.append(f"buffer_store_dwordx4 {vr(vP,4)}, v{t1}, {sr(SRD_WS,4)}, s{sST} offen offset:{2048*t} sc1")
        L.append(f"buffer_store_dwordx4 {vr(vP+4,4)}, v{t1}, {sr(SRD_WS,4)}, s{sST} offen offset:{2048*t+1024} sc1")
        L.append("s_nop 1")
        return L

    def setaddr():
        for s in range(4):
            a(f"v_add_u32 v{vAr+s}, s{sAo2}, v{vAr0+s}")
        a(f"v_add_u32 v{vWr}, s{sWoff}, v{vWr0}")
        a(f"s_add_u32 s{sAo2}, s{sAo2}, 8192")
        a(f"s_add_u32 s{sWoff}, s{sWoff}, {SLOT}")
        a(f"s_cmp_lt_u32 s{sWoff}, {NS*SLOT}")
        a(f"s_cselect_b32 s{sWoff}, s{sWoff}, 0")

    def rd_w(b, s, tt):
        o = tt * 4096 + s * 1024
        a(f"ds_read_b64_tr_b16 {vr(vWf+8*b+4*tt,2)}, v{vWr} offset:{o}")
        a(f"ds_read_b64_tr_b16 {vr(vWf+8*b+4*tt+2,2)}, v{vWr} offset:{o+256}")

    def rd_a(b, s):
        a(f"ds_read_b128 {vr(vAf+4*b,4)}, v{vAr+s}")

    a(f"s_mov_b32 s{sAo2}, 0")
    a(f"s_cmp_eq_u32 s{sG}, 0")
    a("s_cbranch_scc0 K1_w1_B")
    a(f"s_mov_b32 s{sWoff}, 0")
    a("s_barrier")
    setaddr()
    pass_loop(a, "K1A", vAf, vWf, vAcc, sCnt, setaddr, rd_a, rd_w, lambda post: None)
    stamp(a, SK)
    emit_with_barriers(a, ["s_nop 10"] + epi(0) + epi(1), 7)
    stamp(a, SK)
    stamp_flush(a, SK, 200)
    a("s_branch K12_mid")
    a.label("K1_w1_B")
    a(f"s_cmp_eq_u32 s{sW}, 4")
    a("s_cbranch_scc0 K1_notok2")
    token_cas(a, 2)
    a.label("K1_notok2")
    for i in range(8):
        a("s_barrier")
    a(f"s_mov_b32 s{sWoff}, {(7%NS)*SLOT}")
    setaddr()
    pass_loop(a, "K1B", vAf, vWf, vAcc, sCnt, setaddr, rd_a, rd_w, lambda post: None)
    a("s_nop 10")
    for x in epi(0):
        a(x)
    a(f"s_cmp_lt_u32 s{sWi}, 2")
    a("s_cbranch_scc0 K1_w1_done")
    for x in epi(1):
        a(x)
    a.label("K1_w1_done")
    rt_end(a, "k1", "w1")
    a("s_branch K12_mid")


def gen_k1(a):
    kernel_head(a, "k1_kernel")
    a("s_cmp_ge_u32 s2, 256")
    a("s_cbranch_scc1 K1_exit")
    rt_begin(a, "k1")
    load_ptrs(a)
    lane_consts(a, 1, 2, 3, 4, 17, 18, 8)
    a(f"v_lshrrev_b32 v17, 6, v0")
    a("s_nop 0")
    a(f"v_readfirstlane_b32 s60, v17")
    a("s_and_b32 s90, s2, 3")
    a("s_bfe_u32 s91, s2, 0x10002")
    a("s_lshr_b32 s92, s2, 3")
    a("s_memrealtime s[88:89]")
    a("s_waitcnt lgkmcnt(0)")
    a("s_mov_b32 s85, 0")
    a("s_cmp_lt_u32 s92, 24")
    a("s_cbranch_scc1 K1_qkv")
    w1_path(a)
    a.label("K1_qkv")
    qkv_path(a)
    a.label("K12_mid")
    import gen_k2
    gen_k2.gen_k2(a)
    a.label("K1_exit")
    a("s_endpgm")
```

```python
from gen import *
STATS = 21 * MB
CS3 = 22 * MB
K2_W2 = 65536
K2_FLAG = 65536 + 57344
K2_LDS = K2_FLAG + 256


def gen_k2(a):
    sW, sT0, sT1, sG0, sSlot, sStage, sThr, sH, sQB = 60, 61, 62, 63, 65, 66, 67, 68, 69
    sSlotW, sMode, sRB, sCT, sLq, sT2, sLo = 70, 71, 72, 73, 64, 74, 75
    vL, vHF, vI = 1, 2, 3
    vD16, vRd0, vRdV, vRdK = 4, 5, 6, 7
    t1, t2, t3, t4 = 8, 9, 10, 11
    vMa, vMb, vTa, vTb = 12, 13, 14, 15
    vWr0 = 16

    lane_consts(a, vL, vHF, vI, vWr0, t1, t2, 4)
    a(f"v_lshrrev_b32 v{t1}, 6, v0")
    a(f"v_lshlrev_b32 v{vD16}, 4, v{vL}")
    a(f"v_readfirstlane_b32 s{sW}, v{t1}")
    a(f"s_and_b32 s{sH}, s2, 7")
    a(f"s_lshl_b32 s{sH}, s{sH}, 1")
    a(f"s_bfe_u32 s{sT0}, s2, 0x10003")
    a(f"s_add_u32 s{sH}, s{sH}, s{sT0}")
    a(f"s_lshr_b32 s{sQB}, s2, 4")
    make_srd(a, SRD_WS, P_WS, WS_SIZE)
    sTok = 95
    a("s_waitcnt vmcnt(0) lgkmcnt(0)")
    a(f"s_cmp_eq_u32 s85, 1")
    a("s_cbranch_scc0 K12_t1")
    a(f"v_readfirstlane_b32 s{sTok}, v158")
    a(f"s_cmp_eq_u32 s{sTok}, 0")
    a(f"s_cselect_b32 s{sTok}, s88, s{sTok}")
    a(f"v_mov_b32 v{t1}, {TOK_LDS}")
    a(f"v_mov_b32 v{t2}, s{sTok}")
    a(f"ds_write_b32 v{t1}, v{t2}")
    a("s_waitcnt lgkmcnt(0)")
    a.label("K12_t1")
    a("s_barrier")
    a(f"s_cmp_eq_u32 s{sW}, 8")
    a("s_cbranch_scc0 K12_t2")
    a(f"v_mov_b32 v{t1}, {TOK_LDS}")
    a(f"ds_read_b32 v{t2}, v{t1}")
    a("s_waitcnt lgkmcnt(0)")
    a(f"v_readfirstlane_b32 s{sTok}, v{t2}")
    a(f"v_mov_b32 v{t1}, 0")
    a(f"v_cmp_eq_u32 vcc, 0, v{vL}")
    a("s_and_saveexec_b64 s[86:87], vcc")
    a(f"buffer_store_dword v{t2}, v{t1}, {sr(SRD_WS,4)}, s94 offen sc1")
    a("s_mov_b64 exec, s[86:87]")
    a(f"s_lshr_b32 s{sT0}, s{sH}, 2")
    a(f"v_lshrrev_b32 v{t1}, 4, v{vL}")
    a(f"v_lshl_add_u32 v{t1}, v{t1}, 2, s{sT0}")
    a(f"v_mov_b32 v{t3}, 8")
    a(f"v_cmp_lt_u32 vcc, 47, v{vL}")
    a("s_nop 1")
    a(f"v_cndmask_b32 v{t1}, v{t1}, v{t3}, vcc")
    a(f"v_lshlrev_b32 v{t1}, 8, v{t1}")
    a(f"v_and_b32 v{t3}, 15, v{vL}")
    a(f"v_lshl_add_u32 v{t1}, v{t3}, 2, v{t1}")
    a(f"s_mov_b32 s{sT0}, {F12}")
    a(f"s_mov_b32 s{sT1}, 0")
    a.label("K12_poll")
    a(f"buffer_load_dword v{t3}, v{t1}, {sr(SRD_WS,4)}, s{sT0} offen sc1")
    a("s_waitcnt vmcnt(0)")
    a(f"v_cmp_ne_u32 vcc, s{sTok}, v{t3}")
    a("s_cbranch_vccz K12_t2")
    a("s_sleep 4")
    a(f"s_add_u32 s{sT1}, s{sT1}, 1")
    a(f"s_cmp_lt_u32 s{sT1}, 0x80000")
    a("s_cbranch_scc1 K12_poll")
    a.label("K12_t2")
    a("s_barrier")
    a(f"s_cmp_lt_u32 s{sW}, 8")
    a("s_cbranch_scc1 K2_comp")
    a(f"v_mov_b32 v{t1}, {TOK_LDS}")
    a(f"ds_read_b32 v{t2}, v{t1}")
    a("s_waitcnt lgkmcnt(0)")
    a(f"v_readfirstlane_b32 s{sTok}, v{t2}")

    vAo = 18
    vX = 22
    vW2 = 32
    vAcc2 = 48
    vA2 = 64
    a(f"s_sub_u32 s{sLq}, s{sW}, 8")
    a(f"s_mov_b32 s{sMode}, 0")
    a(f"s_cmp_ge_u32 s2, 224")
    a(f"s_cselect_b32 s{sMode}, 1, s{sMode}")
    a(f"s_cmp_ge_u32 s2, 252")
    a(f"s_cselect_b32 s{sMode}, 2, s{sMode}")
    a(f"s_lshl_b32 s{sG0}, s{sH}, 17")
    a(f"s_lshl_b32 s{sT0}, s{sLq}, 15")
    a(f"s_add_u32 s{sG0}, s{sG0}, s{sT0}")
    a(f"s_add_u32 s{sG0}, s{sG0}, {KF}")
    a(f"s_lshl_b32 s{sLo}, s{sLq}, 12")
    a(f"s_mov_b32 s80, s{sG0}")
    a(f"s_mov_b32 s81, 0")

    def issue_stage():
        a(f"s_add_u32 m0, s{sSlotW}, s{sLo}")
        a(f"s_add_u32 s{sT0}, s{sG0}, {2*MB}")
        a(f"buffer_load_dwordx4 v{vD16}, {sr(SRD_WS,4)}, s{sG0} offen sc1 lds")
        a(f"buffer_load_dwordx4 v{vD16}, {sr(SRD_WS,4)}, s{sG0} offen offset:1024 sc1 lds")
        a(f"s_add_u32 m0, m0, 2048")
        a(f"s_add_u32 s{sG0}, s{sG0}, 2048")
        a(f"buffer_load_dwordx4 v{vD16}, {sr(SRD_WS,4)}, s{sT0} offen sc1 lds")
        a(f"buffer_load_dwordx4 v{vD16}, {sr(SRD_WS,4)}, s{sT0} offen offset:1024 sc1 lds")
        a(f"s_add_u32 s{sSlotW}, s{sSlotW}, 16384")
        a(f"s_and_b32 s{sSlotW}, s{sSlotW}, 0xffff")

    a.label("K2_ld_top")
    a(f"s_mov_b32 s{sSlotW}, 0")
    for st in range(3):
        issue_stage()
    a(f"s_cmp_lt_u32 s{sMode}, 2")
    a("s_cbranch_scc1 K2_ldw")
    a("s_waitcnt vmcnt(8)")
    a("s_barrier")
    a(f"s_mov_b32 s{sStage}, 0")
    a.label("K2_ld_loop")
    a("s_waitcnt vmcnt(4)")
    a("s_barrier")
    issue_stage()
    a(f"s_add_u32 s{sStage}, s{sStage}, 1")
    a(f"s_cmp_lt_u32 s{sStage}, 13")
    a("s_cbranch_scc1 K2_ld_loop")
    a.label("K2_ld_tail")
    a("s_waitcnt vmcnt(4)")
    a("s_barrier")
    a("s_waitcnt vmcnt(0)")
    a.label("K2_ld_tail2")
    a("s_barrier")
    a("s_barrier")
    a("s_barrier")
    a(f"v_mov_b32 v{t1}, {K2_FLAG}")
    a(f"ds_read_b32 v{t2}, v{t1}")
    a("s_waitcnt lgkmcnt(0)")
    a(f"v_readfirstlane_b32 s{sT0}, v{t2}")
    a(f"s_cmp_lg_u32 s81, 0")
    a("s_cbranch_scc1 K2_ld_fin")
    a(f"s_cmp_eq_u32 s{sT0}, 0")
    a("s_cbranch_scc1 K2_ld_fin")
    a(f"s_mov_b32 s81, 1")
    a(f"s_mov_b32 s{sMode}, 2")
    a(f"s_mov_b32 s{sG0}, s80")
    a("s_branch K2_ld_top")
    a.label("K2_ld_fin")
    a("s_barrier")
    a("s_endpgm")

    a.label("K2_ldw")
    a(f"s_lshr_b32 s{sCT}, s{sLq}, 1")
    a(f"s_and_b32 s{sT2}, s{sLq}, 1")
    a(f"v_lshrrev_b32 v{t1}, 2, v{vL}")
    a(f"v_and_b32 v{t2}, 3, v{vL}")
    a(f"v_lshlrev_b32 v{t2}, 4, v{t2}")
    a(f"s_mul_i32 s{sT0}, s{sCT}, 28672")
    a(f"s_add_u32 s{sT0}, s{sT0}, {K2_W2}")
    a(f"v_add_u32 v{vWr0}, s{sT0}, v{vWr0}")
    a(f"s_lshl_b32 s{sT1}, s{sT2}, 10")
    a(f"s_add_u32 s{sStage}, s{sT0}, s{sT1}")
    a(f"s_and_b32 s{sRB}, s2, 31")
    a(f"s_lshl_b32 s{sRB}, s{sRB}, 1")
    a(f"s_add_u32 s{sRB}, s{sRB}, s{sT2}")
    make_srd(a, SRD_E, P_X, 2048 * 896)
    sWs, sWo2 = 56, 57
    vWd = 30
    a(f"s_lshl_b32 s{sT0}, s{sRB}, 5")
    a(f"v_add_u32 v{t4}, s{sT0}, v{vI}")
    a(f"s_cmp_eq_u32 s{sMode}, 1")
    a("s_cbranch_scc1 K2_ld_w3")
    make_srd(a, SRD_W, P_W2, 448 * 896)
    make_srd(a, SRD_A, P_WS, HF_SIZE, HF)
    a(f"v_mul_u32_u24 v{t1}, 896, v{t1}")
    a(f"v_add_u32 v{vWd}, v{t1}, v{t2}")
    a(f"s_lshr_b32 s{sWo2}, s2, 5")
    a(f"s_lshl_b32 s{sWo2}, s{sWo2}, 7")
    a(f"s_mov_b32 s{sWs}, {16*896}")
    for g, sh in enumerate((1, -1, 2, -2)):
        a(f"v_subrev_u32 v{t2}, {sh}, v{t4}" if sh > 0 else f"v_add_u32 v{t2}, {-sh}, v{t4}")
        a(f"v_lshrrev_b32 v{t3}, 5, v{t2}")
        a(f"v_mul_u32_u24 v{t3}, 28672, v{t3}")
        a(f"v_and_b32 v{vAo+g}, 31, v{t2}")
        a(f"v_lshl_add_u32 v{vAo+g}, v{vHF}, 5, v{vAo+g}")
        a(f"v_lshl_add_u32 v{vAo+g}, v{vAo+g}, 4, v{t3}")
        a(f"v_cmp_gt_u32 vcc, 2048, v{t2}")
        a(f"v_mov_b32 v{t3}, 0x80000000")
        a("s_nop 0")
        a(f"v_cndmask_b32 v{vAo+g}, v{t3}, v{vAo+g}, vcc")
    a("s_branch K2_ld_w")
    a.label("K2_ld_w3")
    make_srd(a, SRD_W, P_W3, 448 * 3584)
    make_srd(a, SRD_A, P_WS, 65536, VF + 448)
    a(f"v_mul_u32_u24 v{t1}, 3584, v{t1}")
    a(f"v_add_u32 v{vWd}, v{t1}, v{t2}")
    a(f"s_sub_u32 s{sWo2}, s2, 224")
    a(f"s_lshl_b32 s{sWo2}, s{sWo2}, 7")
    a(f"s_mov_b32 s{sWs}, {16*3584}")
    for g in range(4):
        a(f"v_mov_b32 v{vAo+g}, 0")
    a.label("K2_ld_w")
    a(f"s_lshl_b32 s{sT0}, s{sCT}, 6")
    a(f"s_add_u32 s{sWo2}, s{sWo2}, s{sT0}")
    a(f"s_mul_i32 s{sT0}, s{sWs}, s{sT2}")
    a(f"s_add_u32 s{sWo2}, s{sWo2}, s{sT0}")
    a(f"s_lshl_b32 s{sWs}, s{sWs}, 1")
    a(f"v_mul_u32_u24 v{t4}, 896, v{t4}")
    a(f"v_lshl_add_u32 v{t4}, v{vHF}, 3, v{t4}")

    ops = ["st0"] * 4 + ["st1"] * 4 + ["st2"] * 4
    def wait_for(tag):
        last = max(i for i, t in enumerate(ops) if t == tag)
        a(f"s_waitcnt vmcnt({len(ops)-1-last})")
    def w_dma(ts):
        for t in ts:
            a(f"s_add_u32 m0, s{sStage}, {2048*t}")
            a("s_nop 0")
            a(f"buffer_load_dwordx4 v{vWd}, {sr(SRD_W,4)}, s{sWo2} offen lds")
            a(f"s_add_u32 s{sWo2}, s{sWo2}, s{sWs}")
            ops.append("w")
    def a_loads(kss, tag):
        for ks in kss:
            a(f"s_mov_b32 s{sT0}, {1024*ks}")
            a(f"buffer_load_dwordx4 {vr(vA2+4*(ks%14),4)}, v{vAo+ks//7}, {sr(SRD_A,4)}, s{sT0} offen sc1")
            ops.append(tag)
    def x_loads():
        a(f"s_lshr_b32 s{sT0}, s2, 5")
        a(f"s_lshl_b32 s{sT0}, s{sT0}, 7")
        a(f"s_lshl_b32 s{sT1}, s{sCT}, 6")
        a(f"s_add_u32 s{sT0}, s{sT0}, s{sT1}")
        for q in range(4):
            a(f"buffer_load_dwordx2 {vr(vX+2*q,2)}, v{t4}, {sr(SRD_E,4)}, s{sT0} offen offset:{16*q}")
            ops.append("x")
    def kstep_group(kss):
        def rd(ks):
            b = ks & 3
            a(f"ds_read_b64_tr_b16 {vr(vW2+4*b,2)}, v{vWr0} offset:{1024*ks}")
            a(f"ds_read_b64_tr_b16 {vr(vW2+4*b+2,2)}, v{vWr0} offset:{1024*ks+512}")
        for ks in kss:
            rd(ks)
        for n, ks in enumerate(kss):
            a(f"s_waitcnt lgkmcnt({2*(len(kss)-1-n)})")
            C = "0" if ks == 0 else vr(vAcc2, 16)
            a(f"v_mfma_f32_32x32x16_bf16 {vr(vAcc2,16)}, {vr(vW2+4*(ks&3),4)}, {vr(vA2+4*(ks%14),4)}, {C}")

    wait_for("st0")
    a("s_barrier")
    for j in range(13):
        wait_for(f"st{j+1}")
        a("s_barrier")
        issue_stage()
        ops.extend([f"st{j+3}"] * 4)
        if j == 0: w_dma(range(0, 7))
        if j == 1: w_dma(range(7, 14))
        if j == 2:
            a(f"s_and_b32 s{sT0}, s2, 31")
            a(f"v_and_b32 v{t1}, 7, v{vL}")
            a(f"v_min_u32 v{t1}, 5, v{t1}")
            a(f"v_lshrrev_b32 v{t2}, 1, v{t1}")
            a(f"v_add_u32 v{t2}, s{sT0}, v{t2}")
            a(f"v_max_u32 v{t2}, 1, v{t2}")
            a(f"v_min_u32 v{t2}, 32, v{t2}")
            a(f"v_subrev_u32 v{t2}, 1, v{t2}")
            a(f"v_and_b32 v{t1}, 1, v{t1}")
            a(f"v_lshlrev_b32 v{t1}, 2, v{t1}")
            a(f"v_lshl_add_u32 v{t1}, v{t2}, 3, v{t1}")
            a(f"s_mov_b32 s{sT0}, {F12 + 4096}")
            a(f"s_mov_b32 s{sT1}, 0")
            a.label("K12_pollh")
            a(f"buffer_load_dword v{t3}, v{t1}, {sr(SRD_WS,4)}, s{sT0} offen sc1")
            a("s_waitcnt vmcnt(0)")
            a(f"v_cmp_ne_u32 vcc, s{sTok}, v{t3}")
            a("s_cbranch_vccz K12_hok")
            a("s_sleep 4")
            a(f"s_add_u32 s{sT1}, s{sT1}, 1")
            a(f"s_cmp_lt_u32 s{sT1}, 0x80000")
            a("s_cbranch_scc1 K12_pollh")
            a.label("K12_hok")
            a_loads(range(0, 7), "a0")
        if j == 3: a_loads(range(7, 14), "a0")
        if j == 4: x_loads()
        if j == 5:
            wait_for("a0")
            kstep_group([0, 1, 2, 3]); kstep_group([4, 5, 6])
        if j == 6:
            kstep_group([7, 8, 9, 10]); kstep_group([11, 12, 13])
            a_loads(range(14, 21), "a1")
        if j == 7: a_loads(range(21, 28), "a1")
        if j == 10:
            wait_for("a1")
            kstep_group([14, 15, 16, 17]); kstep_group([18, 19, 20])
        if j == 11:
            kstep_group([21, 22, 23, 24]); kstep_group([25, 26, 27])
    a("s_nop 12")
    a(f"s_cmp_eq_u32 s{sMode}, 1")
    a("s_cbranch_scc1 K2_cs3")
    a(f"v_mov_b32 v{t3}, 0")
    a(f"v_mov_b32 v{t4}, 0")
    for r in range(8):
        x = vX + r
        a(f"v_lshlrev_b32 v{t1}, 16, v{x}")
        a(f"v_and_b32 v{t2}, 0xffff0000, v{x}")
        a(f"v_add_f32 v{vAcc2+2*r}, v{vAcc2+2*r}, v{t1}")
        a(f"v_add_f32 v{vAcc2+2*r+1}, v{vAcc2+2*r+1}, v{t2}")
    for r in range(16):
        a(f"v_add_f32 v{t3}, v{t3}, v{vAcc2+r}")
        a(f"v_fmac_f32 v{t4}, v{vAcc2+r}, v{vAcc2+r}")
    for r in range(8):
        a(f"v_cvt_pk_bf16_f32 v{vW2+r}, v{vAcc2+2*r}, v{vAcc2+2*r+1}")
    a(f"s_lshr_b32 s{sT1}, s2, 5")
    a(f"s_lshl_b32 s{sT1}, s{sT1}, 1")
    a(f"s_add_u32 s{sT1}, s{sT1}, s{sCT}")
    a(f"s_mul_i32 s{sT0}, s{sRB}, {28*1024}")
    a(f"s_lshl_b32 s{sT2}, s{sT1}, 11")
    a(f"s_add_u32 s{sT0}, s{sT0}, s{sT2}")
    a(f"s_add_u32 s{sT0}, s{sT0}, {X1F}")
    a("s_waitcnt vmcnt(4)")
    a("s_barrier")
    a(f"buffer_store_dwordx4 {vr(vW2,4)}, v{vD16}, {sr(SRD_WS,4)}, s{sT0} offen")
    a(f"buffer_store_dwordx4 {vr(vW2+4,4)}, v{vD16}, {sr(SRD_WS,4)}, s{sT0} offen offset:1024")
    xhalf_sum(a, t3, t1)
    xhalf_sum(a, t4, t1)
    a(f"s_lshl_b32 s{sT0}, s{sRB}, 5")
    a(f"v_add_u32 v{t1}, s{sT0}, v{vI}")
    a(f"v_mul_u32_u24 v{t1}, 112, v{t1}")
    a(f"s_lshl_b32 s{sT1}, s{sT1}, 3")
    a(f"s_add_u32 s{sT1}, s{sT1}, {STATS}")
    a(f"buffer_store_dwordx2 v[{t3}:{t4}], v{t1}, {sr(SRD_WS,4)}, s{sT1} offen")
    a("s_waitcnt vmcnt(3)")
    a("s_branch K2_ld_tail2")
    a.label("K2_cs3")
    a(f"s_sub_u32 s{sT1}, s2, 224")
    a(f"s_lshl_b32 s{sT1}, s{sT1}, 1")
    a(f"s_add_u32 s{sT1}, s{sT1}, s{sCT}")
    a(f"s_lshl_b32 s{sT1}, s{sT1}, 7")
    a(f"s_add_u32 s{sT1}, s{sT1}, {CS3}")
    a(f"v_lshlrev_b32 v{t1}, 4, v{vHF}")
    a("s_waitcnt vmcnt(4)")
    a("s_barrier")
    a(f"v_cmp_eq_u32 vcc, 0, v{vI}")
    a(f"s_and_saveexec_b64 s[58:59], vcc")
    for q in range(4):
        a(f"buffer_store_dwordx4 {vr(vAcc2+4*q,4)}, v{t1}, {sr(SRD_WS,4)}, s{sT1} offen offset:{32*q}")
    a("s_mov_b64 exec, s[58:59]")
    a("s_waitcnt vmcnt(4)")
    a("s_branch K2_ld_tail2")

    vFloor = 17
    vQ = 20
    vP = 36
    vK = 44
    vV = 52
    vO = 60
    vS = 92
    a.label("K2_comp")
    a(f"s_lshl_b32 s{sQB}, s{sQB}, 2")
    a(f"s_and_b32 s{sT0}, s{sW}, 1")
    a(f"s_lshl_b32 s{sT0}, s{sT0}, 1")
    a(f"s_add_u32 s{sQB}, s{sQB}, s{sT0}")
    a(f"s_lshl_b32 s{sT0}, s{sH}, 6")
    a(f"s_add_u32 s{sT0}, s{sT0}, s{sQB}")
    a(f"s_lshl_b32 s{sT0}, s{sT0}, 11")
    for q in range(4):
        a(f"buffer_load_dwordx4 {vr(vQ+4*q,4)}, v{vD16}, {sr(SRD_WS,4)}, s{sT0} offen offset:{1024*q} sc1")
    a(f"s_lshr_b32 s{sT0}, s{sW}, 1")
    a(f"s_lshl_b32 s{sT0}, s{sT0}, 12")
    a(f"v_add_u32 v{vRd0}, s{sT0}, v{vD16}")
    a(f"v_mov_b32 v{t1}, {K2_FLAG}")
    a(f"v_mov_b32 v{t2}, 0")
    a(f"ds_write_b32 v{t1}, v{t2}")
    a(f"s_mov_b32 s81, 0")
    a.label("K2_restart")
    for r in range(32):
        a(f"v_mov_b32 v{vO+r}, 0")
    a(f"v_mov_b32 v{vMa}, 0")
    a(f"v_mov_b32 v{vMb}, 0")
    a(f"v_mov_b32 v{vFloor}, 0xff800000")
    a(f"s_mov_b32 s{sThr}, 0xff800000")
    a(f"s_mov_b32 s{sStage}, 0")
    a(f"s_mov_b32 s{sSlot}, 0")
    a(f"v_cmp_lt_u32 vcc, 31, v{vL}")
    a("s_waitcnt vmcnt(0)")
    for q in (6, 7, 14, 15):
        a(f"v_cndmask_b32 v{vQ+q}, v{vQ+q}, 0, vcc")
    make_srd(a, SRD_W, P_W4, 1792 * 896)
    make_srd(a, SRD_E, P_WO, 448 * 896)
    a(f"s_lshl_b32 s{sT1}, s2, 3")
    a(f"s_add_u32 s{sT1}, s{sT1}, s{sW}")
    l2_prefetch(a, SRD_W, 1792 * 896, sT1, 2048, vD16, 156, sT0)
    l2_prefetch(a, SRD_E, 448 * 896, sT1, 2048, vD16, 156, sT0)
    stamp(a, "k2")
    a("s_barrier")
    a(f"ds_read_b128 {vr(vK,4)}, v{vRd0}")
    a(f"ds_read_b128 {vr(vK+4,4)}, v{vRd0} offset:1024")
    a("s_waitcnt lgkmcnt(0)")
    for b in range(2):
        a(f"v_mfma_f32_32x32x16_bf16 {vr(vS+16*b,16)}, {vr(vK,4)}, {vr(vQ+8*b,4)}, 0")
        a(f"v_mfma_f32_32x32x16_bf16 {vr(vS+16*b,16)}, {vr(vK+4,4)}, {vr(vQ+8*b+4,4)}, {vr(vS+16*b,16)}")
    a("s_nop 7")
    stamp(a, "k2")
    Oa, Ob = vO, vO + 16

    def body(p, careful=True, tag=""):
        S, Sn = vS + 32 * p, vS + 32 * (1 - p)
        if STAMP == "k2it":
            a("s_memtime s[76:77]")
            a("s_waitcnt lgkmcnt(0)")
            a(f"s_lshl_b32 s78, s{sStage}, 1")
            a("s_mov_b32 m0, s78"); a("s_nop 0"); a("v_writelane_b32 v158, s76, m0")
        a("s_barrier")
        if STAMP == "k2it":
            a("s_memtime s[76:77]")
            a("s_waitcnt lgkmcnt(0)")
            a(f"s_add_u32 s78, s78, 1")
            a("s_mov_b32 m0, s78"); a("s_nop 0"); a("v_writelane_b32 v158, s76, m0")
        a(f"v_add_u32 v{vRdV}, s{sSlot}, v{vRd0}")
        a(f"s_add_u32 s{sSlot}, s{sSlot}, 16384")
        a(f"s_and_b32 s{sSlot}, s{sSlot}, 0xffff")
        a(f"v_add_u32 v{vRdK}, s{sSlot}, v{vRd0}")
        a(f"ds_read_b128 {vr(vK,4)}, v{vRdK}")
        a(f"ds_read_b128 {vr(vK+4,4)}, v{vRdK} offset:1024")
        a(f"ds_read_b128 {vr(vV,4)}, v{vRdV} offset:2048")
        a(f"ds_read_b128 {vr(vV+4,4)}, v{vRdV} offset:3072")
        if careful:
            a(f"v_max3_f32 v{vTa}, v{S}, v{S+1}, v{S+2}")
            a(f"v_max3_f32 v{t1}, v{S+3}, v{S+4}, v{S+5}")
            for r in range(6, 14, 4):
                a(f"v_max3_f32 v{vTa}, v{vTa}, v{S+r}, v{S+r+1}")
                a(f"v_max3_f32 v{t1}, v{t1}, v{S+r+2}, v{S+r+3}")
            a(f"v_max3_f32 v{vTa}, v{vTa}, v{S+14}, v{S+15}")
            a(f"v_max3_f32 v{vTb}, v{S+16}, v{S+17}, v{S+18}")
            a(f"v_max_f32 v{vTa}, v{vTa}, v{t1}")
            a(f"v_max3_f32 v{t1}, v{S+19}, v{S+20}, v{S+21}")
            for r in range(22, 30, 4):
                a(f"v_max3_f32 v{vTb}, v{vTb}, v{S+r}, v{S+r+1}")
                a(f"v_max3_f32 v{t1}, v{t1}, v{S+r+2}, v{S+r+3}")
            a(f"v_max3_f32 v{vTb}, v{vTb}, v{S+30}, v{S+31}")
            a(f"v_max_f32 v{vTb}, v{vTb}, v{t1}")
            a(f"v_max_f32 v{t1}, v{vTa}, v{vTb}")
            a(f"v_cmp_lt_f32 vcc, s{sThr}, v{t1}")
            a(f"s_cbranch_vccnz A_slow{p}{tag}")
            a.label(f"A_ret{p}{tag}")
        if careful:
            a("s_waitcnt lgkmcnt(2)")
            a(f"v_mfma_f32_32x32x16_bf16 {vr(Sn,16)}, {vr(vK,4)}, {vr(vQ,4)}, 0")
            for r in range(4):
                a(f"v_exp_f32 v{S+r}, v{S+r}")
            a(f"v_mfma_f32_32x32x16_bf16 {vr(Sn+16,16)}, {vr(vK,4)}, {vr(vQ+8,4)}, 0")
            for r in range(4, 9):
                a(f"v_exp_f32 v{S+r}, v{S+r}")
        else:
            for r in range(6):
                a(f"v_exp_f32 v{S+r}, v{S+r}")
            a("s_waitcnt lgkmcnt(2)")
            a(f"v_mfma_f32_32x32x16_bf16 {vr(Sn,16)}, {vr(vK,4)}, {vr(vQ,4)}, 0")
            for r in range(6, 9):
                a(f"v_exp_f32 v{S+r}, v{S+r}")
            a(f"v_mfma_f32_32x32x16_bf16 {vr(Sn+16,16)}, {vr(vK,4)}, {vr(vQ+8,4)}, 0")
        for r in range(4):
            a(f"v_cvt_pk_bf16_f32 v{vP+r}, v{S+2*r}, v{S+2*r+1}")
        a(f"v_exp_f32 v{S+9}, v{S+9}")
        a("s_waitcnt lgkmcnt(0)")
        a(f"v_mfma_f32_32x32x16_bf16 {vr(Oa,16)}, {vr(vV,4)}, {vr(vP,4)}, {vr(Oa,16)}")
        for r in range(10, 13):
            a(f"v_exp_f32 v{S+r}, v{S+r}")
        a(f"v_mfma_f32_32x32x16_bf16 {vr(Sn,16)}, {vr(vK+4,4)}, {vr(vQ+4,4)}, {vr(Sn,16)}")
        for r in range(13, 17):
            a(f"v_exp_f32 v{S+r}, v{S+r}")
        for r in range(4, 8):
            a(f"v_cvt_pk_bf16_f32 v{vP+r}, v{S+2*r}, v{S+2*r+1}")
        a(f"v_exp_f32 v{S+17}, v{S+17}")
        a(f"v_exp_f32 v{S+18}, v{S+18}")
        a(f"v_mfma_f32_32x32x16_bf16 {vr(Oa,16)}, {vr(vV+4,4)}, {vr(vP+4,4)}, {vr(Oa,16)}")
        for r in range(19, 22):
            a(f"v_exp_f32 v{S+r}, v{S+r}")
        a(f"v_mfma_f32_32x32x16_bf16 {vr(Sn+16,16)}, {vr(vK+4,4)}, {vr(vQ+12,4)}, {vr(Sn+16,16)}")
        for r in range(22, 25):
            a(f"v_exp_f32 v{S+r}, v{S+r}")
        for r in range(4):
            a(f"v_cvt_pk_bf16_f32 v{vP+r}, v{S+16+2*r}, v{S+16+2*r+1}")
        a(f"v_exp_f32 v{S+25}, v{S+25}")
        a(f"v_exp_f32 v{S+26}, v{S+26}")
        a(f"v_mfma_f32_32x32x16_bf16 {vr(Ob,16)}, {vr(vV,4)}, {vr(vP,4)}, {vr(Ob,16)}")
        for r in range(27, 32):
            a(f"v_exp_f32 v{S+r}, v{S+r}")
        a(f"s_add_u32 s{sStage}, s{sStage}, 1")
        for r in range(4, 8):
            a(f"v_cvt_pk_bf16_f32 v{vP+r}, v{S+16+2*r}, v{S+16+2*r+1}")
        a(f"s_cmp_lt_u32 s{sStage}, 16")
        a("s_nop 0")
        a(f"v_mfma_f32_32x32x16_bf16 {vr(Ob,16)}, {vr(vV+4,4)}, {vr(vP+4,4)}, {vr(Ob,16)}")

    a(f"s_cmp_lg_u32 s81, 0")
    a("s_cbranch_scc1 A_loop")
    body(0, True, "f")
    a.raw(".p2align 6")
    a.label("A_fast")
    body(1, False)
    a(f"s_cmp_lt_u32 s{sStage}, 16")
    a("s_cbranch_scc0 A_check")
    body(0, False)
    a("s_branch A_fast")
    a.label("A_check")
    a(f"v_mov_b32 v{t1}, 0")
    a("s_nop 10")
    for r in range(32):
        a(f"v_fmac_f32 v{t1}, 0, v{vO+r}")
    a(f"v_cmp_u_f32 vcc, v{t1}, v{t1}")
    a("s_cbranch_vccz A_end")
    a(f"v_mov_b32 v{t1}, {K2_FLAG}")
    a(f"v_mov_b32 v{t2}, 1")
    a(f"ds_write_b32 v{t1}, v{t2}")
    a("s_waitcnt lgkmcnt(0)")
    a("s_branch A_end")
    a.raw(".p2align 6")
    a.label("A_loop")
    body(0)
    body(1)
    a("s_cbranch_scc1 A_loop")
    a.label("A_end")

    stamp(a, "k2")
    if STAMP == "k2it":
        a("s_cmp_eq_u32 s2, 100")
        a("s_cbranch_scc0 K2_itskip")
        a(f"s_cmp_eq_u32 s{sW}, {os.environ.get('ITW','0')}")
        a("s_cbranch_scc0 K2_itskip")
        make_srd(a, SRD_F, P_DBG, 256)
        a(f"v_lshlrev_b32 v159, 2, v{vL}")
        a(f"buffer_store_dword v158, v159, s[{SRD_F}:{SRD_F+3}], 0 offen")
        a.label("K2_itskip")
    a("s_barrier")
    a(f"v_mov_b32 v{t1}, {K2_FLAG}")
    a(f"ds_read_b32 v{t2}, v{t1}")
    a("s_waitcnt lgkmcnt(0)")
    a(f"v_readfirstlane_b32 s{sT0}, v{t2}")
    a(f"s_cmp_lg_u32 s81, 0")
    a("s_cbranch_scc1 A_fin")
    a(f"s_cmp_eq_u32 s{sT0}, 0")
    a("s_cbranch_scc1 A_fin")
    a(f"s_mov_b32 s81, 1")
    a("s_branch K2_restart")
    a.label("A_fin")
    a(f"s_mul_i32 s{sT0}, s{sW}, 9216")
    a(f"v_add_u32 v{t1}, s{sT0}, v{vD16}")
    a(f"v_lshlrev_b32 v{t2}, 2, v{vL}")
    a(f"v_add_u32 v{t2}, s{sT0}, v{t2}")
    a("s_nop 8")
    for sub in range(2):
        for q in range(4):
            a(f"ds_write_b128 v{t1}, {vr(vO+16*sub+4*q,4)} offset:{4608*sub+1024*q}")
    a(f"ds_write_b32 v{t2}, v{vMa} offset:4096")
    a(f"ds_write_b32 v{t2}, v{vMb} offset:{4608+4096}")
    a("s_waitcnt lgkmcnt(0)")
    a("s_barrier")
    a(f"s_cmp_lt_u32 s{sW}, 4")
    a("s_cbranch_scc0 K2_exit")
    a(f"s_and_b32 s{sT0}, s{sW}, 1")
    a(f"s_mul_i32 s{sT0}, s{sT0}, 9216")
    a(f"s_lshr_b32 s{sT1}, s{sW}, 1")
    a(f"s_mul_i32 s{sT2}, s{sT1}, 4608")
    a(f"s_add_u32 s{sT0}, s{sT0}, s{sT2}")
    a(f"v_add_u32 v{t1}, s{sT0}, v{vD16}")
    a(f"v_lshlrev_b32 v{t2}, 2, v{vL}")
    a(f"v_add_u32 v{t2}, s{sT0}, v{t2}")
    R, MM, PK = 92, 20, 24
    for kq in range(4):
        a(f"ds_read_b32 v{MM+kq}, v{t2} offset:{18432*kq+4096}")
    for kq in range(4):
        for q in range(4):
            a(f"ds_read_b128 {vr(R+16*kq+4*q,4)}, v{t1} offset:{18432*kq+1024*q}")
    a("s_waitcnt lgkmcnt(0)")
    a(f"v_max3_f32 v{t3}, v{MM}, v{MM+1}, v{MM+2}")
    a(f"v_max_f32 v{t3}, v{t3}, v{MM+3}")
    for kq in range(4):
        a(f"v_sub_f32 v{MM+kq}, v{MM+kq}, v{t3}")
    for kq in range(4):
        a(f"v_exp_f32 v{MM+kq}, v{MM+kq}")
    a("s_nop 0")
    for r in range(16):
        a(f"v_mul_f32 v{R+r}, v{R+r}, v{MM}")
    for kq in range(1, 4):
        for r in range(16):
            a(f"v_fmac_f32 v{R+r}, v{R+16*kq+r}, v{MM+kq}")
    a(f"v_mov_b32 v{t2}, v{R+12}")
    a(f"v_mov_b32 v{t3}, v{R+12}")
    a("s_nop 1")
    a(f"v_permlane32_swap_b32 v{t2}, v{t3}")
    a(f"v_rcp_f32 v{t3}, v{t3}")
    a(f"v_cmp_lt_u32 vcc, 31, v{vL}")
    for r in range(16):
        a(f"v_mul_f32 v{R+r}, v{R+r}, v{t3}")
    for r in range(8):
        a(f"v_cvt_pk_bf16_f32 v{PK+r}, v{R+2*r}, v{R+2*r+1}")
    a(f"v_cndmask_b32 v{PK+6}, v{PK+6}, 0, vcc")
    a(f"v_cndmask_b32 v{PK+7}, v{PK+7}, 0, vcc")
    a(f"s_add_u32 s{sT0}, s{sQB}, s{sT1}")
    a(f"s_lshl_b32 s{sT0}, s{sT0}, 4")
    a(f"s_add_u32 s{sT0}, s{sT0}, s{sH}")
    a(f"s_lshl_b32 s{sT0}, s{sT0}, 11")
    a(f"s_add_u32 s{sT0}, s{sT0}, {OF}")
    a(f"buffer_store_dwordx4 {vr(PK,4)}, v{vD16}, {sr(SRD_WS,4)}, s{sT0} offen")
    a(f"buffer_store_dwordx4 {vr(PK+4,4)}, v{vD16}, {sr(SRD_WS,4)}, s{sT0} offen offset:1024")
    stamp(a, "k2")
    stamp_flush(a, "k2", 100)
    a("s_endpgm")

    for p, tag in ((0, ""), (1, ""), (0, "f")):
        S = vS + 32 * p
        a.label(f"A_slow{p}{tag}")
        a(f"v_cmp_lt_u32 vcc, 31, v{vL}")
        for sub, (vT, vM) in enumerate(((vTa, vMa), (vTb, vMb))):
            a(f"v_mov_b32 v{t1}, v{vT}")
            a("s_nop 1")
            a(f"v_permlane32_swap_b32 v{vT}, v{t1}")
            a("s_nop 1")
            a(f"v_max3_f32 v{vT}, v{vT}, v{t1}, v{vFloor}")
            a(f"v_add_f32 v{vM}, v{vM}, v{vT}")
            a(f"v_max_f32 v{t1}, 0, v{vT}")
            a(f"v_exp_f32 v{t1}, -v{t1}")
            for r in range(16):
                a(f"v_sub_f32 v{S+16*sub+r}, v{S+16*sub+r}, v{vT}")
            for r in range(16):
                a(f"v_mul_f32 v{vO+16*sub+r}, v{vO+16*sub+r}, v{t1}")
            a(f"v_sub_f32 v{t1}, 0, v{vM}")
            a(f"v_cvt_pk_bf16_f32 v{t2}, v{t1}, v{t1}")
            a(f"v_and_b32 v{t2}, 0xffff0000, v{t2}")
            a(f"v_sub_f32 v{t1}, v{t1}, v{t2}")
            a(f"v_cvt_pk_bf16_f32 v{t3}, v{t1}, v{t1}")
            a(f"v_and_b32 v{t3}, 0xffff0000, v{t3}")
            a(f"v_sub_f32 v{t1}, v{t1}, v{t3}")
            a(f"v_cvt_pk_bf16_f32 v{t2}, v{t2}, v{t3}")
            a(f"v_cvt_pk_bf16_f32 v{t3}, v{t1}, 0")
            a(f"v_cndmask_b32 v{vQ+8*sub+6}, v{vQ+8*sub+6}, v{t2}, vcc")
            a(f"v_cndmask_b32 v{vQ+8*sub+7}, v{vQ+8*sub+7}, v{t3}, vcc")
        a(f"v_mov_b32 v{vFloor}, 0")
        a(f"s_mov_b32 s{sThr}, 0x42000000")
        a(f"s_branch A_ret{p}{tag}")
    a.label("K2_exit")
    a("s_endpgm")
```

```python
from gen import *
from gen_tp import *
from gen_k2 import STATS, CS3

K3_RING = 114688
K3_CS = K3_RING + 5 * 8192
K3_CNT = K3_CS + 1024
K3_LDS = K3_CNT + 256


def gen_k3(a):
    kernel_head(a, "k3_kernel")
    a("s_cmp_ge_u32 s2, 224")
    a("s_cbranch_scc1 K3_exit")
    stamp(a, "k3")
    load_ptrs(a)
    sW, sT0, sT1, sRB, sCB, sWB, sMA, sK1, sST = 60, 61, 62, 63, 64, 65, 66, 68, 69
    sAoff, sWoff, sCnt, sWslot, sWg, sG = 70, 71, 72, 73, 74, 75
    vL, vHF, vI, vWr0 = 1, 2, 3, 4
    vWd, vD16, vWr, vAr0, vAr = 5, 6, 7, 11, 17
    t1, t2, t3 = 8, 9, 10
    vMean, vK0, vRstd, vCsA = 12, 13, 14, 15
    vAf = 20
    vWf = 36
    vAcc = 68
    vTmp = 100
    vP = 116
    vCs = 124
    vSt = 140
    lane_consts(a, vL, vHF, vI, vWr0, t1, t2, 4)
    a(f"v_lshrrev_b32 v{t1}, 6, v0")
    a(f"v_lshlrev_b32 v{vD16}, 4, v{vL}")
    a(f"v_readfirstlane_b32 s{sW}, v{t1}")
    a("s_waitcnt lgkmcnt(0)")
    make_srd(a, SRD_WS, P_WS, WS_SIZE)
    a(f"s_and_b32 s{sRB}, s2, 3")
    a(f"s_lshl_b32 s{sRB}, s{sRB}, 2")
    a(f"s_bfe_u32 s{sT0}, s2, 0x20003")
    a(f"s_add_u32 s{sRB}, s{sRB}, s{sT0}")
    a(f"s_bfe_u32 s{sCB}, s2, 0x10002")
    a(f"s_mul_i32 s{sCB}, s{sCB}, 7")
    a(f"s_lshr_b32 s{sT0}, s2, 5")
    a(f"s_add_u32 s{sCB}, s{sCB}, s{sT0}")
    a(f"s_mov_b32 s90, s{sRB}")
    a(f"s_mov_b32 s91, s{sCB}")
    a(f"s_lshr_b32 s{sG}, s{sW}, 2")
    a(f"s_and_b32 s{sW}, s{sW}, 3")
    a(f"s_lshl_b32 s{sRB}, s{sRB}, 2")
    a(f"s_add_u32 s{sRB}, s{sRB}, s{sW}")
    a(f"s_cmp_lt_u32 s{sG}, 2")
    a("s_cbranch_scc1 K3_common")
    make_srd(a, SRD_W, P_W3, 448 * 3584)
    a(f"s_lshl_b32 s{sWB}, s{sCB}, 8")
    a(f"s_mul_i32 s{sT0}, s{sW}, {16*3584}")
    a(f"s_add_u32 s{sWB}, s{sWB}, s{sT0}")
    a(f"s_lshl_b32 s{sMA}, s{sW}, 10")
    a(f"s_add_u32 s{sMA}, s{sMA}, {K3_RING}")
    a(f"v_lshrrev_b32 v{t1}, 2, v{vL}")
    a(f"v_mul_u32_u24 v{t1}, 3584, v{t1}")
    a(f"v_and_b32 v{t2}, 3, v{vL}")
    a(f"v_lshlrev_b32 v{t2}, 4, v{t2}")
    a(f"v_add_u32 v{vWd}, v{t1}, v{t2}")
    a(f"s_mul_i32 s{sT1}, s{sRB}, {28*1024}")
    a(f"s_add_u32 s{sT1}, s{sT1}, {X1F}")
    a(f"s_mul_i32 s{sAoff}, s{sW}, 28672")
    ops = []

    def issue_a(c):
        a(f"s_add_u32 m0, s{sAoff}, {4096*c}")
        a(f"s_add_u32 s{sT0}, s{sT1}, {4096*c}")
        for s in range(4):
            a(f"buffer_load_dwordx4 v{vD16}, {sr(SRD_WS,4)}, s{sT0} offen offset:{1024*s} lds")
            ops.append(c)

    def issue_w(i):
        p, c = divmod(i, 7)
        for tt in range(2):
            t = 2 * p + tt
            a(f"s_add_u32 m0, s{sMA}, {(i%5)*8192 + tt*4096}")
            a(f"s_add_u32 s{sT0}, s{sWB}, {64*c*3584 + 64*t}")
            a(f"buffer_load_dwordx4 v{vWd}, {sr(SRD_W,4)}, s{sT0} offen lds")
            ops.append(i)
    for i in range(5):
        issue_a(i)
        issue_w(i)
    a(f"s_lshl_b32 s{sT0}, s{sCB}, 9")
    a(f"s_add_u32 s{sT0}, s{sT0}, {CS3}")
    a(f"s_mov_b32 m0, {K3_CS}")
    a("s_nop 0")
    a(f"buffer_load_dwordx4 v{vD16}, {sr(SRD_WS,4)}, s{sT0} offen lds")
    ops.append(5)
    issue_a(5)
    issue_a(6)
    for i in range(15):
        if i < 14:
            last = max(k for k, t in enumerate(ops) if t == i)
            a(f"s_waitcnt vmcnt({min(len(ops)-1-last, 63)})")
        a("s_barrier")
        if i >= 2 and i + 3 < 14:
            issue_w(i + 3)
    a("s_barrier")
    a("s_branch K34_publish")
    a.label("K3_common")
    a(f"s_lshl_b32 s{sT0}, s{sRB}, 5")
    a(f"v_add_u32 v{t1}, s{sT0}, v{vI}")
    a(f"v_mul_u32_u24 v{t1}, 112, v{t1}")
    a(f"s_mov_b32 s{sT0}, {STATS}")
    for q in range(7):
        a(f"buffer_load_dwordx4 {vr(vSt+4*q,4)}, v{t1}, {sr(SRD_WS,4)}, s{sT0} offen offset:{16*q}")
    a(f"v_mov_b32 v{t1}, {K3_CNT}")
    a(f"v_mov_b32 v{t2}, 0")
    a(f"ds_write_b32 v{t1}, v{t2}")
    a(f"ds_write_b32 v{t1}, v{t2} offset:4")
    a(f"v_lshlrev_b32 v{vCsA}, 4, v{vHF}")
    a(f"s_lshl_b32 s{sT0}, s{sG}, 8")
    a(f"s_add_u32 s{sT0}, s{sT0}, {K3_CS}")
    a(f"v_add_u32 v{vCsA}, s{sT0}, v{vCsA}")
    a(f"s_mul_i32 s{sST}, s{sRB}, {112*1024}")
    a(f"s_lshl_b32 s{sT0}, s{sCB}, 13")
    a(f"s_add_u32 s{sST}, s{sST}, s{sT0}")
    a(f"s_lshl_b32 s{sT0}, s{sG}, 12")
    a(f"s_add_u32 s{sST}, s{sST}, s{sT0}")
    a(f"s_add_u32 s{sST}, s{sST}, {H2F}")
    a(f"s_mov_b32 s{sK1}, {f2u(GK1)}")
    a(f"v_mov_b32 v{vK0}, {f2u(GK0)}")
    a(f"s_mul_i32 s{sT0}, s{sW}, 28672")
    a(f"v_add_u32 v{vAr0}, s{sT0}, v{vD16}")
    a(f"v_add_u32 v{vWr0}, {K3_RING}, v{vWr0}")

    sAo2 = 76 if not STAMP else 100
    def setaddr():
        a(f"v_add_u32 v{vAr}, s{sAo2}, v{vAr0}")
        a(f"v_add_u32 v{vWr}, s{sWoff}, v{vWr0}")
        a(f"s_add_u32 s{sAo2}, s{sAo2}, 4096")
        a(f"s_add_u32 s{sWoff}, s{sWoff}, 8192")
        a(f"s_cmp_lt_u32 s{sWoff}, {5*8192}")
        a(f"s_cselect_b32 s{sWoff}, s{sWoff}, 0")

    def rd_a(b, s):
        a(f"ds_read_b128 {vr(vAf+4*b,4)}, v{vAr} offset:{1024*s}")

    def rd_w(b, s, tt):
        o = tt * 4096 + s * 1024
        a(f"ds_read_b64_tr_b16 {vr(vWf+8*b+4*tt,2)}, v{vWr} offset:{o}")
        a(f"ds_read_b64_tr_b16 {vr(vWf+8*b+4*tt+2,2)}, v{vWr} offset:{o+512}")

    def epilogue():
        L = ["s_waitcnt vmcnt(0)"]
        for q in range(1, 14):
            L.append(f"v_add_f32 v{vSt}, v{vSt}, v{vSt+2*q}")
            L.append(f"v_add_f32 v{vSt+1}, v{vSt+1}, v{vSt+2*q+1}")
        L.append(f"v_mul_f32 v{vMean}, {f2u(1.0/448)}, v{vSt}")
        L.append(f"v_mul_f32 v{vRstd}, {f2u(1.0/448)}, v{vSt+1}")
        L.append(f"v_fma_f32 v{vRstd}, -v{vMean}, v{vMean}, v{vRstd}")
        L.append(f"v_add_f32 v{vRstd}, {f2u(1e-5)}, v{vRstd}")
        L.append(f"v_rsq_f32 v{vRstd}, v{vRstd}")
        for t in range(2):
            A = vAcc + 16 * t
            L += [f"ds_read_b128 {vr(vCs+4*q,4)}, v{vCsA} offset:{128*t+32*q}" for q in range(4)]
            L.append("s_waitcnt lgkmcnt(0)")
            for r in range(16):
                L.append(f"v_fma_f32 v{A+r}, -v{vMean}, v{vCs+r}, v{A+r}")
            for r in range(16):
                L.append(f"v_mul_f32 v{A+r}, v{vRstd}, v{A+r}")
            L += gelu_list([A + r for r in range(16)], vTmp, vK0, sK1)
            for r in range(8):
                L.append(f"v_cvt_pk_bf16_f32 v{vP+r}, v{A+2*r}, v{A+2*r+1}")
            L.append(f"buffer_store_dwordx4 {vr(vP,4)}, v{vD16}, {sr(SRD_WS,4)}, s{sST} offen offset:{2048*t} sc1")
            L.append(f"buffer_store_dwordx4 {vr(vP+4,4)}, v{vD16}, {sr(SRD_WS,4)}, s{sST} offen offset:{2048*t+1024} sc1")
            L.append("s_nop 1")
        return L

    a(f"s_mov_b32 s{sAo2}, 0")
    a(f"s_cmp_eq_u32 s{sG}, 0")
    a("s_cbranch_scc0 K3_B")
    if 'k3pf' in os.environ.get('PF',''):
        make_srd(a, SRD_W, P_W3, 448 * 3584)
        a(f"s_lshr_b32 s{sT1}, s2, 3")
        a(f"s_lshl_b32 s{sT1}, s{sT1}, 2")
        a(f"s_add_u32 s{sT1}, s{sT1}, s{sW}")
        l2_prefetch(a, SRD_W, 448 * 3584, sT1, 112, vD16, vTmp, sT0)
    a(f"s_mov_b32 s{sWoff}, 0")
    stamp(a, "k3")
    a("s_barrier")
    stamp(a, "k3")
    setaddr()
    pass_loop(a, "K3A", vAf, vWf, vAcc, sCnt, setaddr, rd_a, rd_w, lambda post: None)
    stamp(a, "k3")
    emit_with_barriers(a, epilogue(), 7)
    a("s_barrier")
    stamp(a, "k3")
    a("s_branch K34_publish")
    a.label("K3_B")
    for i in range(8):
        a("s_barrier")
    a(f"s_mov_b32 s{sWoff}, {(7%5)*8192}")
    setaddr()
    pass_loop(a, "K3B", vAf, vWf, vAcc, sCnt, setaddr, rd_a, rd_w, lambda post: None)
    a("s_barrier")
    a("s_nop 10")
    for x in epilogue():
        a(x)
    a.label("K34_publish")
    import gen_k4
    gen_k4.phase2(a, sG, sW)
    a.label("K3_exit")
    a("s_endpgm")
```

```python
from gen import *

K4_LDS = 4 * 32768


def phase2(a, sGin, sWin):
    sW, sT0, sT1, sRB, sCB = 60, 61, 62, 63, 64
    sAg, sWg, sSlotW, sSlotR, sC, sMA, sMW = 65, 66, 67, 68, 69, 70, 71
    sAo, sWo, sG = 72, 73, 75
    vL, vHF, vI, vWr0 = 1, 2, 3, 4
    vWd, vD16, vWr, vAr0, vAr = 5, 6, 7, 8, 9
    t1, t2, t3 = 10, 11, 12
    vG = 13
    vX1 = 16
    vAf = 24
    vWf = 56
    vAccB = 88
    vAccA = 104
    vP = 120
    assert sGin == sG and sWin == sW
    sP, sMask, sCnt2 = 74, 76 if not STAMP else 100, 77 if not STAMP else 101
    lane_consts(a, vL, vHF, vI, vWr0, t1, t2, 4)
    a(f"s_and_b32 s{sRB}, s2, 31")
    a(f"s_lshr_b32 s{sCB}, s2, 5")
    a(f"s_cmp_lt_u32 s{sG}, 2")
    a("s_cbranch_scc1 K4_pub")
    make_srd(a, SRD_W, P_W4, 1792 * 896)
    make_srd(a, SRD_E, P_WO, 448 * 896)
    a(f"s_lshr_b32 s{sC}, s{sRB}, 1")
    a(f"s_lshl_b32 s{sC}, s{sC}, 8")
    a(f"s_add_u32 s{sC}, s{sC}, {FLAGS}")
    a(f"s_and_b32 s{sT0}, s{sW}, 1")
    a(f"s_lshr_b32 s{sT1}, s{sW}, 1")
    a(f"s_lshl_b32 s{sMA}, s{sT0}, 13")
    a(f"s_lshl_b32 s{sMW}, s{sT1}, 12")
    a(f"s_add_u32 s{sMA}, s{sMA}, s{sMW}")
    a(f"s_add_u32 s{sMW}, s{sMA}, 16384")
    a(f"s_lshl_b32 s{sAg}, s{sRB}, 1")
    a(f"s_add_u32 s{sAg}, s{sAg}, s{sT0}")
    a(f"s_lshl_b32 s{sAo}, s{sAg}, 15")
    a(f"s_mul_i32 s{sAg}, s{sAg}, {112*1024}")
    a(f"s_lshl_b32 s{sWg}, s{sT1}, 12")
    a(f"s_add_u32 s{sAg}, s{sAg}, s{sWg}")
    a(f"s_add_u32 s{sAo}, s{sAo}, s{sWg}")
    a(f"s_add_u32 s{sAg}, s{sAg}, {H2F}")
    a(f"s_add_u32 s{sAo}, s{sAo}, {OF}")
    a(f"s_lshl_b32 s{sWg}, s{sCB}, 1")
    a(f"s_add_u32 s{sWg}, s{sWg}, s{sT0}")
    a(f"s_lshl_b32 s{sWg}, s{sWg}, 6")
    a(f"s_mul_i32 s{sWo}, s{sT1}, {56*896}")
    a(f"s_add_u32 s{sWo}, s{sWo}, s{sWg}")
    a(f"s_mul_i32 s{sT1}, s{sT1}, {64*896}")
    a(f"s_add_u32 s{sWg}, s{sWg}, s{sT1}")
    a(f"v_lshrrev_b32 v{t1}, 2, v{vL}")
    a(f"v_mul_u32_u24 v{t1}, 896, v{t1}")
    a(f"v_and_b32 v{t2}, 3, v{vL}")
    a(f"v_lshlrev_b32 v{t2}, 4, v{t2}")
    a(f"v_add_u32 v{vWd}, v{t1}, v{t2}")
    a(f"s_mov_b32 s{sP}, 0")
    a(f"s_mov_b32 s{sMask}, 0")
    a(f"v_mov_b32 v{t3}, 0")

    pl = [0]
    def issue(kind):
        if kind == 'wo':
            sA, sWW, srd, sc = sAo, sWo, SRD_E, ""
        else:
            pl[0] += 1
            n = pl[0]
            sA, sWW, srd, sc = 78 if not STAMP else 98, 79 if not STAMP else 99, SRD_W, " sc1"
            a(f"s_lshl_b32 s{sT0}, s{sP}, 13")
            a(f"s_add_u32 s{sA}, s{sAg}, s{sT0}")
            a(f"s_mul_i32 s{sT0}, s{sP}, {128*896}")
            a(f"s_add_u32 s{sWW}, s{sWg}, s{sT0}")
            a(f"s_add_u32 s{sP}, s{sP}, 1")
            a(f"s_cmp_lt_u32 s{sP}, 14")
            a(f"s_cselect_b32 s{sP}, s{sP}, 0")
        a(f"s_add_u32 s{sT1}, s{sMW}, s{sSlotW}")
        for j in range(4):
            a(f"s_add_u32 m0, s{sT1}, {1024*j}")
            ro = 16 * j if kind == 'w4' else 28 * (j >> 1) + 16 * (j & 1)
            a(f"s_add_u32 s{sT0}, s{sWW}, {ro*896}")
            a(f"buffer_load_dwordx4 v{vWd}, {sr(srd,4)}, s{sT0} offen lds")
        a(f"s_add_u32 m0, s{sMA}, s{sSlotW}")
        a("s_nop 0")
        for j in range(4):
            a(f"buffer_load_dwordx4 v{vD16}, {sr(SRD_WS,4)}, s{sA} offen offset:{1024*j}{sc} lds")
        if kind == 'wo':
            a(f"s_add_u32 s{sA}, s{sA}, 8192")
            a(f"s_add_u32 s{sWW}, s{sWW}, {112*896}")
        a(f"s_add_u32 s{sSlotW}, s{sSlotW}, 32768")
        a(f"s_and_b32 s{sSlotW}, s{sSlotW}, 0x1ffff")

    a(f"s_mov_b32 s{sSlotW}, 0")
    for c in range(3):
        issue('wo')
    a("s_waitcnt vmcnt(16)")
    a("s_barrier")
    issue('wo')
    a(f"s_cmp_eq_u32 s{sW}, 0")
    a("s_cbranch_scc0 K4_ready")
    a(f"s_mov_b32 s{sCnt2}, 0")
    a.label("K4_poll")
    a(f"buffer_load_dword v{t1}, v{t3}, {sr(SRD_WS,4)}, s{sC} offen sc1")
    a("s_waitcnt vmcnt(0)")
    a(f"v_readfirstlane_b32 s{sMask}, v{t1}")
    a(f"s_add_u32 s{sCnt2}, s{sCnt2}, 1")
    a(f"s_cmp_eq_u32 s{sMask}, 0x3fff3fff")
    a("s_cbranch_scc1 K4_ready")
    a("s_sleep 4")
    a(f"s_cmp_lt_u32 s{sCnt2}, 0x80000")
    a("s_cbranch_scc1 K4_poll")
    a.label("K4_ready")
    a(f"s_mov_b32 s{sSlotR}, 1")
    a.label("K4_ld1")
    a("s_waitcnt vmcnt(16)")
    a("s_barrier")
    issue('w4')
    a(f"s_add_u32 s{sSlotR}, s{sSlotR}, 1")
    a(f"s_cmp_lt_u32 s{sSlotR}, 15")
    a("s_cbranch_scc1 K4_ld1")
    for n in (16, 8, 0):
        a(f"s_waitcnt vmcnt({n})")
        a("s_barrier")
    stamp(a, "k3")
    stamp_flush(a, "k3", 5)
    a("s_endpgm")

    a.label("K4_pub")
    from gen_k3 import K3_CNT
    a("s_waitcnt vmcnt(0)")
    a(f"s_lshl_b32 s{sT0}, s{sG}, 2")
    a(f"s_add_u32 s{sT0}, s{sT0}, {K3_CNT}")
    a(f"v_mov_b32 v{t1}, s{sT0}")
    a(f"v_mov_b32 v{t2}, 1")
    a(f"v_cmp_eq_u32 vcc, 0, v{vL}")
    a(f"s_and_saveexec_b64 s[52:53], vcc")
    a(f"ds_add_rtn_u32 v{t3}, v{t1}, v{t2}")
    a("s_waitcnt lgkmcnt(0)")
    a(f"v_readfirstlane_b32 s{sT0}, v{t3}")
    a(f"s_cmp_eq_u32 s{sT0}, 3")
    a("s_cbranch_scc0 K4_nopub")
    a(f"s_lshl_b32 s{sT1}, s90, 8")
    a(f"s_add_u32 s{sT1}, s{sT1}, {FLAGS}")
    a(f"s_lshl_b32 s{sT0}, s{sG}, 4")
    a(f"s_add_u32 s{sT0}, s{sT0}, s91")
    a(f"s_lshl_b32 s{sT0}, 1, s{sT0}")
    a(f"v_mov_b32 v{t1}, s{sT0}")
    a(f"v_mov_b32 v{t2}, 0")
    a(f"buffer_atomic_or v{t1}, v{t2}, {sr(SRD_WS,4)}, s{sT1} offen sc1")
    a.label("K4_nopub")
    a("s_mov_b64 exec, s[52:53]")
    a(f"s_cmp_eq_u32 s{sG}, 0")
    a("s_cbranch_scc1 K4_comp")
    a("s_endpgm")
    a.label("K4_comp")
    make_srd(a, SRD_F, P_OUT, 2048 * 896)
    a(f"s_lshl_b32 s{sT0}, s{sRB}, 1")
    a(f"s_and_b32 s{sT1}, s{sW}, 1")
    a(f"s_add_u32 s{sT0}, s{sT0}, s{sT1}")
    a(f"s_lshl_b32 s{sT1}, s{sT0}, 7")
    a(f"s_add_u32 s{sT1}, s{sT1}, {GOFF}")
    a(f"v_lshlrev_b32 v{t1}, 2, v{vI}")
    a(f"buffer_load_dword v{vG}, v{t1}, {sr(SRD_WS,4)}, s{sT1} offen")
    a(f"s_mul_i32 s{sT0}, s{sT0}, {28*1024}")
    a(f"s_lshl_b32 s{sT1}, s{sCB}, 12")
    a(f"s_add_u32 s{sT0}, s{sT0}, s{sT1}")
    a(f"s_lshr_b32 s{sT1}, s{sW}, 1")
    a(f"s_lshl_b32 s{sT1}, s{sT1}, 11")
    a(f"s_add_u32 s{sT0}, s{sT0}, s{sT1}")
    a(f"s_add_u32 s{sT0}, s{sT0}, {X1F}")
    a(f"buffer_load_dwordx4 {vr(vX1,4)}, v{vD16}, {sr(SRD_WS,4)}, s{sT0} offen")
    a(f"buffer_load_dwordx4 {vr(vX1+4,4)}, v{vD16}, {sr(SRD_WS,4)}, s{sT0} offen offset:1024")
    a(f"s_and_b32 s{sT0}, s{sW}, 1")
    a(f"s_lshl_b32 s{sT0}, s{sT0}, 13")
    a(f"v_add_u32 v{vAr0}, s{sT0}, v{vD16}")
    a(f"s_lshr_b32 s{sT0}, s{sW}, 1")
    a(f"s_lshl_b32 s{sT0}, s{sT0}, 13")
    a(f"s_add_u32 s{sT0}, s{sT0}, 16384")
    a(f"v_add_u32 v{vWr0}, s{sT0}, v{vWr0}")

    def compute(acc):
        a(f"v_add_u32 v{vAr}, s{sSlotR}, v{vAr0}")
        a(f"v_add_u32 v{vWr}, s{sSlotR}, v{vWr0}")
        for s in range(8):
            a(f"ds_read_b128 {vr(vAf+4*s,4)}, v{vAr} offset:{1024*s}")
            a(f"ds_read_b64_tr_b16 {vr(vWf+4*s,2)}, v{vWr} offset:{1024*s}")
            a(f"ds_read_b64_tr_b16 {vr(vWf+4*s+2,2)}, v{vWr} offset:{1024*s+512}")
            if s >= 3:
                a(f"s_waitcnt lgkmcnt(9)")
                q = s - 3
                a(f"v_mfma_f32_32x32x16_bf16 {vr(acc,16)}, {vr(vWf+4*q,4)}, {vr(vAf+4*q,4)}, {vr(acc,16)}")
        for q in range(5, 8):
            a(f"s_waitcnt lgkmcnt({3*(7-q)})")
            a(f"v_mfma_f32_32x32x16_bf16 {vr(acc,16)}, {vr(vWf+4*q,4)}, {vr(vAf+4*q,4)}, {vr(acc,16)}")
        a(f"s_add_u32 s{sSlotR}, s{sSlotR}, 32768")
        a(f"s_and_b32 s{sSlotR}, s{sSlotR}, 0x1ffff")

    a(f"s_mov_b32 s{sSlotR}, 0")
    for r in range(16):
        a(f"v_mov_b32 v{vAccB+r}, 0")
        a(f"v_mov_b32 v{vAccA+r}, 0")
    a(f"s_mov_b32 s{sC}, 0")
    a.label("K4_c2")
    a("s_barrier")
    compute(vAccA)
    a(f"s_add_u32 s{sC}, s{sC}, 1")
    a(f"s_cmp_lt_u32 s{sC}, 4")
    a("s_cbranch_scc1 K4_c2")
    a.label("K4_c1")
    a("s_barrier")
    compute(vAccB)
    a(f"s_add_u32 s{sC}, s{sC}, 1")
    a(f"s_cmp_lt_u32 s{sC}, 18")
    a("s_cbranch_scc1 K4_c1")
    a("s_waitcnt vmcnt(0)")
    a("s_nop 12")
    a(f"v_sub_f32 v{t3}, 1.0, v{vG}")
    for r in range(8):
        x = vX1 + r
        a(f"v_lshlrev_b32 v{t1}, 16, v{x}")
        a(f"v_and_b32 v{t2}, 0xffff0000, v{x}")
        a(f"v_add_f32 v{vAccB+2*r}, v{vAccB+2*r}, v{t1}")
        a(f"v_add_f32 v{vAccB+2*r+1}, v{vAccB+2*r+1}, v{t2}")
    for r in range(16):
        a(f"v_mul_f32 v{vAccB+r}, v{vAccB+r}, v{t3}")
    for r in range(16):
        a(f"v_fmac_f32 v{vAccB+r}, v{vAccA+r}, v{vG}")
    for r in range(8):
        a(f"v_cvt_pk_bf16_f32 v{vP+r}, v{vAccB+2*r}, v{vAccB+2*r+1}")
    a(f"s_lshl_b32 s{sT0}, s{sRB}, 6")
    a(f"s_and_b32 s{sT1}, s{sW}, 1")
    a(f"s_lshl_b32 s{sT1}, s{sT1}, 5")
    a(f"s_add_u32 s{sT0}, s{sT0}, s{sT1}")
    a(f"v_add_u32 v{t1}, s{sT0}, v{vI}")
    a(f"v_mul_u32_u24 v{t1}, 896, v{t1}")
    a(f"v_lshl_add_u32 v{t1}, v{vHF}, 3, v{t1}")
    a(f"s_lshl_b32 s{sT0}, s{sCB}, 7")
    a(f"s_lshr_b32 s{sT1}, s{sW}, 1")
    a(f"s_lshl_b32 s{sT1}, s{sT1}, 6")
    a(f"s_add_u32 s{sT0}, s{sT0}, s{sT1}")
    for q in range(4):
        a(f"buffer_store_dwordx2 {vr(vP+2*q,2)}, v{t1}, {sr(SRD_F,4)}, s{sT0} offen offset:{16*q}")
```

```python
from gen import *

from gen_k2 import gen_k2, K2_LDS
from gen_k3 import gen_k3, K3_LDS

from gen_k1 import gen_k1, K1_LDS

def main():
    a = Asm()
    a.raw(HEADER.rstrip())
    a.raw(f"; @launch kernel=k1_kernel grid=(256,1,1) block=(768,1,1) lds={K1_LDS+256}")
    a.raw(f"; @launch kernel=k3_kernel grid=(224,1,1) block=(768,1,1) lds={K3_LDS}")
    a.raw('.amdgcn_target "amdgcn-amd-amdhsa--gfx950"')
    a.raw(".text")
    gen_k1(a)
    gen_k3(a)
    a.raw('.section .rodata,"a"')
    for name, v in (("k1_kernel", 160), ("k3_kernel", 168)):
        a.raw(".p2align 6")
        kd(a, name, v)
    out = sys.argv[1] if len(sys.argv) > 1 else "gated_mix__mha_block__mixer_s_mlp__prompt.s"
    open(out, "w").write(a.text())
    print("wrote", out, len(a.lines), "lines")
```

```python
from gen import *
from gen_tp import *

K1_LDS = 155648
W1_RING = 57344


def token_cas(a, tag):
    make_srd(a, SRD_F, P_DBG, 256)
    a("s_or_b32 s88, s88, 1")
    a("s_mov_b32 s85, 1")
    a("v_mov_b32 v158, s88")
    a("v_mov_b32 v159, 0")
    a("v_mov_b32 v157, 0")
    a("v_cmp_eq_u32 vcc, 0, v1")
    a("s_and_saveexec_b64 s[86:87], vcc")
    a(f"buffer_atomic_cmpswap v[158:159], v157, {sr(SRD_F,4)}, 0 offen sc0 sc1")
    a("s_mov_b64 exec, s[86:87]")


def qkv_path(a):
    sW, sT0, sT1, sMA, sWB, sRB = 60, 61, 62, 63, 64, 65
    vL, vHF, vI, vWr0 = 1, 2, 3, 4
    vAe, vAo, vWd = 5, 6, 7
    vAr0 = 8
    vAr = 12
    vWr = 16
    t1, t2, t3 = 17, 18, 19
    vAf = 20
    vWf = 28
    vAcc = 60
    vTmp = 124
    SLOT = 32768
    a(f"s_lshl_b32 s{sRB}, s90, 2")
    a(f"s_and_b32 s{sT0}, s92, 3")
    a(f"s_add_u32 s{sRB}, s{sRB}, s{sT0}")
    a(f"s_mul_i32 s93, s91, 6")
    a(f"s_lshr_b32 s{sT0}, s92, 2")
    a(f"s_add_u32 s93, s93, s{sT0}")
    a(f"s_lshl_b32 s94, s93, 8")
    a(f"s_lshl_b32 s{sT0}, s{sRB}, 2")
    a(f"s_add_u32 s94, s94, s{sT0}")
    a(f"s_add_u32 s94, s94, {F12}")
    a(f"s_cmp_lt_u32 s{sW}, 4")
    a("s_cbranch_scc1 K1_qkv_comp")
    make_srd(a, SRD_A, P_X, 2048 * 896)
    make_srd(a, SRD_W, P_WQKV, 448 * 2688)
    sH2 = 66
    a(f"s_sub_u32 s{sW}, s{sW}, 4")
    a(f"s_lshr_b32 s{sH2}, s{sW}, 2")
    a(f"s_and_b32 s{sW}, s{sW}, 3")
    a(f"s_mov_b32 s{sT1}, s93")
    a(f"s_lshl_b32 s{sT0}, s{sRB}, 7")
    a(f"s_lshl_b32 s{sMA}, s{sW}, 5")
    a(f"s_add_u32 s{sT0}, s{sT0}, s{sMA}")
    a(f"s_lshl_b32 s{sMA}, s{sH2}, 4")
    a(f"s_add_u32 s{sT0}, s{sT0}, s{sMA}")
    a(f"s_lshl_b32 s{sMA}, s{sW}, 12")
    a(f"s_lshl_b32 s{sWB}, s{sH2}, 11")
    a(f"s_add_u32 s{sMA}, s{sMA}, s{sWB}")
    a(f"s_mul_i32 s{sWB}, s{sT1}, 224")
    a(f"s_mul_i32 s{sT1}, s{sW}, 56")
    a(f"s_add_u32 s{sWB}, s{sWB}, s{sT1}")
    a(f"s_mul_i32 s{sT1}, s{sH2}, {32*2688}")
    a(f"s_add_u32 s{sWB}, s{sWB}, s{sT1}")
    a(f"v_lshrrev_b32 v{t1}, 3, v{vL}")
    a(f"v_add_u32 v{t1}, s{sT0}, v{t1}")
    a(f"v_mul_u32_u24 v{t1}, 896, v{t1}")
    a(f"v_and_b32 v{t2}, 7, v{vL}")
    a(f"v_lshrrev_b32 v{t3}, 4, v{vL}")
    a(f"v_xor_b32 v{t2}, v{t2}, v{t3}")
    a(f"v_lshlrev_b32 v{t2}, 4, v{t2}")
    a(f"v_add_u32 v{vAe}, v{t1}, v{t2}")
    a(f"v_xor_b32 v{t2}, 64, v{t2}")
    a(f"v_add_u32 v{t1}, 7168, v{t1}")
    a(f"v_add_u32 v{vAo}, v{t1}, v{t2}")
    a(f"v_lshrrev_b32 v{t1}, 2, v{vL}")
    a(f"v_mul_u32_u24 v{t1}, 2688, v{t1}")
    a(f"v_and_b32 v{t2}, 3, v{vL}")
    a(f"v_lshlrev_b32 v{t2}, 4, v{t2}")
    a(f"v_add_u32 v{vWd}, v{t1}, v{t2}")

    def issue(c):
        sl = (c % 4) * SLOT
        for q in range(2):
            a(f"s_add_u32 m0, s{sMA}, {sl + q*1024}")
            a(f"s_mov_b32 s{sT0}, {128*c}")
            a(f"buffer_load_dwordx4 v{vAo if q&1 else vAe}, {sr(SRD_A,4)}, s{sT0} offen lds")
            a(f"s_add_u32 m0, s{sMA}, {sl + 16384 + q*1024}")
            a(f"s_add_u32 s{sT0}, s{sWB}, {(64*c+16*q)*2688}")
            a(f"buffer_load_dwordx4 v{vWd}, {sr(SRD_W,4)}, s{sT0} offen lds")
    for c in range(3):
        issue(c)
    for c in range(7):
        a(f"s_waitcnt vmcnt({4*(min(c+2,6)-c)})")
        a("s_barrier")
        if c + 3 < 7:
            issue(c + 3)
    a("s_barrier")
    a("s_branch K12_mid")

    a.label("K1_qkv_comp")
    make_srd(a, SRD_WS, P_WS, WS_SIZE)
    a(f"s_cmp_eq_u32 s{sW}, 0")
    a("s_cbranch_scc0 K1_notok1")
    token_cas(a, 1)
    a.label("K1_notok1")
    if 'k1pf' in os.environ.get('PF',''):
        make_srd(a, SRD_E, P_W1, 448 * 896)
        a(f"s_lshr_b32 s{sT1}, s2, 3")
        a(f"s_lshl_b32 s{sT1}, s{sT1}, 2")
        a(f"s_add_u32 s{sT1}, s{sT1}, s{sW}")
        a(f"v_lshlrev_b32 v{t1}, 4, v{vL}")
        l2_prefetch(a, SRD_E, 448 * 896, sT1, 96, t1, vTmp, sT0)
    a(f"s_lshl_b32 s{sT0}, s{sW}, 12")
    a(f"v_lshlrev_b32 v{t1}, 7, v{vI}")
    a(f"v_add_u32 v{t1}, s{sT0}, v{t1}")
    a(f"v_bfe_u32 v{t2}, v{vI}, 1, 3")
    for s in range(4):
        a(f"v_add_u32 v{t3}, {2*s}, v{vHF}")
        a(f"v_xor_b32 v{t3}, v{t3}, v{t2}")
        a(f"v_lshlrev_b32 v{t3}, 4, v{t3}")
        a(f"v_add_u32 v{vAr0+s}, v{t1}, v{t3}")
    a("s_cmp_lt_u32 s93, 8")
    a("s_cbranch_scc0 K1_v")
    for kind in ('qk', 'v'):
        if kind == 'v':
            a.label("K1_v")
        SK = "k1" + kind
        stamp(a, SK)

        sSl, sCnt = 66, 67

        def setaddr():
            for s in range(4):
                a(f"v_add_u32 v{vAr+s}, s{sSl}, v{vAr0+s}")
            a(f"v_add_u32 v{vWr}, s{sSl}, v{vWr0}")
            a(f"s_add_u32 s{sSl}, s{sSl}, {SLOT}")
            a(f"s_and_b32 s{sSl}, s{sSl}, {4*SLOT-1}")

        def reads(s):
            b = s & 1
            a(f"ds_read_b128 {vr(vAf+4*b,4)}, v{vAr+s}")
            for t in range(4):
                o = 16384 + t * 4096 + s * 1024
                a(f"ds_read_b64_tr_b16 {vr(vWf+16*b+4*t,2)}, v{vWr} offset:{o}")
                a(f"ds_read_b64_tr_b16 {vr(vWf+16*b+4*t+2,2)}, v{vWr} offset:{o+256}")
        a(f"s_mov_b32 s{sSl}, 0")
        a(f"s_mov_b32 s{sCnt}, 0")
        for r in range(64):
            a(f"v_mov_b32 v{vAcc+r}, 0")
        setaddr()
        a("s_barrier")
        stamp(a, SK)
        reads(0)
        a.raw(".p2align 6")
        a.label(f"K1_{kind}_loop")
        for s in range(4):
            b = s & 1
            if s < 3:
                reads(s + 1)
                a("s_waitcnt lgkmcnt(9)")
            else:
                a("s_waitcnt lgkmcnt(0)")
                a("s_barrier")
                setaddr()
                reads(0)
            for t in range(4):
                C = vr(vAcc + 16 * t, 16)
                X, W = vr(vAf + 4 * b, 4), vr(vWf + 16 * b + 4 * t, 4)
                if kind == 'v':
                    a(f"v_mfma_f32_32x32x16_bf16 {vr(vAcc+16*t,16)}, {X}, {W}, {C}")
                else:
                    a(f"v_mfma_f32_32x32x16_bf16 {vr(vAcc+16*t,16)}, {W}, {X}, {C}")
        a(f"s_add_u32 s{sCnt}, s{sCnt}, 1")
        a(f"s_cmp_lt_u32 s{sCnt}, 7")
        a(f"s_cbranch_scc1 K1_{kind}_loop")
        stamp(a, SK)
        a(f"s_lshl_b32 s{sT1}, s93, 19")
        a(f"s_lshl_b32 s{sT0}, s{sRB}, 2")
        a(f"s_add_u32 s{sT0}, s{sT0}, s{sW}")
        a(f"s_lshl_b32 s{sT0}, s{sT0}, 11")
        a(f"s_add_u32 s{sT0}, s{sT0}, s{sT1}")
        a(f"v_lshlrev_b32 v{t1}, 4, v{vL}")
        a(f"v_add_u32 v{t1}, s{sT0}, v{t1}")
        if kind == 'qk':
            a(f"s_cmp_lt_u32 s93, 4")
            a(f"s_cselect_b32 s{sT1}, {f2u(QSCALE)}, 1.0")
            a(f"v_mov_b32 v{t2}, 0x3f803f80")
            a(f"v_mov_b32 v{t3}, 0x00003f80")
            a(f"v_cmp_lt_u32 vcc, 31, v{vL}")
        else:
            a(f"v_mov_b32 v{t2}, 0x3f803f80")
            a(f"v_cmp_eq_u32 vcc, 28, v{vI}")
        a("s_nop 4")
        for t in range(4):
            A = vAcc + 16 * t
            P = vTmp + 8 * (t & 1)
            if kind == 'qk':
                for r in range(16):
                    a(f"v_mul_f32 v{A+r}, s{sT1}, v{A+r}")
            for r in range(8):
                a(f"v_cvt_pk_bf16_f32 v{P+r}, v{A+2*r}, v{A+2*r+1}")
            if kind == 'qk':
                a(f"v_cndmask_b32 v{P+6}, v{P+6}, v{t2}, vcc")
                a(f"v_cndmask_b32 v{P+7}, v{P+7}, v{t3}, vcc")
            else:
                for r in range(8):
                    a(f"v_cndmask_b32 v{P+r}, v{P+r}, v{t2}, vcc")
            a(f"s_mov_b32 s{sT0}, {t*131072}")
            a(f"buffer_store_dwordx4 {vr(P,4)}, v{t1}, {sr(SRD_WS,4)}, s{sT0} offen sc1")
            a(f"buffer_store_dwordx4 {vr(P+4,4)}, v{t1}, {sr(SRD_WS,4)}, s{sT0} offen offset:1024 sc1")
        stamp(a, SK)
        stamp_flush(a, SK, 5)
        rt_end(a, "k1", kind)
        a("s_branch K12_mid")


def w1_path(a):
    sW, sT0, sT1, sMA, sWB, sRB, sHalf, sK1, sST = 60, 61, 62, 63, 64, 65, 66, 67, 68
    vL, vHF, vI, vWr0 = 1, 2, 3, 4
    vWd = 5
    vAr0 = 8
    vAr = 12
    vWr = 16
    t1, t2, t3, t4 = 17, 18, 19, 6
    vSum, vSq, vG = 20, 21, 22
    vXr = 24
    vGr = 52
    vU = 80
    vK0 = 7
    vAf = 24
    vWf = 40
    vTmp = 72
    vP = 88
    vAcc = 96
    SLOT, NS = 16384, 6
    SK = "k1w1"
    stamp(a, SK)
    make_srd(a, SRD_A, P_X, 2048 * 896)
    make_srd(a, SRD_E, P_GATE, 896)
    make_srd(a, SRD_WS, P_WS, WS_SIZE)
    a(f"s_lshl_b32 s{sRB}, s90, 3")
    a(f"s_add_u32 s{sRB}, s{sRB}, s92")
    a(f"s_sub_u32 s{sRB}, s{sRB}, 24")
    a(f"s_mov_b32 s{sHalf}, s91")
    a(f"s_lshl_b32 s94, s{sRB}, 3")
    a(f"s_lshl_b32 s{sT0}, s{sHalf}, 2")
    a(f"s_add_u32 s94, s94, s{sT0}")
    a(f"s_add_u32 s94, s94, {F12 + 4096}")
    ptiles = ((0, 1, 4, 5), (2, 3, 6))
    ops = []

    def issue(i):
        p, c = divmod(i, 7)
        sl = W1_RING + (i % NS) * SLOT
        for n, t in enumerate(ptiles[p]):
            a(f"s_add_u32 m0, s{sMA}, {sl + n*4096}")
            a(f"s_add_u32 s{sT0}, s{sWB}, {64*c*896 + 64*t}")
            a(f"buffer_load_dwordx4 v{vWd}, {sr(SRD_W,4)}, s{sT0} offen lds")
            ops.append(i)

    a(f"s_cmp_lt_u32 s{sW}, 8")
    a("s_cbranch_scc1 K1_w1_ln")
    make_srd(a, SRD_W, P_W1, 448 * 896)
    a(f"s_sub_u32 s{sT1}, s{sW}, 8")
    a(f"s_lshl_b32 s{sMA}, s{sT1}, 10")
    a(f"s_mul_i32 s{sWB}, s{sT1}, {16*896}")
    a(f"s_mul_i32 s{sT1}, s{sHalf}, 448")
    a(f"s_add_u32 s{sWB}, s{sWB}, s{sT1}")
    a(f"v_lshrrev_b32 v{t3}, 2, v{vL}")
    a(f"v_mul_u32_u24 v{t3}, 896, v{t3}")
    a(f"v_and_b32 v{vWd}, 3, v{vL}")
    a(f"v_lshl_add_u32 v{vWd}, v{vWd}, 4, v{t3}")
    for i in range(6):
        issue(i)
    for i in range(15):
        if i < 14:
            last = max(k for k, t in enumerate(ops) if t == i)
            a(f"s_waitcnt vmcnt({len(ops)-1-last})")
        a("s_barrier")
        if i >= 2 and i + 4 < 14:
            issue(i + 4)
    a("s_branch K12_mid")
    a.label("K1_w1_ln")
    a(f"s_lshl_b32 s{sT0}, s{sRB}, 6")
    a(f"s_lshl_b32 s{sT1}, s{sW}, 3")
    a(f"s_add_u32 s{sT0}, s{sT0}, s{sT1}")
    a(f"v_lshrrev_b32 v{t1}, 3, v{vL}")
    a(f"v_add_u32 v{t2}, s{sT0}, v{t1}")
    a(f"v_mul_u32_u24 v{t3}, 896, v{t2}")
    a(f"v_and_b32 v{t4}, 7, v{vL}")
    a(f"v_lshl_add_u32 v{t3}, v{t4}, 4, v{t3}")
    for j in range(7):
        a(f"buffer_load_dwordx4 {vr(vXr+4*j,4)}, v{t3}, {sr(SRD_A,4)}, 0 offen offset:{128*j}")
    a(f"v_lshlrev_b32 v{vWd}, 4, v{t4}")
    for j in range(7):
        a(f"buffer_load_dwordx4 {vr(vGr+4*j,4)}, v{vWd}, {sr(SRD_E,4)}, 0 offen offset:{128*j}")
    a(f"s_lshl_b32 s{sT0}, s{sW}, 2")
    a(f"v_lshrrev_b32 v{t3}, 4, v{vL}")
    a(f"v_add_u32 v{t3}, s{sT0}, v{t3}")
    a(f"v_and_b32 v{t3}, 7, v{t3}")
    a(f"v_xor_b32 v{t3}, v{t3}, v{t4}")
    a(f"v_lshlrev_b32 v{t3}, 4, v{t3}")
    a(f"s_lshl_b32 s{sT0}, s{sW}, 10")
    a(f"v_lshl_add_u32 v{t3}, v{t1}, 7, v{t3}")
    a(f"v_add_u32 v{t3}, s{sT0}, v{t3}")
    a(f"v_lshlrev_b32 v{t2}, 2, v{t2}")
    a(f"s_mov_b32 s{sT0}, 0x3f803f80")
    a(f"v_mov_b32 v{vSum}, 0")
    a(f"v_mov_b32 v{vSq}, 0")
    a(f"v_mov_b32 v{vG}, 0")
    a("s_waitcnt vmcnt(0)")
    for d in range(28):
        a(f"v_dot2_f32_bf16 v{vSum}, v{vXr+d}, s{sT0}, v{vSum}")
        a(f"v_dot2_f32_bf16 v{vSq}, v{vXr+d}, v{vXr+d}, v{vSq}")
        a(f"v_dot2_f32_bf16 v{vG}, v{vXr+d}, v{vGr+d}, v{vG}")
    for d in range(28):
        a(f"v_lshlrev_b32 v{vU+2*d}, 16, v{vXr+d}")
        a(f"v_and_b32 v{vU+2*d+1}, 0xffff0000, v{vXr+d}")
    for v in (vSum, vSq, vG):
        a("s_nop 1")
        a(f"v_add_f32_dpp v{v}, v{v}, v{v} quad_perm:[1,0,3,2] row_mask:0xf bank_mask:0xf")
        a("s_nop 1")
        a(f"v_add_f32_dpp v{v}, v{v}, v{v} quad_perm:[2,3,0,1] row_mask:0xf bank_mask:0xf")
        a("s_nop 1")
        a(f"v_add_f32_dpp v{v}, v{v}, v{v} row_half_mirror row_mask:0xf bank_mask:0xf")
    a(f"v_mul_f32 v{vSum}, {f2u(1.0/448)}, v{vSum}")
    a(f"v_mul_f32 v{vSq}, {f2u(1.0/448)}, v{vSq}")
    a(f"v_fma_f32 v{vSq}, -v{vSum}, v{vSum}, v{vSq}")
    a(f"v_add_f32 v{vSq}, {f2u(1e-5)}, v{vSq}")
    a(f"v_rsq_f32 v{vSq}, v{vSq}")
    a(f"v_mul_f32 v{vG}, {f2u(-LOG2E)}, v{vG}")
    a(f"v_mul_f32 v{vSum}, v{vSum}, v{vSq}")
    a(f"v_exp_f32 v{vG}, v{vG}")
    for e in range(56):
        a(f"v_fma_f32 v{vU+e}, v{vU+e}, v{vSq}, -v{vSum}")
    a(f"v_add_f32 v{vG}, 1.0, v{vG}")
    a(f"v_rcp_f32 v{vG}, v{vG}")
    for d in range(28):
        a(f"v_cvt_pk_bf16_f32 v{vXr+d}, v{vU+2*d}, v{vU+2*d+1}")
    for j in range(7):
        a(f"ds_write_b128 v{t3}, {vr(vXr+4*j,4)} offset:{8192*j}")
    a(f"s_cmp_eq_u32 s{sHalf}, 0")
    a("s_cbranch_scc0 K1_w1_nog2")
    a(f"s_mov_b32 s{sT0}, {GOFF}")
    a(f"v_cmp_eq_u32 vcc, 0, v{t4}")
    a("s_and_saveexec_b64 s[58:59], vcc")
    a(f"buffer_store_dword v{vG}, v{t2}, {sr(SRD_WS,4)}, s{sT0} offen sc1")
    a("s_mov_b64 exec, s[58:59]")
    a.label("K1_w1_nog2")
    a("s_waitcnt lgkmcnt(0)")
    stamp(a, SK)
    sG, sWi, sAo2, sWoff, sCnt, sWslot, sWg = 69, 70, 71, 72, 73, 74, 75
    a(f"s_lshr_b32 s{sG}, s{sW}, 2")
    a(f"s_and_b32 s{sWi}, s{sW}, 3")
    a(f"s_and_b32 s{sT0}, s{sWi}, 1")
    a(f"s_lshl_b32 s{sT0}, s{sT0}, 12")
    a(f"v_lshlrev_b32 v{t1}, 7, v{vI}")
    a(f"v_add_u32 v{t1}, s{sT0}, v{t1}")
    a(f"v_bfe_u32 v{t2}, v{vI}, 1, 3")
    for s in range(4):
        a(f"v_add_u32 v{t3}, {2*s}, v{vHF}")
        a(f"v_xor_b32 v{t3}, v{t3}, v{t2}")
        a(f"v_lshlrev_b32 v{t3}, 4, v{t3}")
        a(f"v_add_u32 v{vAr0+s}, v{t1}, v{t3}")
    a(f"s_lshr_b32 s{sT0}, s{sWi}, 1")
    a(f"s_lshl_b32 s{sT0}, s{sT0}, 13")
    a(f"s_add_u32 s{sT0}, s{sT0}, {W1_RING}")
    a(f"v_add_u32 v{vWr0}, s{sT0}, v{vWr0}")
    a(f"s_and_b32 s{sT1}, s{sWi}, 1")
    a(f"s_lshl_b32 s{sST}, s{sRB}, 1")
    a(f"s_add_u32 s{sST}, s{sST}, s{sT1}")
    a(f"s_mul_i32 s{sST}, s{sST}, {28*1024}")
    a(f"s_mul_i32 s{sT0}, s{sHalf}, {14*1024}")
    a(f"s_add_u32 s{sST}, s{sST}, s{sT0}")
    a(f"s_lshr_b32 s{sT0}, s{sWi}, 1")
    a(f"s_lshl_b32 s{sT0}, s{sT0}, 13")
    a(f"s_add_u32 s{sST}, s{sST}, s{sT0}")
    a(f"s_lshl_b32 s{sT0}, s{sG}, 12")
    a(f"s_add_u32 s{sST}, s{sST}, s{sT0}")
    a(f"s_add_u32 s{sST}, s{sST}, {HF}")
    a(f"v_lshlrev_b32 v{t1}, 4, v{vL}")
    a(f"s_mov_b32 s{sK1}, {f2u(GK1)}")
    a(f"v_mov_b32 v{vK0}, {f2u(GK0)}")

    def epi(t):
        A = vAcc + 16 * t
        L = gelu_list([A + r for r in range(16)], vTmp, vK0, sK1)
        for r in range(8):
            L.append(f"v_cvt_pk_bf16_f32 v{vP+r}, v{A+2*r}, v{A+2*r+1}")
        L.append(f"buffer_store_dwordx4 {vr(vP,4)}, v{t1}, {sr(SRD_WS,4)}, s{sST} offen offset:{2048*t} sc1")
        L.append(f"buffer_store_dwordx4 {vr(vP+4,4)}, v{t1}, {sr(SRD_WS,4)}, s{sST} offen offset:{2048*t+1024} sc1")
        L.append("s_nop 1")
        return L

    def setaddr():
        for s in range(4):
            a(f"v_add_u32 v{vAr+s}, s{sAo2}, v{vAr0+s}")
        a(f"v_add_u32 v{vWr}, s{sWoff}, v{vWr0}")
        a(f"s_add_u32 s{sAo2}, s{sAo2}, 8192")
        a(f"s_add_u32 s{sWoff}, s{sWoff}, {SLOT}")
        a(f"s_cmp_lt_u32 s{sWoff}, {NS*SLOT}")
        a(f"s_cselect_b32 s{sWoff}, s{sWoff}, 0")

    def rd_w(b, s, tt):
        o = tt * 4096 + s * 1024
        a(f"ds_read_b64_tr_b16 {vr(vWf+8*b+4*tt,2)}, v{vWr} offset:{o}")
        a(f"ds_read_b64_tr_b16 {vr(vWf+8*b+4*tt+2,2)}, v{vWr} offset:{o+256}")

    def rd_a(b, s):
        a(f"ds_read_b128 {vr(vAf+4*b,4)}, v{vAr+s}")

    a(f"s_mov_b32 s{sAo2}, 0")
    a(f"s_cmp_eq_u32 s{sG}, 0")
    a("s_cbranch_scc0 K1_w1_B")
    a(f"s_mov_b32 s{sWoff}, 0")
    a("s_barrier")
    setaddr()
    pass_loop(a, "K1A", vAf, vWf, vAcc, sCnt, setaddr, rd_a, rd_w, lambda post: None)
    stamp(a, SK)
    emit_with_barriers(a, ["s_nop 10"] + epi(0) + epi(1), 7)
    stamp(a, SK)
    stamp_flush(a, SK, 200)
    a("s_branch K12_mid")
    a.label("K1_w1_B")
    a(f"s_cmp_eq_u32 s{sW}, 4")
    a("s_cbranch_scc0 K1_notok2")
    token_cas(a, 2)
    a.label("K1_notok2")
    for i in range(8):
        a("s_barrier")
    a(f"s_mov_b32 s{sWoff}, {(7%NS)*SLOT}")
    setaddr()
    pass_loop(a, "K1B", vAf, vWf, vAcc, sCnt, setaddr, rd_a, rd_w, lambda post: None)
    a("s_nop 10")
    for x in epi(0):
        a(x)
    a(f"s_cmp_lt_u32 s{sWi}, 2")
    a("s_cbranch_scc0 K1_w1_done")
    for x in epi(1):
        a(x)
    a.label("K1_w1_done")
    rt_end(a, "k1", "w1")
    a("s_branch K12_mid")


def gen_k1(a):
    kernel_head(a, "k1_kernel")
    a("s_cmp_ge_u32 s2, 256")
    a("s_cbranch_scc1 K1_exit")
    rt_begin(a, "k1")
    load_ptrs(a)
    lane_consts(a, 1, 2, 3, 4, 17, 18, 8)
    a(f"v_lshrrev_b32 v17, 6, v0")
    a("s_nop 0")
    a(f"v_readfirstlane_b32 s60, v17")
    a("s_and_b32 s90, s2, 3")
    a("s_bfe_u32 s91, s2, 0x10002")
    a("s_lshr_b32 s92, s2, 3")
    a("s_memrealtime s[88:89]")
    a("s_waitcnt lgkmcnt(0)")
    a("s_mov_b32 s85, 0")
    a("s_cmp_lt_u32 s92, 24")
    a("s_cbranch_scc1 K1_qkv")
    w1_path(a)
    a.label("K1_qkv")
    qkv_path(a)
    a.label("K12_mid")
    import gen_k2
    gen_k2.gen_k2(a)
    a.label("K23_mid")
    import gen_k3
    gen_k3.gen_k3(a)
    a.label("K1_exit")
    a("s_endpgm")
```

```python
from gen import *
STATS = 21 * MB
CS3 = 22 * MB
K2_W2 = 65536
K2_FLAG = 65536 + 57344
K2_LDS = K2_FLAG + 256


def gen_k2(a):
    sW, sT0, sT1, sG0, sSlot, sStage, sThr, sH, sQB = 60, 61, 62, 63, 65, 66, 67, 68, 69
    sSlotW, sMode, sRB, sCT, sLq, sT2, sLo = 70, 71, 72, 73, 64, 74, 75
    vL, vHF, vI = 1, 2, 3
    vD16, vRd0, vRdV, vRdK = 4, 5, 6, 7
    t1, t2, t3, t4 = 8, 9, 10, 11
    vMa, vMb, vTa, vTb = 12, 13, 14, 15
    vWr0 = 16

    lane_consts(a, vL, vHF, vI, vWr0, t1, t2, 4)
    a(f"v_lshrrev_b32 v{t1}, 6, v0")
    a(f"v_lshlrev_b32 v{vD16}, 4, v{vL}")
    a(f"v_readfirstlane_b32 s{sW}, v{t1}")
    a(f"s_and_b32 s{sH}, s2, 7")
    a(f"s_lshl_b32 s{sH}, s{sH}, 1")
    a(f"s_bfe_u32 s{sT0}, s2, 0x10003")
    a(f"s_add_u32 s{sH}, s{sH}, s{sT0}")
    a(f"s_lshr_b32 s{sQB}, s2, 4")
    make_srd(a, SRD_WS, P_WS, WS_SIZE)
    sTok = 95
    a("s_waitcnt vmcnt(0) lgkmcnt(0)")
    a(f"s_cmp_eq_u32 s85, 1")
    a("s_cbranch_scc0 K12_t1")
    a(f"v_readfirstlane_b32 s{sTok}, v158")
    a(f"s_cmp_eq_u32 s{sTok}, 0")
    a(f"s_cselect_b32 s{sTok}, s88, s{sTok}")
    a(f"v_mov_b32 v{t1}, {TOK_LDS}")
    a(f"v_mov_b32 v{t2}, s{sTok}")
    a(f"ds_write_b32 v{t1}, v{t2}")
    a("s_waitcnt lgkmcnt(0)")
    a.label("K12_t1")
    if os.environ.get("RT2"): a("s_memrealtime s[82:83]")
    a("s_barrier")
    a(f"s_cmp_eq_u32 s{sW}, 8")
    a("s_cbranch_scc0 K12_t2")
    a(f"v_mov_b32 v{t1}, {TOK_LDS}")
    a(f"ds_read_b32 v{t2}, v{t1}")
    a("s_waitcnt lgkmcnt(0)")
    a(f"v_readfirstlane_b32 s{sTok}, v{t2}")
    a(f"v_mov_b32 v{t1}, 0")
    a(f"v_cmp_eq_u32 vcc, 0, v{vL}")
    a("s_and_saveexec_b64 s[86:87], vcc")
    a(f"buffer_store_dword v{t2}, v{t1}, {sr(SRD_WS,4)}, s94 offen sc1")
    a("s_mov_b64 exec, s[86:87]")
    a(f"s_lshr_b32 s{sT0}, s{sH}, 2")
    a(f"v_lshrrev_b32 v{t1}, 4, v{vL}")
    a(f"v_lshl_add_u32 v{t1}, v{t1}, 2, s{sT0}")
    a(f"v_mov_b32 v{t3}, 8")
    a(f"v_cmp_lt_u32 vcc, 47, v{vL}")
    a("s_nop 1")
    a(f"v_cndmask_b32 v{t1}, v{t1}, v{t3}, vcc")
    a(f"v_lshlrev_b32 v{t1}, 8, v{t1}")
    a(f"v_and_b32 v{t3}, 15, v{vL}")
    a(f"v_lshl_add_u32 v{t1}, v{t3}, 2, v{t1}")
    a(f"s_mov_b32 s{sT0}, {F12}")
    a(f"s_mov_b32 s{sT1}, 0")
    a.label("K12_poll")
    a(f"buffer_load_dword v{t3}, v{t1}, {sr(SRD_WS,4)}, s{sT0} offen sc1")
    a("s_waitcnt vmcnt(0)")
    a(f"v_cmp_ne_u32 vcc, s{sTok}, v{t3}")
    a("s_cbranch_vccz K12_t2")
    a("s_sleep 4")
    a(f"s_add_u32 s{sT1}, s{sT1}, 1")
    a(f"s_cmp_lt_u32 s{sT1}, 0x80000")
    a("s_cbranch_scc1 K12_poll")
    a.label("K12_t2")
    a("s_barrier")
    if os.environ.get("RT2"): a("s_memrealtime s[96:97]")
    a(f"v_mov_b32 v{t1}, {TOK_LDS}")
    a(f"ds_read_b32 v{t2}, v{t1}")
    a("s_waitcnt lgkmcnt(0)")
    a(f"v_readfirstlane_b32 s{sTok}, v{t2}")
    a(f"s_mov_b32 s84, 0")
    a(f"s_cmp_lt_u32 s{sW}, 8")
    a("s_cbranch_scc1 K2_comp")

    vAo = 18
    vX = 22
    vW2 = 32
    vAcc2 = 48
    vA2 = 64
    a(f"s_sub_u32 s{sLq}, s{sW}, 8")
    a(f"s_mov_b32 s{sMode}, 0")
    a(f"s_cmp_ge_u32 s2, 224")
    a(f"s_cselect_b32 s{sMode}, 1, s{sMode}")
    a(f"s_cmp_ge_u32 s2, 252")
    a(f"s_cselect_b32 s{sMode}, 2, s{sMode}")
    a(f"s_lshl_b32 s{sG0}, s{sH}, 17")
    a(f"s_lshl_b32 s{sT0}, s{sLq}, 15")
    a(f"s_add_u32 s{sG0}, s{sG0}, s{sT0}")
    a(f"s_add_u32 s{sG0}, s{sG0}, {KF}")
    a(f"s_lshl_b32 s{sLo}, s{sLq}, 12")
    a(f"s_mov_b32 s80, s{sG0}")
    a(f"s_mov_b32 s81, 0")

    def issue_stage():
        a(f"s_add_u32 m0, s{sSlotW}, s{sLo}")
        a(f"s_add_u32 s{sT0}, s{sG0}, {2*MB}")
        a(f"buffer_load_dwordx4 v{vD16}, {sr(SRD_WS,4)}, s{sG0} offen sc1 lds")
        a(f"buffer_load_dwordx4 v{vD16}, {sr(SRD_WS,4)}, s{sG0} offen offset:1024 sc1 lds")
        a(f"s_add_u32 m0, m0, 2048")
        a(f"s_add_u32 s{sG0}, s{sG0}, 2048")
        a(f"buffer_load_dwordx4 v{vD16}, {sr(SRD_WS,4)}, s{sT0} offen sc1 lds")
        a(f"buffer_load_dwordx4 v{vD16}, {sr(SRD_WS,4)}, s{sT0} offen offset:1024 sc1 lds")
        a(f"s_add_u32 s{sSlotW}, s{sSlotW}, 16384")
        a(f"s_and_b32 s{sSlotW}, s{sSlotW}, 0xffff")

    a.label("K2_ld_top")
    a(f"s_mov_b32 s{sSlotW}, 0")
    for st in range(3):
        issue_stage()
    a(f"s_cmp_lt_u32 s{sMode}, 2")
    a("s_cbranch_scc1 K2_ldw")
    a("s_waitcnt vmcnt(8)")
    a("s_barrier")
    a(f"s_mov_b32 s{sStage}, 0")
    a.label("K2_ld_loop")
    a("s_waitcnt vmcnt(4)")
    a("s_barrier")
    issue_stage()
    a(f"s_add_u32 s{sStage}, s{sStage}, 1")
    a(f"s_cmp_lt_u32 s{sStage}, 13")
    a("s_cbranch_scc1 K2_ld_loop")
    a.label("K2_ld_tail")
    a("s_waitcnt vmcnt(4)")
    a("s_barrier")
    a("s_waitcnt vmcnt(0)")
    a.label("K2_ld_tail2")
    a("s_barrier")
    a("s_cmp_eq_u32 s84, 0")
    a("s_cbranch_scc1 K2_nosidepub")
    a("s_waitcnt vmcnt(0)")
    flag_store(a, 84, t1, t2, vL, "side")
    a("s_mov_b32 s84, 0")
    a.label("K2_nosidepub")
    a("s_barrier")
    a("s_barrier")
    a(f"v_mov_b32 v{t1}, {K2_FLAG}")
    a(f"ds_read_b32 v{t2}, v{t1}")
    a("s_waitcnt lgkmcnt(0)")
    a(f"v_readfirstlane_b32 s{sT0}, v{t2}")
    a(f"s_cmp_lg_u32 s81, 0")
    a("s_cbranch_scc1 K2_ld_fin")
    a(f"s_cmp_eq_u32 s{sT0}, 0")
    a("s_cbranch_scc1 K2_ld_fin")
    a(f"s_mov_b32 s81, 1")
    a(f"s_mov_b32 s{sMode}, 2")
    a(f"s_mov_b32 s{sG0}, s80")
    a("s_branch K2_ld_top")
    a.label("K2_ld_fin")
    a("s_barrier")
    a("s_barrier")
    a("s_branch K23_mid")

    a.label("K2_ldw")
    a(f"s_lshr_b32 s{sCT}, s{sLq}, 1")
    a(f"s_and_b32 s{sT2}, s{sLq}, 1")
    a(f"v_lshrrev_b32 v{t1}, 2, v{vL}")
    a(f"v_and_b32 v{t2}, 3, v{vL}")
    a(f"v_lshlrev_b32 v{t2}, 4, v{t2}")
    a(f"s_mul_i32 s{sT0}, s{sCT}, 28672")
    a(f"s_add_u32 s{sT0}, s{sT0}, {K2_W2}")
    a(f"v_add_u32 v{vWr0}, s{sT0}, v{vWr0}")
    a(f"s_lshl_b32 s{sT1}, s{sT2}, 10")
    a(f"s_add_u32 s{sStage}, s{sT0}, s{sT1}")
    a(f"s_and_b32 s{sRB}, s2, 31")
    a(f"s_lshl_b32 s{sRB}, s{sRB}, 1")
    a(f"s_add_u32 s{sRB}, s{sRB}, s{sT2}")
    make_srd(a, SRD_E, P_X, 2048 * 896)
    sWs, sWo2 = 56, 57
    vWd = 30
    a(f"s_lshl_b32 s{sT0}, s{sRB}, 5")
    a(f"v_add_u32 v{t4}, s{sT0}, v{vI}")
    a(f"s_cmp_eq_u32 s{sMode}, 1")
    a("s_cbranch_scc1 K2_ld_w3")
    make_srd(a, SRD_W, P_W2, 448 * 896)
    make_srd(a, SRD_A, P_WS, HF_SIZE, HF)
    a(f"v_mul_u32_u24 v{t1}, 896, v{t1}")
    a(f"v_add_u32 v{vWd}, v{t1}, v{t2}")
    a(f"s_lshr_b32 s{sWo2}, s2, 5")
    a(f"s_lshl_b32 s{sWo2}, s{sWo2}, 7")
    a(f"s_mov_b32 s{sWs}, {16*896}")
    for g, sh in enumerate((1, -1, 2, -2)):
        a(f"v_subrev_u32 v{t2}, {sh}, v{t4}" if sh > 0 else f"v_add_u32 v{t2}, {-sh}, v{t4}")
        a(f"v_lshrrev_b32 v{t3}, 5, v{t2}")
        a(f"v_mul_u32_u24 v{t3}, 28672, v{t3}")
        a(f"v_and_b32 v{vAo+g}, 31, v{t2}")
        a(f"v_lshl_add_u32 v{vAo+g}, v{vHF}, 5, v{vAo+g}")
        a(f"v_lshl_add_u32 v{vAo+g}, v{vAo+g}, 4, v{t3}")
        a(f"v_cmp_gt_u32 vcc, 2048, v{t2}")
        a(f"v_mov_b32 v{t3}, 0x80000000")
        a("s_nop 0")
        a(f"v_cndmask_b32 v{vAo+g}, v{t3}, v{vAo+g}, vcc")
    a("s_branch K2_ld_w")
    a.label("K2_ld_w3")
    make_srd(a, SRD_W, P_W3, 448 * 3584)
    make_srd(a, SRD_A, P_WS, 65536, VF + 448)
    a(f"v_mul_u32_u24 v{t1}, 3584, v{t1}")
    a(f"v_add_u32 v{vWd}, v{t1}, v{t2}")
    a(f"s_sub_u32 s{sWo2}, s2, 224")
    a(f"s_lshl_b32 s{sWo2}, s{sWo2}, 7")
    a(f"s_mov_b32 s{sWs}, {16*3584}")
    for g in range(4):
        a(f"v_mov_b32 v{vAo+g}, 0")
    a.label("K2_ld_w")
    a(f"s_lshl_b32 s{sT0}, s{sCT}, 6")
    a(f"s_add_u32 s{sWo2}, s{sWo2}, s{sT0}")
    a(f"s_mul_i32 s{sT0}, s{sWs}, s{sT2}")
    a(f"s_add_u32 s{sWo2}, s{sWo2}, s{sT0}")
    a(f"s_lshl_b32 s{sWs}, s{sWs}, 1")
    a(f"v_mul_u32_u24 v{t4}, 896, v{t4}")
    a(f"v_lshl_add_u32 v{t4}, v{vHF}, 3, v{t4}")

    ops = ["st0"] * 4 + ["st1"] * 4 + ["st2"] * 4
    def wait_for(tag):
        last = max(i for i, t in enumerate(ops) if t == tag)
        a(f"s_waitcnt vmcnt({len(ops)-1-last})")
    def w_dma(ts):
        for t in ts:
            a(f"s_add_u32 m0, s{sStage}, {2048*t}")
            a("s_nop 0")
            a(f"buffer_load_dwordx4 v{vWd}, {sr(SRD_W,4)}, s{sWo2} offen lds")
            a(f"s_add_u32 s{sWo2}, s{sWo2}, s{sWs}")
            ops.append("w")
    def a_loads(kss, tag):
        for ks in kss:
            a(f"s_mov_b32 s{sT0}, {1024*ks}")
            a(f"buffer_load_dwordx4 {vr(vA2+4*(ks%14),4)}, v{vAo+ks//7}, {sr(SRD_A,4)}, s{sT0} offen sc1")
            ops.append(tag)
    def x_loads():
        a(f"s_lshr_b32 s{sT0}, s2, 5")
        a(f"s_lshl_b32 s{sT0}, s{sT0}, 7")
        a(f"s_lshl_b32 s{sT1}, s{sCT}, 6")
        a(f"s_add_u32 s{sT0}, s{sT0}, s{sT1}")
        for q in range(4):
            a(f"buffer_load_dwordx2 {vr(vX+2*q,2)}, v{t4}, {sr(SRD_E,4)}, s{sT0} offen offset:{16*q}")
            ops.append("x")
    def kstep_group(kss):
        def rd(ks):
            b = ks & 3
            a(f"ds_read_b64_tr_b16 {vr(vW2+4*b,2)}, v{vWr0} offset:{1024*ks}")
            a(f"ds_read_b64_tr_b16 {vr(vW2+4*b+2,2)}, v{vWr0} offset:{1024*ks+512}")
        for ks in kss:
            rd(ks)
        for n, ks in enumerate(kss):
            a(f"s_waitcnt lgkmcnt({2*(len(kss)-1-n)})")
            C = "0" if ks == 0 else vr(vAcc2, 16)
            a(f"v_mfma_f32_32x32x16_bf16 {vr(vAcc2,16)}, {vr(vW2+4*(ks&3),4)}, {vr(vA2+4*(ks%14),4)}, {C}")

    wait_for("st0")
    a("s_barrier")
    for j in range(13):
        wait_for(f"st{j+1}")
        a("s_barrier")
        issue_stage()
        ops.extend([f"st{j+3}"] * 4)
        if j == 0: w_dma(range(0, 7))
        if j == 1: w_dma(range(7, 14))
        if j == 2:
            a(f"s_and_b32 s{sT0}, s2, 31")
            a(f"v_and_b32 v{t1}, 7, v{vL}")
            a(f"v_min_u32 v{t1}, 5, v{t1}")
            a(f"v_lshrrev_b32 v{t2}, 1, v{t1}")
            a(f"v_add_u32 v{t2}, s{sT0}, v{t2}")
            a(f"v_max_u32 v{t2}, 1, v{t2}")
            a(f"v_min_u32 v{t2}, 32, v{t2}")
            a(f"v_subrev_u32 v{t2}, 1, v{t2}")
            a(f"v_and_b32 v{t1}, 1, v{t1}")
            a(f"v_lshlrev_b32 v{t1}, 2, v{t1}")
            a(f"v_lshl_add_u32 v{t1}, v{t2}, 3, v{t1}")
            a(f"s_mov_b32 s{sT0}, {F12 + 4096}")
            a(f"s_mov_b32 s{sT1}, 0")
            a.label("K12_pollh")
            a(f"buffer_load_dword v{t3}, v{t1}, {sr(SRD_WS,4)}, s{sT0} offen sc1")
            a("s_waitcnt vmcnt(0)")
            a(f"v_cmp_ne_u32 vcc, s{sTok}, v{t3}")
            a("s_cbranch_vccz K12_hok")
            a("s_sleep 4")
            a(f"s_add_u32 s{sT1}, s{sT1}, 1")
            a(f"s_cmp_lt_u32 s{sT1}, 0x80000")
            a("s_cbranch_scc1 K12_pollh")
            a.label("K12_hok")
            a_loads(range(0, 7), "a0")
        if j == 3: a_loads(range(7, 14), "a0")
        if j == 4: x_loads()
        if j == 5:
            wait_for("a0")
            kstep_group([0, 1, 2, 3]); kstep_group([4, 5, 6])
        if j == 6:
            kstep_group([7, 8, 9, 10]); kstep_group([11, 12, 13])
            a_loads(range(14, 21), "a1")
        if j == 7: a_loads(range(21, 28), "a1")
        if j == 10:
            wait_for("a1")
            kstep_group([14, 15, 16, 17]); kstep_group([18, 19, 20])
        if j == 11:
            kstep_group([21, 22, 23, 24]); kstep_group([25, 26, 27])
    a("s_nop 12")
    a(f"s_cmp_eq_u32 s{sMode}, 1")
    a("s_cbranch_scc1 K2_cs3")
    a(f"v_mov_b32 v{t3}, 0")
    a(f"v_mov_b32 v{t4}, 0")
    for r in range(8):
        x = vX + r
        a(f"v_lshlrev_b32 v{t1}, 16, v{x}")
        a(f"v_and_b32 v{t2}, 0xffff0000, v{x}")
        a(f"v_add_f32 v{vAcc2+2*r}, v{vAcc2+2*r}, v{t1}")
        a(f"v_add_f32 v{vAcc2+2*r+1}, v{vAcc2+2*r+1}, v{t2}")
    for r in range(16):
        a(f"v_add_f32 v{t3}, v{t3}, v{vAcc2+r}")
        a(f"v_fmac_f32 v{t4}, v{vAcc2+r}, v{vAcc2+r}")
    for r in range(8):
        a(f"v_cvt_pk_bf16_f32 v{vW2+r}, v{vAcc2+2*r}, v{vAcc2+2*r+1}")
    a(f"s_lshr_b32 s{sT1}, s2, 5")
    a(f"s_lshl_b32 s{sT1}, s{sT1}, 1")
    a(f"s_add_u32 s{sT1}, s{sT1}, s{sCT}")
    a(f"s_mul_i32 s{sT0}, s{sRB}, {28*1024}")
    a(f"s_lshl_b32 s{sT2}, s{sT1}, 11")
    a(f"s_add_u32 s{sT0}, s{sT0}, s{sT2}")
    a(f"s_add_u32 s{sT0}, s{sT0}, {X1F}")
    a("s_waitcnt vmcnt(4)")
    a("s_barrier")
    a(f"buffer_store_dwordx4 {vr(vW2,4)}, v{vD16}, {sr(SRD_WS,4)}, s{sT0} offen sc1")
    a(f"buffer_store_dwordx4 {vr(vW2+4,4)}, v{vD16}, {sr(SRD_WS,4)}, s{sT0} offen offset:1024 sc1")
    a(f"s_and_b32 s84, s2, 31")
    a(f"s_mul_i32 s84, s84, 7")
    a(f"s_lshr_b32 s{sT2}, s2, 5")
    a(f"s_add_u32 s84, s84, s{sT2}")
    a(f"s_lshl_b32 s84, s84, 2")
    a(f"s_add_u32 s84, s84, s{sLq}")
    a(f"s_lshl_b32 s84, s84, 2")
    a(f"s_add_u32 s84, s84, {FX1}")
    xhalf_sum(a, t3, t1)
    xhalf_sum(a, t4, t1)
    a(f"s_lshl_b32 s{sT0}, s{sRB}, 5")
    a(f"v_add_u32 v{t1}, s{sT0}, v{vI}")
    a(f"v_mul_u32_u24 v{t1}, 112, v{t1}")
    a(f"s_lshl_b32 s{sT1}, s{sT1}, 3")
    a(f"s_add_u32 s{sT1}, s{sT1}, {STATS}")
    a(f"buffer_store_dwordx2 v[{t3}:{t4}], v{t1}, {sr(SRD_WS,4)}, s{sT1} offen sc1")
    a("s_waitcnt vmcnt(3)")
    a("s_branch K2_ld_tail2")
    a.label("K2_cs3")
    a(f"s_sub_u32 s{sT1}, s2, 224")
    a(f"s_lshl_b32 s{sT1}, s{sT1}, 1")
    a(f"s_add_u32 s{sT1}, s{sT1}, s{sCT}")
    a(f"s_lshl_b32 s{sT1}, s{sT1}, 7")
    a(f"s_add_u32 s{sT1}, s{sT1}, {CS3}")
    a(f"v_lshlrev_b32 v{t1}, 4, v{vHF}")
    a("s_waitcnt vmcnt(4)")
    a("s_barrier")
    a(f"v_cmp_eq_u32 vcc, 0, v{vI}")
    a(f"s_and_saveexec_b64 s[58:59], vcc")
    for q in range(4):
        a(f"buffer_store_dwordx4 {vr(vAcc2+4*q,4)}, v{t1}, {sr(SRD_WS,4)}, s{sT1} offen offset:{32*q} sc1")
    a("s_mov_b64 exec, s[58:59]")
    a(f"s_sub_u32 s84, s2, 224")
    a(f"s_lshl_b32 s84, s84, 2")
    a(f"s_add_u32 s84, s84, s{sLq}")
    a(f"s_lshl_b32 s84, s84, 2")
    a(f"s_add_u32 s84, s84, {FCS}")
    a("s_waitcnt vmcnt(4)")
    a("s_branch K2_ld_tail2")

    vFloor = 17
    vQ = 20
    vP = 36
    vK = 44
    vV = 52
    vO = 60
    vS = 92
    a.label("K2_comp")
    a(f"s_lshl_b32 s{sQB}, s{sQB}, 2")
    a(f"s_and_b32 s{sT0}, s{sW}, 1")
    a(f"s_lshl_b32 s{sT0}, s{sT0}, 1")
    a(f"s_add_u32 s{sQB}, s{sQB}, s{sT0}")
    a(f"s_lshl_b32 s{sT0}, s{sH}, 6")
    a(f"s_add_u32 s{sT0}, s{sT0}, s{sQB}")
    a(f"s_lshl_b32 s{sT0}, s{sT0}, 11")
    for q in range(4):
        a(f"buffer_load_dwordx4 {vr(vQ+4*q,4)}, v{vD16}, {sr(SRD_WS,4)}, s{sT0} offen offset:{1024*q} sc1")
    a(f"s_lshr_b32 s{sT0}, s{sW}, 1")
    a(f"s_lshl_b32 s{sT0}, s{sT0}, 12")
    a(f"v_add_u32 v{vRd0}, s{sT0}, v{vD16}")
    a(f"v_mov_b32 v{t1}, {K2_FLAG}")
    a(f"v_mov_b32 v{t2}, 0")
    a(f"ds_write_b32 v{t1}, v{t2}")
    a(f"s_mov_b32 s81, 0")
    a.label("K2_restart")
    for r in range(32):
        a(f"v_mov_b32 v{vO+r}, 0")
    a(f"v_mov_b32 v{vMa}, 0")
    a(f"v_mov_b32 v{vMb}, 0")
    a(f"v_mov_b32 v{vFloor}, 0xff800000")
    a(f"s_mov_b32 s{sThr}, 0xff800000")
    a(f"s_mov_b32 s{sStage}, 0")
    a(f"s_mov_b32 s{sSlot}, 0")
    a(f"v_cmp_lt_u32 vcc, 31, v{vL}")
    a("s_waitcnt vmcnt(0)")
    for q in (6, 7, 14, 15):
        a(f"v_cndmask_b32 v{vQ+q}, v{vQ+q}, 0, vcc")
    make_srd(a, SRD_W, P_W4, 1792 * 896)
    make_srd(a, SRD_E, P_WO, 448 * 896)
    a(f"s_lshl_b32 s{sT1}, s2, 3")
    a(f"s_add_u32 s{sT1}, s{sT1}, s{sW}")
    l2_prefetch(a, SRD_W, 1792 * 896, sT1, 2048, vD16, 156, sT0)
    l2_prefetch(a, SRD_E, 448 * 896, sT1, 2048, vD16, 156, sT0)
    stamp(a, "k2")
    a("s_barrier")
    a(f"ds_read_b128 {vr(vK,4)}, v{vRd0}")
    a(f"ds_read_b128 {vr(vK+4,4)}, v{vRd0} offset:1024")
    a("s_waitcnt lgkmcnt(0)")
    for b in range(2):
        a(f"v_mfma_f32_32x32x16_bf16 {vr(vS+16*b,16)}, {vr(vK,4)}, {vr(vQ+8*b,4)}, 0")
        a(f"v_mfma_f32_32x32x16_bf16 {vr(vS+16*b,16)}, {vr(vK+4,4)}, {vr(vQ+8*b+4,4)}, {vr(vS+16*b,16)}")
    a("s_nop 7")
    stamp(a, "k2")
    Oa, Ob = vO, vO + 16

    def body(p, careful=True, tag=""):
        S, Sn = vS + 32 * p, vS + 32 * (1 - p)
        if STAMP == "k2it":
            a("s_memtime s[76:77]")
            a("s_waitcnt lgkmcnt(0)")
            a(f"s_lshl_b32 s78, s{sStage}, 1")
            a("s_mov_b32 m0, s78"); a("s_nop 0"); a("v_writelane_b32 v158, s76, m0")
        a("s_barrier")
        if STAMP == "k2it":
            a("s_memtime s[76:77]")
            a("s_waitcnt lgkmcnt(0)")
            a(f"s_add_u32 s78, s78, 1")
            a("s_mov_b32 m0, s78"); a("s_nop 0"); a("v_writelane_b32 v158, s76, m0")
        a(f"v_add_u32 v{vRdV}, s{sSlot}, v{vRd0}")
        a(f"s_add_u32 s{sSlot}, s{sSlot}, 16384")
        a(f"s_and_b32 s{sSlot}, s{sSlot}, 0xffff")
        a(f"v_add_u32 v{vRdK}, s{sSlot}, v{vRd0}")
        a(f"ds_read_b128 {vr(vK,4)}, v{vRdK}")
        a(f"ds_read_b128 {vr(vK+4,4)}, v{vRdK} offset:1024")
        a(f"ds_read_b128 {vr(vV,4)}, v{vRdV} offset:2048")
        a(f"ds_read_b128 {vr(vV+4,4)}, v{vRdV} offset:3072")
        if careful:
            a(f"v_max3_f32 v{vTa}, v{S}, v{S+1}, v{S+2}")
            a(f"v_max3_f32 v{t1}, v{S+3}, v{S+4}, v{S+5}")
            for r in range(6, 14, 4):
                a(f"v_max3_f32 v{vTa}, v{vTa}, v{S+r}, v{S+r+1}")
                a(f"v_max3_f32 v{t1}, v{t1}, v{S+r+2}, v{S+r+3}")
            a(f"v_max3_f32 v{vTa}, v{vTa}, v{S+14}, v{S+15}")
            a(f"v_max3_f32 v{vTb}, v{S+16}, v{S+17}, v{S+18}")
            a(f"v_max_f32 v{vTa}, v{vTa}, v{t1}")
            a(f"v_max3_f32 v{t1}, v{S+19}, v{S+20}, v{S+21}")
            for r in range(22, 30, 4):
                a(f"v_max3_f32 v{vTb}, v{vTb}, v{S+r}, v{S+r+1}")
                a(f"v_max3_f32 v{t1}, v{t1}, v{S+r+2}, v{S+r+3}")
            a(f"v_max3_f32 v{vTb}, v{vTb}, v{S+30}, v{S+31}")
            a(f"v_max_f32 v{vTb}, v{vTb}, v{t1}")
            a(f"v_max_f32 v{t1}, v{vTa}, v{vTb}")
            a(f"v_cmp_lt_f32 vcc, s{sThr}, v{t1}")
            a(f"s_cbranch_vccnz A_slow{p}{tag}")
            a.label(f"A_ret{p}{tag}")
        if careful:
            a("s_waitcnt lgkmcnt(2)")
            a(f"v_mfma_f32_32x32x16_bf16 {vr(Sn,16)}, {vr(vK,4)}, {vr(vQ,4)}, 0")
            for r in range(4):
                a(f"v_exp_f32 v{S+r}, v{S+r}")
            a(f"v_mfma_f32_32x32x16_bf16 {vr(Sn+16,16)}, {vr(vK,4)}, {vr(vQ+8,4)}, 0")
            for r in range(4, 9):
                a(f"v_exp_f32 v{S+r}, v{S+r}")
        else:
            for r in range(6):
                a(f"v_exp_f32 v{S+r}, v{S+r}")
            a("s_waitcnt lgkmcnt(2)")
            a(f"v_mfma_f32_32x32x16_bf16 {vr(Sn,16)}, {vr(vK,4)}, {vr(vQ,4)}, 0")
            for r in range(6, 9):
                a(f"v_exp_f32 v{S+r}, v{S+r}")
            a(f"v_mfma_f32_32x32x16_bf16 {vr(Sn+16,16)}, {vr(vK,4)}, {vr(vQ+8,4)}, 0")
        for r in range(4):
            a(f"v_cvt_pk_bf16_f32 v{vP+r}, v{S+2*r}, v{S+2*r+1}")
        a(f"v_exp_f32 v{S+9}, v{S+9}")
        a("s_waitcnt lgkmcnt(0)")
        a(f"v_mfma_f32_32x32x16_bf16 {vr(Oa,16)}, {vr(vV,4)}, {vr(vP,4)}, {vr(Oa,16)}")
        for r in range(10, 13):
            a(f"v_exp_f32 v{S+r}, v{S+r}")
        a(f"v_mfma_f32_32x32x16_bf16 {vr(Sn,16)}, {vr(vK+4,4)}, {vr(vQ+4,4)}, {vr(Sn,16)}")
        for r in range(13, 17):
            a(f"v_exp_f32 v{S+r}, v{S+r}")
        for r in range(4, 8):
            a(f"v_cvt_pk_bf16_f32 v{vP+r}, v{S+2*r}, v{S+2*r+1}")
        a(f"v_exp_f32 v{S+17}, v{S+17}")
        a(f"v_exp_f32 v{S+18}, v{S+18}")
        a(f"v_mfma_f32_32x32x16_bf16 {vr(Oa,16)}, {vr(vV+4,4)}, {vr(vP+4,4)}, {vr(Oa,16)}")
        for r in range(19, 22):
            a(f"v_exp_f32 v{S+r}, v{S+r}")
        a(f"v_mfma_f32_32x32x16_bf16 {vr(Sn+16,16)}, {vr(vK+4,4)}, {vr(vQ+12,4)}, {vr(Sn+16,16)}")
        for r in range(22, 25):
            a(f"v_exp_f32 v{S+r}, v{S+r}")
        for r in range(4):
            a(f"v_cvt_pk_bf16_f32 v{vP+r}, v{S+16+2*r}, v{S+16+2*r+1}")
        a(f"v_exp_f32 v{S+25}, v{S+25}")
        a(f"v_exp_f32 v{S+26}, v{S+26}")
        a(f"v_mfma_f32_32x32x16_bf16 {vr(Ob,16)}, {vr(vV,4)}, {vr(vP,4)}, {vr(Ob,16)}")
        for r in range(27, 32):
            a(f"v_exp_f32 v{S+r}, v{S+r}")
        a(f"s_add_u32 s{sStage}, s{sStage}, 1")
        for r in range(4, 8):
            a(f"v_cvt_pk_bf16_f32 v{vP+r}, v{S+16+2*r}, v{S+16+2*r+1}")
        a(f"s_cmp_lt_u32 s{sStage}, 16")
        a("s_nop 0")
        a(f"v_mfma_f32_32x32x16_bf16 {vr(Ob,16)}, {vr(vV+4,4)}, {vr(vP+4,4)}, {vr(Ob,16)}")

    a(f"s_cmp_lg_u32 s81, 0")
    a("s_cbranch_scc1 A_loop")
    body(0, True, "f")
    a.raw(".p2align 6")
    a.label("A_fast")
    body(1, False)
    a(f"s_cmp_lt_u32 s{sStage}, 16")
    a("s_cbranch_scc0 A_check")
    body(0, False)
    a("s_branch A_fast")
    a.label("A_check")
    a(f"v_mov_b32 v{t1}, 0")
    a("s_nop 10")
    for r in range(32):
        a(f"v_fmac_f32 v{t1}, 0, v{vO+r}")
    a(f"v_cmp_u_f32 vcc, v{t1}, v{t1}")
    a("s_cbranch_vccz A_end")
    a(f"v_mov_b32 v{t1}, {K2_FLAG}")
    a(f"v_mov_b32 v{t2}, 1")
    a(f"ds_write_b32 v{t1}, v{t2}")
    a("s_waitcnt lgkmcnt(0)")
    a("s_branch A_end")
    a.raw(".p2align 6")
    a.label("A_loop")
    body(0)
    body(1)
    a("s_cbranch_scc1 A_loop")
    a.label("A_end")

    stamp(a, "k2")
    if STAMP == "k2it":
        a("s_cmp_eq_u32 s2, 100")
        a("s_cbranch_scc0 K2_itskip")
        a(f"s_cmp_eq_u32 s{sW}, {os.environ.get('ITW','0')}")
        a("s_cbranch_scc0 K2_itskip")
        make_srd(a, SRD_F, P_DBG, 256)
        a(f"v_lshlrev_b32 v159, 2, v{vL}")
        a(f"buffer_store_dword v158, v159, s[{SRD_F}:{SRD_F+3}], 0 offen")
        a.label("K2_itskip")
    a("s_barrier")
    a(f"v_mov_b32 v{t1}, {K2_FLAG}")
    a(f"ds_read_b32 v{t2}, v{t1}")
    a("s_waitcnt lgkmcnt(0)")
    a(f"v_readfirstlane_b32 s{sT0}, v{t2}")
    a(f"s_cmp_lg_u32 s81, 0")
    a("s_cbranch_scc1 A_fin")
    a(f"s_cmp_eq_u32 s{sT0}, 0")
    a("s_cbranch_scc1 A_fin")
    a(f"s_mov_b32 s81, 1")
    a("s_branch K2_restart")
    a.label("A_fin")
    a(f"s_mul_i32 s{sT0}, s{sW}, 9216")
    a(f"v_add_u32 v{t1}, s{sT0}, v{vD16}")
    a(f"v_lshlrev_b32 v{t2}, 2, v{vL}")
    a(f"v_add_u32 v{t2}, s{sT0}, v{t2}")
    a("s_nop 8")
    for sub in range(2):
        for q in range(4):
            a(f"ds_write_b128 v{t1}, {vr(vO+16*sub+4*q,4)} offset:{4608*sub+1024*q}")
    a(f"ds_write_b32 v{t2}, v{vMa} offset:4096")
    a(f"ds_write_b32 v{t2}, v{vMb} offset:{4608+4096}")
    a("s_waitcnt lgkmcnt(0)")
    a("s_barrier")
    a(f"s_cmp_lt_u32 s{sW}, 4")
    a("s_cbranch_scc1 K2_owner")
    a("s_barrier")
    a("s_branch K23_mid")
    a.label("K2_owner")
    a(f"s_and_b32 s{sT0}, s{sW}, 1")
    a(f"s_mul_i32 s{sT0}, s{sT0}, 9216")
    a(f"s_lshr_b32 s{sT1}, s{sW}, 1")
    a(f"s_mul_i32 s{sT2}, s{sT1}, 4608")
    a(f"s_add_u32 s{sT0}, s{sT0}, s{sT2}")
    a(f"v_add_u32 v{t1}, s{sT0}, v{vD16}")
    a(f"v_lshlrev_b32 v{t2}, 2, v{vL}")
    a(f"v_add_u32 v{t2}, s{sT0}, v{t2}")
    R, MM, PK = 92, 20, 24
    for kq in range(4):
        a(f"ds_read_b32 v{MM+kq}, v{t2} offset:{18432*kq+4096}")
    for kq in range(4):
        for q in range(4):
            a(f"ds_read_b128 {vr(R+16*kq+4*q,4)}, v{t1} offset:{18432*kq+1024*q}")
    a("s_waitcnt lgkmcnt(0)")
    a("s_barrier")
    a(f"v_max3_f32 v{t3}, v{MM}, v{MM+1}, v{MM+2}")
    a(f"v_max_f32 v{t3}, v{t3}, v{MM+3}")
    for kq in range(4):
        a(f"v_sub_f32 v{MM+kq}, v{MM+kq}, v{t3}")
    for kq in range(4):
        a(f"v_exp_f32 v{MM+kq}, v{MM+kq}")
    a("s_nop 0")
    for r in range(16):
        a(f"v_mul_f32 v{R+r}, v{R+r}, v{MM}")
    for kq in range(1, 4):
        for r in range(16):
            a(f"v_fmac_f32 v{R+r}, v{R+16*kq+r}, v{MM+kq}")
    a(f"v_mov_b32 v{t2}, v{R+12}")
    a(f"v_mov_b32 v{t3}, v{R+12}")
    a("s_nop 1")
    a(f"v_permlane32_swap_b32 v{t2}, v{t3}")
    a(f"v_rcp_f32 v{t3}, v{t3}")
    a(f"v_cmp_lt_u32 vcc, 31, v{vL}")
    for r in range(16):
        a(f"v_mul_f32 v{R+r}, v{R+r}, v{t3}")
    for r in range(8):
        a(f"v_cvt_pk_bf16_f32 v{PK+r}, v{R+2*r}, v{R+2*r+1}")
    a(f"v_cndmask_b32 v{PK+6}, v{PK+6}, 0, vcc")
    a(f"v_cndmask_b32 v{PK+7}, v{PK+7}, 0, vcc")
    a(f"s_add_u32 s{sT0}, s{sQB}, s{sT1}")
    a(f"s_lshl_b32 s{sT0}, s{sT0}, 4")
    a(f"s_add_u32 s{sT0}, s{sT0}, s{sH}")
    a(f"s_lshl_b32 s{sT0}, s{sT0}, 11")
    a(f"s_add_u32 s{sT0}, s{sT0}, {OF}")
    a(f"buffer_store_dwordx4 {vr(PK,4)}, v{vD16}, {sr(SRD_WS,4)}, s{sT0} offen sc1")
    a(f"buffer_store_dwordx4 {vr(PK+4,4)}, v{vD16}, {sr(SRD_WS,4)}, s{sT0} offen offset:1024 sc1")
    a(f"s_lshr_b32 s{sT0}, s2, 4")
    a(f"s_lshl_b32 s{sT0}, s{sT0}, 4")
    a(f"s_add_u32 s{sT0}, s{sT0}, s{sH}")
    a(f"s_lshl_b32 s{sT0}, s{sT0}, 2")
    a(f"s_add_u32 s{sT0}, s{sT0}, s{sW}")
    a(f"s_lshl_b32 s{sT0}, s{sT0}, 2")
    a(f"s_add_u32 s{sT0}, s{sT0}, {FO}")
    a("s_waitcnt vmcnt(0)")
    flag_store(a, sT0, t1, t2, vL, "o")
    a("s_branch K23_mid")

    for p, tag in ((0, ""), (1, ""), (0, "f")):
        S = vS + 32 * p
        a.label(f"A_slow{p}{tag}")
        a(f"v_cmp_lt_u32 vcc, 31, v{vL}")
        for sub, (vT, vM) in enumerate(((vTa, vMa), (vTb, vMb))):
            a(f"v_mov_b32 v{t1}, v{vT}")
            a("s_nop 1")
            a(f"v_permlane32_swap_b32 v{vT}, v{t1}")
            a("s_nop 1")
            a(f"v_max3_f32 v{vT}, v{vT}, v{t1}, v{vFloor}")
            a(f"v_add_f32 v{vM}, v{vM}, v{vT}")
            a(f"v_max_f32 v{t1}, 0, v{vT}")
            a(f"v_exp_f32 v{t1}, -v{t1}")
            for r in range(16):
                a(f"v_sub_f32 v{S+16*sub+r}, v{S+16*sub+r}, v{vT}")
            for r in range(16):
                a(f"v_mul_f32 v{vO+16*sub+r}, v{vO+16*sub+r}, v{t1}")
            a(f"v_sub_f32 v{t1}, 0, v{vM}")
            a(f"v_cvt_pk_bf16_f32 v{t2}, v{t1}, v{t1}")
            a(f"v_and_b32 v{t2}, 0xffff0000, v{t2}")
            a(f"v_sub_f32 v{t1}, v{t1}, v{t2}")
            a(f"v_cvt_pk_bf16_f32 v{t3}, v{t1}, v{t1}")
            a(f"v_and_b32 v{t3}, 0xffff0000, v{t3}")
            a(f"v_sub_f32 v{t1}, v{t1}, v{t3}")
            a(f"v_cvt_pk_bf16_f32 v{t2}, v{t2}, v{t3}")
            a(f"v_cvt_pk_bf16_f32 v{t3}, v{t1}, 0")
            a(f"v_cndmask_b32 v{vQ+8*sub+6}, v{vQ+8*sub+6}, v{t2}, vcc")
            a(f"v_cndmask_b32 v{vQ+8*sub+7}, v{vQ+8*sub+7}, v{t3}, vcc")
        a(f"v_mov_b32 v{vFloor}, 0")
        a(f"s_mov_b32 s{sThr}, 0x42000000")
        a(f"s_branch A_ret{p}{tag}")
```

```python
from gen import *
from gen_tp import *
from gen_k2 import STATS, CS3

K3_RING = 114688
K3_CS = K3_RING + 5 * 8192
K3_CNT = K3_CS + 1024
K3_LDS = K3_CNT + 256


def gen_k3(a):
    a("s_cmp_ge_u32 s2, 224")
    a("s_cbranch_scc1 K3_exit")
    sW, sT0, sT1, sRB, sCB, sWB, sMA, sK1, sST = 60, 61, 62, 63, 64, 65, 66, 68, 69
    sAoff, sWoff, sCnt, sWslot, sWg, sG = 70, 71, 72, 73, 74, 75
    vL, vHF, vI, vWr0 = 1, 2, 3, 4
    vWd, vD16, vWr, vAr0, vAr = 5, 6, 7, 11, 17
    t1, t2, t3 = 8, 9, 10
    vMean, vK0, vRstd, vCsA = 12, 13, 14, 15
    vAf = 20
    vWf = 36
    vAcc = 68
    vTmp = 100
    vP = 116
    vCs = 124
    vSt = 140
    lane_consts(a, vL, vHF, vI, vWr0, t1, t2, 4)
    a(f"v_lshrrev_b32 v{t1}, 6, v0")
    a(f"v_lshlrev_b32 v{vD16}, 4, v{vL}")
    a(f"v_readfirstlane_b32 s{sW}, v{t1}")
    a(f"s_and_b32 s{sRB}, s2, 3")
    a(f"s_lshl_b32 s{sRB}, s{sRB}, 2")
    a(f"s_bfe_u32 s{sT0}, s2, 0x20003")
    a(f"s_add_u32 s{sRB}, s{sRB}, s{sT0}")
    a(f"s_bfe_u32 s{sCB}, s2, 0x10002")
    a(f"s_mul_i32 s{sCB}, s{sCB}, 7")
    a(f"s_lshr_b32 s{sT0}, s2, 5")
    a(f"s_add_u32 s{sCB}, s{sCB}, s{sT0}")
    a(f"s_mov_b32 s90, s{sRB}")
    a(f"s_mov_b32 s91, s{sCB}")
    a(f"s_lshr_b32 s{sG}, s{sW}, 2")
    a(f"s_and_b32 s{sW}, s{sW}, 3")
    a(f"s_lshl_b32 s{sRB}, s{sRB}, 2")
    a(f"s_add_u32 s{sRB}, s{sRB}, s{sW}")
    a(f"s_cmp_lt_u32 s{sG}, 2")
    a("s_cbranch_scc1 K3_common")
    make_srd(a, SRD_W, P_W3, 448 * 3584)
    a(f"s_lshl_b32 s{sWB}, s{sCB}, 8")
    a(f"s_mul_i32 s{sT0}, s{sW}, {16*3584}")
    a(f"s_add_u32 s{sWB}, s{sWB}, s{sT0}")
    a(f"s_lshl_b32 s{sMA}, s{sW}, 10")
    a(f"s_add_u32 s{sMA}, s{sMA}, {K3_RING}")
    a(f"v_lshrrev_b32 v{t1}, 2, v{vL}")
    a(f"v_mul_u32_u24 v{t1}, 3584, v{t1}")
    a(f"v_and_b32 v{t2}, 3, v{vL}")
    a(f"v_lshlrev_b32 v{t2}, 4, v{t2}")
    a(f"v_add_u32 v{vWd}, v{t1}, v{t2}")
    a(f"s_mul_i32 s{sT1}, s{sRB}, {28*1024}")
    a(f"s_add_u32 s{sT1}, s{sT1}, {X1F}")
    a(f"s_mul_i32 s{sAoff}, s{sW}, 28672")
    ops = []

    def issue_a(c):
        a(f"s_add_u32 m0, s{sAoff}, {4096*c}")
        a(f"s_add_u32 s{sT0}, s{sT1}, {4096*c}")
        for s in range(4):
            a(f"buffer_load_dwordx4 v{vD16}, {sr(SRD_WS,4)}, s{sT0} offen offset:{1024*s} sc1 lds")
            ops.append(c)

    def issue_w(i):
        p, c = divmod(i, 7)
        for tt in range(2):
            t = 2 * p + tt
            a(f"s_add_u32 m0, s{sMA}, {(i%5)*8192 + tt*4096}")
            a(f"s_add_u32 s{sT0}, s{sWB}, {64*c*3584 + 64*t}")
            a(f"buffer_load_dwordx4 v{vWd}, {sr(SRD_W,4)}, s{sT0} offen lds")
            ops.append(i)
    for i in range(5):
        issue_w(i)
    a(f"s_mul_i32 s{sT0}, s90, {56*4}")
    a(f"s_add_u32 s{sT0}, s{sT0}, {FX1}")
    a(f"v_lshlrev_b32 v{t1}, 2, v{vL}")
    a(f"v_add_u32 v{t2}, s{sT0}, v{t1}")
    a(f"s_lshl_b32 s{sT0}, s91, 5")
    a(f"s_add_u32 s{sT0}, s{sT0}, {FCS - 56*4}")
    a(f"v_add_u32 v{t1}, s{sT0}, v{t1}")
    a(f"v_cmp_lt_u32 vcc, 55, v{vL}")
    a("s_nop 1")
    a(f"v_cndmask_b32 v{t2}, v{t2}, v{t1}, vcc")
    flag_poll(a, t2, t3, sCnt, "K3x1")
    for i in range(7):
        issue_a(i)
    a(f"s_lshl_b32 s{sT0}, s{sCB}, 9")
    a(f"s_add_u32 s{sT0}, s{sT0}, {CS3}")
    a(f"s_mov_b32 m0, {K3_CS}")
    a("s_nop 0")
    a(f"buffer_load_dwordx4 v{vD16}, {sr(SRD_WS,4)}, s{sT0} offen sc1 lds")
    ops.append(6)
    for i in range(15):
        if i < 14:
            last = max(k for k, t in enumerate(ops) if t == i)
            a(f"s_waitcnt vmcnt({min(len(ops)-1-last, 63)})")
        a("s_barrier")
        if i >= 2 and i + 3 < 14:
            issue_w(i + 3)
    a("s_barrier")
    a("s_branch K34_publish")
    a.label("K3_common")
    a(f"v_mov_b32 v{t1}, {K3_CNT}")
    a(f"v_mov_b32 v{t2}, 0")
    a(f"ds_write_b32 v{t1}, v{t2}")
    a(f"ds_write_b32 v{t1}, v{t2} offset:4")
    a(f"v_lshlrev_b32 v{vCsA}, 4, v{vHF}")
    a(f"s_lshl_b32 s{sT0}, s{sG}, 8")
    a(f"s_add_u32 s{sT0}, s{sT0}, {K3_CS}")
    a(f"v_add_u32 v{vCsA}, s{sT0}, v{vCsA}")
    a(f"s_mul_i32 s{sST}, s{sRB}, {112*1024}")
    a(f"s_lshl_b32 s{sT0}, s{sCB}, 13")
    a(f"s_add_u32 s{sST}, s{sST}, s{sT0}")
    a(f"s_lshl_b32 s{sT0}, s{sG}, 12")
    a(f"s_add_u32 s{sST}, s{sST}, s{sT0}")
    a(f"s_add_u32 s{sST}, s{sST}, {H2F}")
    a(f"s_mov_b32 s{sK1}, {f2u(GK1)}")
    a(f"v_mov_b32 v{vK0}, {f2u(GK0)}")
    a(f"s_mul_i32 s{sT0}, s{sW}, 28672")
    a(f"v_add_u32 v{vAr0}, s{sT0}, v{vD16}")
    a(f"v_add_u32 v{vWr0}, {K3_RING}, v{vWr0}")

    def stats_loads():
        a(f"s_lshl_b32 s{sT0}, s{sRB}, 5")
        a(f"v_add_u32 v{t1}, s{sT0}, v{vI}")
        a(f"v_mul_u32_u24 v{t1}, 112, v{t1}")
        a(f"s_mov_b32 s{sT0}, {STATS}")
        for q in range(7):
            a(f"buffer_load_dwordx4 {vr(vSt+4*q,4)}, v{t1}, {sr(SRD_WS,4)}, s{sT0} offen offset:{16*q} sc1")

    sAo2 = 76 if not STAMP else 100
    def setaddr():
        a(f"v_add_u32 v{vAr}, s{sAo2}, v{vAr0}")
        a(f"v_add_u32 v{vWr}, s{sWoff}, v{vWr0}")
        a(f"s_add_u32 s{sAo2}, s{sAo2}, 4096")
        a(f"s_add_u32 s{sWoff}, s{sWoff}, 8192")
        a(f"s_cmp_lt_u32 s{sWoff}, {5*8192}")
        a(f"s_cselect_b32 s{sWoff}, s{sWoff}, 0")

    def rd_a(b, s):
        a(f"ds_read_b128 {vr(vAf+4*b,4)}, v{vAr} offset:{1024*s}")

    def rd_w(b, s, tt):
        o = tt * 4096 + s * 1024
        a(f"ds_read_b64_tr_b16 {vr(vWf+8*b+4*tt,2)}, v{vWr} offset:{o}")
        a(f"ds_read_b64_tr_b16 {vr(vWf+8*b+4*tt+2,2)}, v{vWr} offset:{o+512}")

    def epilogue():
        L = ["s_waitcnt vmcnt(0)"]
        for q in range(1, 14):
            L.append(f"v_add_f32 v{vSt}, v{vSt}, v{vSt+2*q}")
            L.append(f"v_add_f32 v{vSt+1}, v{vSt+1}, v{vSt+2*q+1}")
        L.append(f"v_mul_f32 v{vMean}, {f2u(1.0/448)}, v{vSt}")
        L.append(f"v_mul_f32 v{vRstd}, {f2u(1.0/448)}, v{vSt+1}")
        L.append(f"v_fma_f32 v{vRstd}, -v{vMean}, v{vMean}, v{vRstd}")
        L.append(f"v_add_f32 v{vRstd}, {f2u(1e-5)}, v{vRstd}")
        L.append(f"v_rsq_f32 v{vRstd}, v{vRstd}")
        for t in range(2):
            A = vAcc + 16 * t
            L += [f"ds_read_b128 {vr(vCs+4*q,4)}, v{vCsA} offset:{128*t+32*q}" for q in range(4)]
            L.append("s_waitcnt lgkmcnt(0)")
            for r in range(16):
                L.append(f"v_fma_f32 v{A+r}, -v{vMean}, v{vCs+r}, v{A+r}")
            for r in range(16):
                L.append(f"v_mul_f32 v{A+r}, v{vRstd}, v{A+r}")
            L += gelu_list([A + r for r in range(16)], vTmp, vK0, sK1)
            for r in range(8):
                L.append(f"v_cvt_pk_bf16_f32 v{vP+r}, v{A+2*r}, v{A+2*r+1}")
            L.append(f"buffer_store_dwordx4 {vr(vP,4)}, v{vD16}, {sr(SRD_WS,4)}, s{sST} offen offset:{2048*t} sc1")
            L.append(f"buffer_store_dwordx4 {vr(vP+4,4)}, v{vD16}, {sr(SRD_WS,4)}, s{sST} offen offset:{2048*t+1024} sc1")
            L.append("s_nop 1")
        return L

    a(f"s_mov_b32 s{sAo2}, 0")
    a(f"s_cmp_eq_u32 s{sG}, 0")
    a("s_cbranch_scc0 K3_B")
    if 'k3pf' in os.environ.get('PF',''):
        make_srd(a, SRD_W, P_W3, 448 * 3584)
        a(f"s_lshr_b32 s{sT1}, s2, 3")
        a(f"s_lshl_b32 s{sT1}, s{sT1}, 2")
        a(f"s_add_u32 s{sT1}, s{sT1}, s{sW}")
        l2_prefetch(a, SRD_W, 448 * 3584, sT1, 112, vD16, vTmp, sT0)
    a(f"s_mov_b32 s{sWoff}, 0")
    stamp(a, "k3")
    a("s_barrier")
    stats_loads()
    setaddr()
    pass_loop(a, "K3A", vAf, vWf, vAcc, sCnt, setaddr, rd_a, rd_w, lambda post: None)
    stamp(a, "k3")
    emit_with_barriers(a, epilogue(), 7)
    a("s_barrier")
    stamp(a, "k3")
    a("s_branch K34_publish")
    a.label("K3_B")
    for i in range(8):
        a("s_barrier")
        if i == 0:
            stats_loads()
    a(f"s_mov_b32 s{sWoff}, {(7%5)*8192}")
    setaddr()
    pass_loop(a, "K3B", vAf, vWf, vAcc, sCnt, setaddr, rd_a, rd_w, lambda post: None)
    a("s_barrier")
    a("s_nop 10")
    for x in epilogue():
        a(x)
    a.label("K34_publish")
    import gen_k4
    gen_k4.phase2(a, sG, sW)
    a.label("K3_exit")
    a("s_endpgm")
```

```python
from gen import *

K4_LDS = 4 * 32768


def phase2(a, sGin, sWin):
    sW, sT0, sT1, sRB, sCB = 60, 61, 62, 63, 64
    sAg, sWg, sSlotW, sSlotR, sC, sMA, sMW = 65, 66, 67, 68, 69, 70, 71
    sAo, sWo, sG = 72, 73, 75
    vL, vHF, vI, vWr0 = 1, 2, 3, 4
    vWd, vD16, vWr, vAr0, vAr = 5, 6, 7, 8, 9
    t1, t2, t3 = 10, 11, 12
    vG = 13
    vX1 = 16
    vAf = 24
    vWf = 56
    vAccB = 88
    vAccA = 104
    vP = 120
    assert sGin == sG and sWin == sW
    sP, sMask, sCnt2 = 74, 76 if not STAMP else 100, 77 if not STAMP else 101
    lane_consts(a, vL, vHF, vI, vWr0, t1, t2, 4)
    a(f"s_and_b32 s{sRB}, s2, 31")
    a(f"s_lshr_b32 s{sCB}, s2, 5")
    a(f"s_cmp_lt_u32 s{sG}, 2")
    a("s_cbranch_scc1 K4_pub")
    make_srd(a, SRD_W, P_W4, 1792 * 896)
    make_srd(a, SRD_E, P_WO, 448 * 896)
    a(f"s_lshr_b32 s{sC}, s{sRB}, 1")
    a(f"s_lshl_b32 s{sC}, s{sC}, 8")
    a(f"s_add_u32 s{sC}, s{sC}, {FLAGS}")
    a(f"s_and_b32 s{sT0}, s{sW}, 1")
    a(f"s_lshr_b32 s{sT1}, s{sW}, 1")
    a(f"s_lshl_b32 s{sMA}, s{sT0}, 13")
    a(f"s_lshl_b32 s{sMW}, s{sT1}, 12")
    a(f"s_add_u32 s{sMA}, s{sMA}, s{sMW}")
    a(f"s_add_u32 s{sMW}, s{sMA}, 16384")
    a(f"s_lshl_b32 s{sAg}, s{sRB}, 1")
    a(f"s_add_u32 s{sAg}, s{sAg}, s{sT0}")
    a(f"s_lshl_b32 s{sAo}, s{sAg}, 15")
    a(f"s_mul_i32 s{sAg}, s{sAg}, {112*1024}")
    a(f"s_lshl_b32 s{sWg}, s{sT1}, 12")
    a(f"s_add_u32 s{sAg}, s{sAg}, s{sWg}")
    a(f"s_add_u32 s{sAo}, s{sAo}, s{sWg}")
    a(f"s_add_u32 s{sAg}, s{sAg}, {H2F}")
    a(f"s_add_u32 s{sAo}, s{sAo}, {OF}")
    a(f"s_lshl_b32 s{sWg}, s{sCB}, 1")
    a(f"s_add_u32 s{sWg}, s{sWg}, s{sT0}")
    a(f"s_lshl_b32 s{sWg}, s{sWg}, 6")
    a(f"s_mul_i32 s{sWo}, s{sT1}, {56*896}")
    a(f"s_add_u32 s{sWo}, s{sWo}, s{sWg}")
    a(f"s_mul_i32 s{sT1}, s{sT1}, {64*896}")
    a(f"s_add_u32 s{sWg}, s{sWg}, s{sT1}")
    a(f"v_lshrrev_b32 v{t1}, 2, v{vL}")
    a(f"v_mul_u32_u24 v{t1}, 896, v{t1}")
    a(f"v_and_b32 v{t2}, 3, v{vL}")
    a(f"v_lshlrev_b32 v{t2}, 4, v{t2}")
    a(f"v_add_u32 v{vWd}, v{t1}, v{t2}")
    a(f"s_mov_b32 s{sP}, 0")
    a(f"s_mov_b32 s{sMask}, 0")
    a(f"v_mov_b32 v{t3}, 0")

    pl = [0]
    def issue(kind):
        if kind == 'wo':
            sA, sWW, srd, sc = sAo, sWo, SRD_E, " sc1"
        else:
            pl[0] += 1
            n = pl[0]
            sA, sWW, srd, sc = 78 if not STAMP else 98, 79 if not STAMP else 99, SRD_W, " sc1"
            a(f"s_lshl_b32 s{sT0}, s{sP}, 13")
            a(f"s_add_u32 s{sA}, s{sAg}, s{sT0}")
            a(f"s_mul_i32 s{sT0}, s{sP}, {128*896}")
            a(f"s_add_u32 s{sWW}, s{sWg}, s{sT0}")
            a(f"s_add_u32 s{sP}, s{sP}, 1")
            a(f"s_cmp_lt_u32 s{sP}, 14")
            a(f"s_cselect_b32 s{sP}, s{sP}, 0")
        a(f"s_add_u32 s{sT1}, s{sMW}, s{sSlotW}")
        for j in range(4):
            a(f"s_add_u32 m0, s{sT1}, {1024*j}")
            ro = 16 * j if kind == 'w4' else 28 * (j >> 1) + 16 * (j & 1)
            a(f"s_add_u32 s{sT0}, s{sWW}, {ro*896}")
            a(f"buffer_load_dwordx4 v{vWd}, {sr(srd,4)}, s{sT0} offen lds")
        a(f"s_add_u32 m0, s{sMA}, s{sSlotW}")
        a("s_nop 0")
        for j in range(4):
            a(f"buffer_load_dwordx4 v{vD16}, {sr(SRD_WS,4)}, s{sA} offen offset:{1024*j}{sc} lds")
        if kind == 'wo':
            a(f"s_add_u32 s{sA}, s{sA}, 8192")
            a(f"s_add_u32 s{sWW}, s{sWW}, {112*896}")
        a(f"s_add_u32 s{sSlotW}, s{sSlotW}, 32768")
        a(f"s_and_b32 s{sSlotW}, s{sSlotW}, 0x1ffff")

    a(f"s_lshr_b32 s{sT0}, s{sRB}, 1")
    a(f"s_lshl_b32 s{sT0}, s{sT0}, 8")
    a(f"s_add_u32 s{sT0}, s{sT0}, {FO}")
    a(f"v_lshlrev_b32 v{t1}, 2, v{vL}")
    a(f"v_add_u32 v{t2}, s{sT0}, v{t1}")
    flag_poll(a, t2, t3, sCnt2, "K4o")
    a(f"v_mov_b32 v{t3}, 0")
    a(f"s_mov_b32 s{sSlotW}, 0")
    for c in range(3):
        issue('wo')
    a("s_waitcnt vmcnt(16)")
    a("s_barrier")
    issue('wo')
    a(f"s_cmp_eq_u32 s{sW}, 0")
    a("s_cbranch_scc0 K4_ready")
    a(f"s_lshr_b32 s{sT0}, s{sRB}, 1")
    a(f"s_lshl_b32 s{sT0}, s{sT0}, 7")
    a(f"s_add_u32 s{sT0}, s{sT0}, {FH2}")
    a(f"v_lshlrev_b32 v{t1}, 2, v{vL}")
    a(f"v_cmp_gt_u32 vcc, 28, v{vL}")
    a("s_nop 1")
    a(f"v_cndmask_b32 v{t2}, 0, v{t1}, vcc")
    a(f"v_add_u32 v{t2}, s{sT0}, v{t2}")
    a(f"s_lshl_b32 s{sT0}, s{sRB}, 3")
    a(f"s_add_u32 s{sT0}, s{sT0}, {FH}")
    a(f"v_mov_b32 v{t3}, s{sT0}")
    a(f"v_cmp_eq_u32 vcc, 28, v{vL}")
    a("s_nop 1")
    a(f"v_cndmask_b32 v{t2}, v{t2}, v{t3}, vcc")
    a(f"s_mul_i32 s{sT0}, s{sRB}, 7")
    a(f"s_add_u32 s{sT0}, s{sT0}, s{sCB}")
    a(f"s_lshl_b32 s{sT0}, s{sT0}, 4")
    a(f"s_add_u32 s{sT0}, s{sT0}, {FX1 - 29*4}")
    a(f"v_add_u32 v{t3}, s{sT0}, v{t1}")
    a(f"v_subrev_u32 v{t1}, 29, v{vL}")
    a(f"v_cmp_gt_u32 vcc, 4, v{t1}")
    a("s_nop 1")
    a(f"v_cndmask_b32 v{t2}, v{t2}, v{t3}, vcc")
    flag_poll(a, t2, t3, sCnt2, "K4h")
    a.label("K4_ready")
    a(f"s_mov_b32 s{sSlotR}, 1")
    a.label("K4_ld1")
    a("s_waitcnt vmcnt(16)")
    a("s_barrier")
    issue('w4')
    a(f"s_add_u32 s{sSlotR}, s{sSlotR}, 1")
    a(f"s_cmp_lt_u32 s{sSlotR}, 15")
    a("s_cbranch_scc1 K4_ld1")
    for n in (16, 8, 0):
        a(f"s_waitcnt vmcnt({n})")
        a("s_barrier")
    stamp(a, "k3")
    stamp_flush(a, "k3", 5)
    a("s_endpgm")

    a.label("K4_pub")
    from gen_k3 import K3_CNT
    a("s_waitcnt vmcnt(0)")
    a(f"s_lshl_b32 s{sT0}, s{sG}, 2")
    a(f"s_add_u32 s{sT0}, s{sT0}, {K3_CNT}")
    a(f"v_mov_b32 v{t1}, s{sT0}")
    a(f"v_mov_b32 v{t2}, 1")
    a(f"v_cmp_eq_u32 vcc, 0, v{vL}")
    a(f"s_and_saveexec_b64 s[52:53], vcc")
    a(f"ds_add_rtn_u32 v{t3}, v{t1}, v{t2}")
    a("s_waitcnt lgkmcnt(0)")
    a(f"v_readfirstlane_b32 s{sT0}, v{t3}")
    a(f"s_cmp_eq_u32 s{sT0}, 3")
    a("s_cbranch_scc0 K4_nopub")
    a(f"s_lshl_b32 s{sT1}, s90, 7")
    a(f"s_lshl_b32 s{sT0}, s91, 3")
    a(f"s_add_u32 s{sT1}, s{sT1}, s{sT0}")
    a(f"s_lshl_b32 s{sT0}, s{sG}, 2")
    a(f"s_add_u32 s{sT1}, s{sT1}, s{sT0}")
    a(f"s_add_u32 s{sT1}, s{sT1}, {FH2}")
    a(f"v_mov_b32 v{t1}, s{S_TOK}")
    a(f"v_mov_b32 v{t2}, 0")
    a(f"buffer_store_dword v{t1}, v{t2}, {sr(SRD_WS,4)}, s{sT1} offen sc1")
    a.label("K4_nopub")
    a("s_mov_b64 exec, s[52:53]")
    a(f"s_cmp_eq_u32 s{sG}, 0")
    a("s_cbranch_scc1 K4_comp")
    a("s_endpgm")
    a.label("K4_comp")
    make_srd(a, SRD_F, P_OUT, 2048 * 896)
    a(f"s_and_b32 s{sT0}, s{sW}, 1")
    a(f"s_lshl_b32 s{sT0}, s{sT0}, 13")
    a(f"v_add_u32 v{vAr0}, s{sT0}, v{vD16}")
    a(f"s_lshr_b32 s{sT0}, s{sW}, 1")
    a(f"s_lshl_b32 s{sT0}, s{sT0}, 13")
    a(f"s_add_u32 s{sT0}, s{sT0}, 16384")
    a(f"v_add_u32 v{vWr0}, s{sT0}, v{vWr0}")

    def compute(acc):
        a(f"v_add_u32 v{vAr}, s{sSlotR}, v{vAr0}")
        a(f"v_add_u32 v{vWr}, s{sSlotR}, v{vWr0}")
        for s in range(8):
            a(f"ds_read_b128 {vr(vAf+4*s,4)}, v{vAr} offset:{1024*s}")
            a(f"ds_read_b64_tr_b16 {vr(vWf+4*s,2)}, v{vWr} offset:{1024*s}")
            a(f"ds_read_b64_tr_b16 {vr(vWf+4*s+2,2)}, v{vWr} offset:{1024*s+512}")
            if s >= 3:
                a(f"s_waitcnt lgkmcnt(9)")
                q = s - 3
                a(f"v_mfma_f32_32x32x16_bf16 {vr(acc,16)}, {vr(vWf+4*q,4)}, {vr(vAf+4*q,4)}, {vr(acc,16)}")
        for q in range(5, 8):
            a(f"s_waitcnt lgkmcnt({3*(7-q)})")
            a(f"v_mfma_f32_32x32x16_bf16 {vr(acc,16)}, {vr(vWf+4*q,4)}, {vr(vAf+4*q,4)}, {vr(acc,16)}")
        a(f"s_add_u32 s{sSlotR}, s{sSlotR}, 32768")
        a(f"s_and_b32 s{sSlotR}, s{sSlotR}, 0x1ffff")

    a(f"s_mov_b32 s{sSlotR}, 0")
    for r in range(16):
        a(f"v_mov_b32 v{vAccB+r}, 0")
        a(f"v_mov_b32 v{vAccA+r}, 0")
    a(f"s_mov_b32 s{sC}, 0")
    a.label("K4_c2")
    a("s_barrier")
    compute(vAccA)
    a(f"s_add_u32 s{sC}, s{sC}, 1")
    a(f"s_cmp_lt_u32 s{sC}, 4")
    a("s_cbranch_scc1 K4_c2")
    a(f"s_lshl_b32 s{sT0}, s{sRB}, 1")
    a(f"s_and_b32 s{sT1}, s{sW}, 1")
    a(f"s_add_u32 s{sT0}, s{sT0}, s{sT1}")
    a(f"s_lshl_b32 s{sT1}, s{sT0}, 7")
    a(f"s_add_u32 s{sT1}, s{sT1}, {GOFF}")
    a(f"v_lshlrev_b32 v{t1}, 2, v{vI}")
    a(f"buffer_load_dword v{vG}, v{t1}, {sr(SRD_WS,4)}, s{sT1} offen sc1")
    a(f"s_mul_i32 s{sT0}, s{sT0}, {28*1024}")
    a(f"s_lshl_b32 s{sT1}, s{sCB}, 12")
    a(f"s_add_u32 s{sT0}, s{sT0}, s{sT1}")
    a(f"s_lshr_b32 s{sT1}, s{sW}, 1")
    a(f"s_lshl_b32 s{sT1}, s{sT1}, 11")
    a(f"s_add_u32 s{sT0}, s{sT0}, s{sT1}")
    a(f"s_add_u32 s{sT0}, s{sT0}, {X1F}")
    a(f"buffer_load_dwordx4 {vr(vX1,4)}, v{vD16}, {sr(SRD_WS,4)}, s{sT0} offen sc1")
    a(f"buffer_load_dwordx4 {vr(vX1+4,4)}, v{vD16}, {sr(SRD_WS,4)}, s{sT0} offen offset:1024 sc1")
    a.label("K4_c1")
    a("s_barrier")
    compute(vAccB)
    a(f"s_add_u32 s{sC}, s{sC}, 1")
    a(f"s_cmp_lt_u32 s{sC}, 18")
    a("s_cbranch_scc1 K4_c1")
    a("s_waitcnt vmcnt(0)")
    a("s_nop 12")
    a(f"v_sub_f32 v{t3}, 1.0, v{vG}")
    for r in range(8):
        x = vX1 + r
        a(f"v_lshlrev_b32 v{t1}, 16, v{x}")
        a(f"v_and_b32 v{t2}, 0xffff0000, v{x}")
        a(f"v_add_f32 v{vAccB+2*r}, v{vAccB+2*r}, v{t1}")
        a(f"v_add_f32 v{vAccB+2*r+1}, v{vAccB+2*r+1}, v{t2}")
    for r in range(16):
        a(f"v_mul_f32 v{vAccB+r}, v{vAccB+r}, v{t3}")
    for r in range(16):
        a(f"v_fmac_f32 v{vAccB+r}, v{vAccA+r}, v{vG}")
    for r in range(8):
        a(f"v_cvt_pk_bf16_f32 v{vP+r}, v{vAccB+2*r}, v{vAccB+2*r+1}")
    a(f"s_lshl_b32 s{sT0}, s{sRB}, 6")
    a(f"s_and_b32 s{sT1}, s{sW}, 1")
    a(f"s_lshl_b32 s{sT1}, s{sT1}, 5")
    a(f"s_add_u32 s{sT0}, s{sT0}, s{sT1}")
    a(f"v_add_u32 v{t1}, s{sT0}, v{vI}")
    a(f"v_mul_u32_u24 v{t1}, 896, v{t1}")
    a(f"v_lshl_add_u32 v{t1}, v{vHF}, 3, v{t1}")
    a(f"s_lshl_b32 s{sT0}, s{sCB}, 7")
    a(f"s_lshr_b32 s{sT1}, s{sW}, 1")
    a(f"s_lshl_b32 s{sT1}, s{sT1}, 6")
    a(f"s_add_u32 s{sT0}, s{sT0}, s{sT1}")
    for q in range(4):
        a(f"buffer_store_dwordx2 {vr(vP+2*q,2)}, v{t1}, {sr(SRD_F,4)}, s{sT0} offen offset:{16*q}")
```

```python
from gen import *

from gen_k2 import gen_k2, K2_LDS
from gen_k3 import gen_k3, K3_LDS

from gen_k1 import gen_k1, K1_LDS

def main():
    a = Asm()
    a.raw(HEADER.rstrip())
    a.raw(f"; @launch kernel=k1_kernel grid=(256,1,1) block=(768,1,1) lds={K3_LDS}")
    a.raw('.amdgcn_target "amdgcn-amd-amdhsa--gfx950"')
    a.raw(".text")
    gen_k1(a)
    a.raw('.section .rodata,"a"')
    for name, v in (("k1_kernel", 168),):
        a.raw(".p2align 6")
        kd(a, name, v)
    out = sys.argv[1] if len(sys.argv) > 1 else "gated_mix__mha_block__mixer_s_mlp__prompt.s"
    open(out, "w").write(a.text())
    print("wrote", out, len(a.lines), "lines")
```

```python
import struct, sys

MB = 1 << 20
QF, KF, VF, HF, GOFF, OF, X1F, H2F = 0, 2 * MB, 4 * MB, 6 * MB, 8 * MB, 9 * MB, 11 * MB, 13 * MB
WS_SIZE = 32 * MB
FLAGS = 23 * MB
F12 = 23 * MB + 65536
TOK_LDS = 155648
FH, FX1, FCS, FO, FH2 = F12 + 4096, F12 + 8192, F12 + 12288, F12 + 16384, F12 + 24576
S_TOK = 95


def flag_store(a, soff, t1, t2, vL, tag):
    a(f"v_mov_b32 v{t1}, 0")
    a(f"v_mov_b32 v{t2}, s{S_TOK}")
    a(f"v_cmp_eq_u32 vcc, 0, v{vL}")
    a("s_and_saveexec_b64 s[86:87], vcc")
    a(f"buffer_store_dword v{t2}, v{t1}, s[48:51], s{soff} offen sc1")
    a("s_mov_b64 exec, s[86:87]")


def flag_poll(a, vaddr, vtmp, sCnt, tag):
    a(f"s_mov_b32 s{sCnt}, 0")
    a.label(f"{tag}_poll")
    a(f"buffer_load_dword v{vtmp}, v{vaddr}, s[48:51], 0 offen sc1")
    a("s_waitcnt vmcnt(0)")
    a(f"v_cmp_ne_u32 vcc, s{S_TOK}, v{vtmp}")
    a(f"s_cbranch_vccz {tag}_ok")
    a("s_sleep 3")
    a(f"s_add_u32 s{sCnt}, s{sCnt}, 1")
    a(f"s_cmp_lt_u32 s{sCnt}, 0x80000")
    a(f"s_cbranch_scc1 {tag}_poll")
    a.label(f"{tag}_ok")


HF_SIZE = 64 * 28 * 1024

def f2u(x):
    return struct.unpack("<I", struct.pack("<f", x))[0]

LOG2E = 1.4426950408889634
QSCALE = (28 ** -0.5) * LOG2E
GK0 = -2.0 * 0.7978845608028654 * LOG2E
GK1 = GK0 * 0.044715


class Asm:
    def __init__(self):
        self.lines = []
    def __call__(self, s):
        self.lines.append("    " + s)
    def label(self, l):
        self.lines.append(l + ":")
    def raw(self, s):
        self.lines.append(s)
    def text(self):
        return "\n".join(self.lines) + "\n"


def vr(b, n):
    return f"v[{b}:{b+n-1}]"

def sr(b, n):
    return f"s[{b}:{b+n-1}]"

S_PTR = 16
P_X, P_WQKV, P_WO, P_BX, P_W1, P_W2, P_W3, P_W4 = 16, 18, 20, 22, 24, 26, 28, 30
P_GATE, P_OUT, P_DBG, P_WS = 32, 34, 36, 38
SRD_A, SRD_W, SRD_WS, SRD_E = 40, 44, 48, 52
SRD_F = 56


def kernel_head(a, name):
    a.raw(f".globl {name}")
    a.raw(".p2align 8")
    a.raw(f".type {name},@function")
    a.label(name)


def load_ptrs(a):
    a(f"s_load_dwordx16 s[16:31], s[0:1], 0")
    a(f"s_load_dwordx8 s[32:39], s[0:1], 64")


def make_srd(a, srd, ptr, size, off=0):
    if off:
        a(f"s_add_u32 s{srd}, s{ptr}, {off}")
        a(f"s_addc_u32 s{srd+1}, s{ptr+1}, 0")
    else:
        a(f"s_mov_b32 s{srd}, s{ptr}")
        a(f"s_mov_b32 s{srd+1}, s{ptr+1}")
    a(f"s_mov_b32 s{srd+2}, {size}")
    a(f"s_mov_b32 s{srd+3}, 0x00020000")


def xhalf_sum(a, v, t):
    a(f"v_mov_b32 v{t}, v{v}")
    a("s_nop 1")
    a(f"v_permlane32_swap_b32 v{v}, v{t}")
    a(f"v_add_f32 v{v}, v{v}, v{t}")


def gelu_inplace(a, x, t1, t2, sk0, sk1):
    a(f"v_mul_f32 v{t1}, v{x}, v{x}")
    a(f"v_mov_b32 v{t2}, s{sk0}")
    a(f"v_fmac_f32 v{t2}, s{sk1}, v{t1}")
    a(f"v_mul_f32 v{t2}, v{t2}, v{x}")
    a(f"v_exp_f32 v{t2}, v{t2}")
    a("s_nop 0")
    a(f"v_add_f32 v{t2}, 1.0, v{t2}")
    a(f"v_rcp_f32 v{t2}, v{t2}")
    a("s_nop 0")
    a(f"v_mul_f32 v{x}, v{x}, v{t2}")


def gelu_block(a, regs, tmp, sk0, sk1):
    n = len(regs)
    for i, x in enumerate(regs):
        a(f"v_mul_f32 v{tmp+i}, v{x}, v{x}")
    for i, x in enumerate(regs):
        a(f"v_fma_f32 v{tmp+i}, v{tmp+i}, s{sk1}, v{sk0}")
    for i, x in enumerate(regs):
        a(f"v_mul_f32 v{tmp+i}, v{tmp+i}, v{x}")
    for i, x in enumerate(regs):
        a(f"v_exp_f32 v{tmp+i}, v{tmp+i}")
    for i, x in enumerate(regs):
        a(f"v_add_f32 v{tmp+i}, 1.0, v{tmp+i}")
    for i, x in enumerate(regs):
        a(f"v_rcp_f32 v{tmp+i}, v{tmp+i}")
    for i, x in enumerate(regs):
        a(f"v_mul_f32 v{x}, v{x}, v{tmp+i}")


def lane_consts(a, vL, vHF, vI, vWr, t1, t2, khalf_rows):
    a(f"v_and_b32 v{vL}, 63, v0")
    a(f"v_lshrrev_b32 v{vHF}, 5, v{vL}")
    a(f"v_and_b32 v{vI}, 31, v{vL}")
    a(f"v_bfe_u32 v{t1}, v{vL}, 2, 2")
    a(f"v_mul_u32_u24 v{t2}, {khalf_rows}, v{vHF}")
    a(f"v_add_u32 v{t1}, v{t1}, v{t2}")
    a(f"v_lshlrev_b32 v{vWr}, 6, v{t1}")
    a(f"v_bfe_u32 v{t1}, v{vL}, 4, 1")
    a(f"v_lshlrev_b32 v{t1}, 5, v{t1}")
    a(f"v_and_b32 v{t2}, 3, v{vL}")
    a(f"v_lshlrev_b32 v{t2}, 3, v{t2}")
    a(f"v_add3_u32 v{vWr}, v{vWr}, v{t1}, v{t2}")


K1_SLOT = 36864
K1_GATE = 4 * K1_SLOT
K1_SCR = K1_GATE + 1024
K1_LDS = K1_SCR + 2048


def k1_path(a, kind):
    w1 = kind == 'w1'
    sW, sT0, sT1, sMA, sWB, sRB, sONE = 60, 61, 62, 63, 64, 65, 66
    sK1 = 67
    vL, vHF, vI, vWr0 = 1, 2, 3, 4
    vAe, vAo, vWd = 5, 6, 7
    vAr0 = 8
    vAr = 12
    vWr = 16
    t1, t2, t3 = 17, 18, 19
    vSum, vSq, vG = 20, 21, 22
    vCs = 24
    vAf = 28
    vGf = 36
    vWf = 44
    vAcc = 76
    vTmp = 140
    vCsr = 156
    vK0 = 172
    ntile = 4
    rowstride = 896 if w1 else 2688
    areg = 8192 if w1 else 16384

    SK = "k1" + kind
    stamp(a, SK)
    make_srd(a, SRD_A, P_X, 2048 * 896)
    if w1:
        make_srd(a, SRD_W, P_W1, 448 * 896)
        make_srd(a, SRD_E, P_GATE, 896)
    else:
        make_srd(a, SRD_W, P_WQKV, 448 * 2688)
    make_srd(a, SRD_WS, P_WS, WS_SIZE)
    lane_consts(a, vL, vHF, vI, vWr0, t1, t2, 8)
    a(f"v_lshrrev_b32 v{t1}, 6, v0")
    a("s_nop 0")
    a(f"v_readfirstlane_b32 s{sW}, v{t1}")
    a(f"s_mov_b32 s{sONE}, 0x3f803f80")
    if w1:
        a(f"s_sub_u32 s{sT0}, s2, 192")
        a(f"s_and_b32 s{sRB}, s{sT0}, 31")
        a(f"s_lshr_b32 s{sT1}, s{sT0}, 5")
        a(f"s_lshl_b32 s{sT0}, s{sRB}, 6")
        a(f"s_lshl_b32 s{sMA}, s{sW}, 4")
        a(f"s_add_u32 s{sT0}, s{sT0}, s{sMA}")
        a(f"s_lshl_b32 s{sMA}, s{sW}, 11")
        a(f"s_mul_i32 s{sWB}, s{sW}, {16*896}")
        a(f"s_mul_i32 s{sT1}, s{sT1}, 448")
        a(f"s_add_u32 s{sWB}, s{sWB}, s{sT1}")
    else:
        a(f"s_and_b32 s{sRB}, s2, 15")
        a(f"s_lshr_b32 s{sT1}, s2, 4")
        a(f"s_lshl_b32 s{sT0}, s{sRB}, 7")
        a(f"s_lshl_b32 s{sMA}, s{sW}, 5")
        a(f"s_add_u32 s{sT0}, s{sT0}, s{sMA}")
        a(f"s_lshl_b32 s{sMA}, s{sW}, 12")
        a(f"s_mul_i32 s{sWB}, s{sT1}, 224")
        a(f"s_mul_i32 s{sT1}, s{sW}, 56")
        a(f"s_add_u32 s{sWB}, s{sWB}, s{sT1}")
    a(f"v_lshrrev_b32 v{t1}, 3, v{vL}")
    a(f"v_add_u32 v{t1}, s{sT0}, v{t1}")
    a(f"v_mul_u32_u24 v{t1}, 896, v{t1}")
    a(f"v_and_b32 v{t2}, 7, v{vL}")
    a(f"v_lshrrev_b32 v{t3}, 4, v{vL}")
    a(f"v_xor_b32 v{t2}, v{t2}, v{t3}")
    a(f"v_lshlrev_b32 v{t2}, 4, v{t2}")
    a(f"v_add_u32 v{vAe}, v{t1}, v{t2}")
    a(f"v_xor_b32 v{t2}, 64, v{t2}")
    a(f"v_add_u32 v{t1}, 7168, v{t1}")
    a(f"v_add_u32 v{vAo}, v{t1}, v{t2}")
    a(f"v_lshrrev_b32 v{t1}, 2, v{vL}")
    a(f"v_mul_u32_u24 v{t1}, {rowstride}, v{t1}")
    a(f"v_and_b32 v{t2}, 3, v{vL}")
    a(f"v_lshlrev_b32 v{t2}, 4, v{t2}")
    a(f"v_add_u32 v{vWd}, v{t1}, v{t2}")
    if w1:
        a(f"s_and_b32 s{sT0}, s{sW}, 1")
        a(f"s_lshl_b32 s{sT0}, s{sT0}, 12")
    else:
        a(f"s_lshl_b32 s{sT0}, s{sW}, 12")
    a(f"v_lshlrev_b32 v{t1}, 7, v{vI}")
    a(f"v_add_u32 v{t1}, s{sT0}, v{t1}")
    a(f"v_bfe_u32 v{t2}, v{vI}, 1, 3")
    for s in range(4):
        a(f"v_add_u32 v{t3}, {2*s}, v{vHF}")
        a(f"v_xor_b32 v{t3}, v{t3}, v{t2}")
        a(f"v_lshlrev_b32 v{t3}, 4, v{t3}")
        a(f"v_add_u32 v{vAr0+s}, v{t1}, v{t3}")
    if w1:
        a(f"s_lshr_b32 s{sT0}, s{sW}, 1")
        a(f"s_lshl_b32 s{sT0}, s{sT0}, 14")
        a(f"v_add_u32 v{vWr0}, s{sT0}, v{vWr0}")
        a(f"v_mov_b32 v{vSum}, 0")
        a(f"v_mov_b32 v{vSq}, 0")
        a(f"v_mov_b32 v{vG}, 0")
        for t in range(4):
            a(f"v_mov_b32 v{vCs+t}, 0")
        a(f"v_lshlrev_b32 v{t1}, 4, v{vL}")
        a(f"s_mov_b32 m0, {K1_GATE}")
        a("s_nop 0")
        a(f"buffer_load_dwordx4 v{t1}, {sr(SRD_E,4)}, 0 offen lds")
        a(f"v_lshlrev_b32 v{t2}, 4, v{vHF}")
        a(f"v_add_u32 v{vK0}, {K1_GATE}, v{t2}")

    ndma = 9 if w1 else 8

    def issue(c):
        sl = (c % 4) * K1_SLOT
        if w1:
            for qq in range(2):
                a(f"s_add_u32 m0, s{sMA}, {sl + qq*1024}")
                a(f"s_mov_b32 s{sT0}, {128*c}")
                a(f"buffer_load_dwordx4 v{vAo if qq else vAe}, {sr(SRD_A,4)}, s{sT0} offen lds")
            for t in range(7):
                a(f"s_lshl_b32 s{sT1}, s{sW}, 10")
                a(f"s_add_u32 m0, s{sT1}, {sl + areg + t*4096}")
                a(f"s_add_u32 s{sT0}, s{sWB}, {64*c*896 + 64*t}")
                a(f"buffer_load_dwordx4 v{vWd}, {sr(SRD_W,4)}, s{sT0} offen lds")
        else:
            for qq in range(4):
                a(f"s_add_u32 m0, s{sMA}, {sl + qq*1024}")
                a(f"s_mov_b32 s{sT0}, {128*c + (qq>>1)*14336}")
                a(f"buffer_load_dwordx4 v{vAo if qq&1 else vAe}, {sr(SRD_A,4)}, s{sT0} offen lds")
            for s_ in range(4):
                a(f"s_add_u32 m0, s{sMA}, {sl + areg + s_*1024}")
                a(f"s_add_u32 s{sT0}, s{sWB}, {(64*c+16*s_)*2688}")
                a(f"buffer_load_dwordx4 v{vWd}, {sr(SRD_W,4)}, s{sT0} offen lds")

    for c in range(3):
        issue(c)

    nrd = 10 if w1 else 9
    stamp(a, SK)

    def reads(c, s):
        b = s & 1
        a(f"ds_read_b128 {vr(vAf+4*b,4)}, v{vAr+s}")
        if w1:
            a(f"ds_read_b128 {vr(vGf+4*b,4)}, v{vK0} offset:{32*(4*c+s)}")
        for t in range(ntile):
            o = areg + t * 4096 + s * 1024
            a(f"ds_read_b64_tr_b16 {vr(vWf+16*b+4*t,2)}, v{vWr} offset:{o}")
            a(f"ds_read_b64_tr_b16 {vr(vWf+16*b+4*t+2,2)}, v{vWr} offset:{o+256}")

    for c in range(7):
        ahead = min(c + 2, 6) - c
        a(f"s_waitcnt vmcnt({ahead*ndma})")
        a("s_barrier")
        stamp(a, SK)
        if c + 3 < 7:
            issue(c + 3)
        sl = (c % 4) * K1_SLOT
        for s in range(4):
            a(f"v_add_u32 v{vAr+s}, {sl}, v{vAr0+s}")
        a(f"v_add_u32 v{vWr}, {sl}, v{vWr0}")
        reads(c, 0)
        for s in range(4):
            b = s & 1
            if s < 3:
                reads(c, s + 1)
                a(f"s_waitcnt lgkmcnt({nrd})")
            else:
                a("s_waitcnt lgkmcnt(0)")
            for t in range(ntile):
                C = "0" if (c == 0 and s == 0) else vr(vAcc + 16 * t, 16)
                X, W = vr(vAf + 4 * b, 4), vr(vWf + 16 * b + 4 * t, 4)
                if kind == 'v':
                    a(f"v_mfma_f32_32x32x16_bf16 {vr(vAcc+16*t,16)}, {X}, {W}, {C}")
                else:
                    a(f"v_mfma_f32_32x32x16_bf16 {vr(vAcc+16*t,16)}, {W}, {X}, {C}")
                if w1:
                    for i in range(4):
                        a(f"v_dot2_f32_bf16 v{vCs+t}, v{vWf+16*b+4*t+i}, s{sONE}, v{vCs+t}")
            if w1:
                for i in range(4):
                    x = vAf + 4 * b + i
                    a(f"v_dot2_f32_bf16 v{vSum}, v{x}, s{sONE}, v{vSum}")
                    a(f"v_dot2_f32_bf16 v{vSq}, v{x}, v{x}, v{vSq}")
                    a(f"v_dot2_f32_bf16 v{vG}, v{x}, v{vGf+4*b+i}, v{vG}")
    a("s_nop 15")
    stamp(a, SK)
    if not w1:
        a(f"s_lshr_b32 s{sT1}, s2, 4")
        a(f"s_lshl_b32 s{sT1}, s{sT1}, 19")
        a(f"s_lshl_b32 s{sT0}, s{sRB}, 2")
        a(f"s_add_u32 s{sT0}, s{sT0}, s{sW}")
        a(f"s_lshl_b32 s{sT0}, s{sT0}, 11")
        a(f"s_add_u32 s{sT0}, s{sT0}, s{sT1}")
        a(f"v_lshlrev_b32 v{t1}, 4, v{vL}")
        a(f"v_add_u32 v{t1}, s{sT0}, v{t1}")
        if kind == 'qk':
            a(f"s_cmp_lt_u32 s2, 64")
            a(f"s_cselect_b32 s{sT1}, {f2u(QSCALE)}, 1.0")
            a(f"v_mov_b32 v{t2}, 0x3f803f80")
            a(f"v_mov_b32 v{t3}, 0x00003f80")
            a(f"v_cmp_lt_u32 vcc, 31, v{vL}")
        else:
            a(f"v_mov_b32 v{t2}, 0x3f803f80")
            a(f"v_cmp_eq_u32 vcc, 28, v{vI}")
        for t in range(4):
            A = vAcc + 16 * t
            P = vTmp + 8 * (t & 1)
            if kind == 'qk':
                for r in range(16):
                    a(f"v_mul_f32 v{A+r}, s{sT1}, v{A+r}")
            for r in range(8):
                a(f"v_cvt_pk_bf16_f32 v{P+r}, v{A+2*r}, v{A+2*r+1}")
            if kind == 'qk':
                a(f"v_cndmask_b32 v{P+6}, v{P+6}, v{t2}, vcc")
                a(f"v_cndmask_b32 v{P+7}, v{P+7}, v{t3}, vcc")
            else:
                for r in range(8):
                    a(f"v_cndmask_b32 v{P+r}, v{P+r}, v{t2}, vcc")
            a(f"s_mov_b32 s{sT0}, {t*131072}")
            a(f"buffer_store_dwordx4 {vr(P,4)}, v{t1}, {sr(SRD_WS,4)}, s{sT0} offen")
            a(f"buffer_store_dwordx4 {vr(P+4,4)}, v{t1}, {sr(SRD_WS,4)}, s{sT0} offen offset:1024")
        stamp(a, SK)
        stamp_flush(a, SK, 5)
        a("s_endpgm")
        return
    for v in (vSum, vSq, vG, vCs, vCs + 1, vCs + 2, vCs + 3):
        xhalf_sum(a, v, t1)
    vMean, vRstd = vSum, vSq
    a(f"v_mul_f32 v{vMean}, {f2u(1.0/448)}, v{vSum}")
    a(f"v_mul_f32 v{vSq}, {f2u(1.0/448)}, v{vSq}")
    a(f"v_fma_f32 v{vSq}, -v{vMean}, v{vMean}, v{vSq}")
    a(f"v_add_f32 v{vSq}, {f2u(1e-5)}, v{vSq}")
    a(f"v_rsq_f32 v{vRstd}, v{vSq}")
    a(f"s_lshl_b32 s{sT0}, s{sW}, 9")
    a(f"s_add_u32 s{sT0}, s{sT0}, {K1_SCR}")
    a(f"v_lshlrev_b32 v{t1}, 2, v{vI}")
    a(f"v_add_u32 v{t1}, s{sT0}, v{t1}")
    for t in range(4):
        a(f"ds_write_b32 v{t1}, v{vCs+t} offset:{128*t}")
    a(f"v_lshlrev_b32 v{t2}, 4, v{vHF}")
    a(f"v_add_u32 v{t2}, s{sT0}, v{t2}")
    a(f"v_mul_f32 v{vG}, {f2u(-LOG2E)}, v{vG}")
    a(f"v_exp_f32 v{vG}, v{vG}")
    a("s_nop 0")
    a(f"v_add_f32 v{vG}, 1.0, v{vG}")
    a(f"v_rcp_f32 v{vG}, v{vG}")
    a(f"s_and_b32 s{sT1}, s{sW}, 1")
    a(f"s_lshl_b32 s{sMA}, s{sRB}, 1")
    a(f"s_add_u32 s{sMA}, s{sMA}, s{sT1}")
    a(f"s_cmp_lt_u32 s2, 224")
    a(f"s_cbranch_scc0 K1_nogate")
    a(f"s_cmp_lt_u32 s{sW}, 2")
    a(f"s_cbranch_scc0 K1_nogate")
    a(f"s_lshl_b32 s{sT1}, s{sMA}, 7")
    a(f"s_add_u32 s{sT1}, s{sT1}, {GOFF}")
    a(f"v_lshlrev_b32 v{t3}, 2, v{vI}")
    a(f"buffer_store_dword v{vG}, v{t3}, {sr(SRD_WS,4)}, s{sT1} offen")
    a.label("K1_nogate")
    a(f"s_mul_i32 s{sT1}, s{sMA}, {28*1024}")
    a(f"s_sub_u32 s{sT0}, s2, 192")
    a(f"s_lshr_b32 s{sT0}, s{sT0}, 5")
    a(f"s_mul_i32 s{sT0}, s{sT0}, {14*1024}")
    a(f"s_add_u32 s{sT1}, s{sT1}, s{sT0}")
    a(f"s_lshr_b32 s{sT0}, s{sW}, 1")
    a(f"s_lshl_b32 s{sT0}, s{sT0}, 13")
    a(f"s_add_u32 s{sT1}, s{sT1}, s{sT0}")
    a(f"s_add_u32 s{sT1}, s{sT1}, {HF}")
    a(f"v_lshlrev_b32 v{t1}, 4, v{vL}")
    a(f"v_add_u32 v{t1}, s{sT1}, v{t1}")
    a(f"s_mov_b32 s{sK1}, {f2u(GK1)}")
    a(f"v_mov_b32 v{vK0}, {f2u(GK0)}")
    a("s_waitcnt lgkmcnt(0)")
    for t in range(4):
        if t == 3:
            a(f"s_cmp_lt_u32 s{sW}, 2")
            a(f"s_cbranch_scc0 K1_w1_done")
        A = vAcc + 16 * t
        for q in range(4):
            a(f"ds_read_b128 {vr(vCsr+4*q,4)}, v{t2} offset:{128*t+32*q}")
        a("s_waitcnt lgkmcnt(0)")
        for r in range(16):
            a(f"v_fma_f32 v{A+r}, -v{vMean}, v{vCsr+r}, v{A+r}")
        for r in range(16):
            a(f"v_mul_f32 v{A+r}, v{vRstd}, v{A+r}")
        gelu_block(a, [A + r for r in range(16)], vTmp, vK0, sK1)
        for r in range(8):
            a(f"v_cvt_pk_bf16_f32 v{vTmp+r}, v{A+2*r}, v{A+2*r+1}")
        a(f"buffer_store_dwordx4 {vr(vTmp,4)}, v{t1}, {sr(SRD_WS,4)}, 0 offen offset:{2048*(t&1)}" if t < 2 else
          f"buffer_store_dwordx4 {vr(vTmp,4)}, v{t3}, {sr(SRD_WS,4)}, 0 offen offset:{2048*(t&1)}")
        a(f"buffer_store_dwordx4 {vr(vTmp+4,4)}, v{t1}, {sr(SRD_WS,4)}, 0 offen offset:{2048*(t&1)+1024}" if t < 2 else
          f"buffer_store_dwordx4 {vr(vTmp+4,4)}, v{t3}, {sr(SRD_WS,4)}, 0 offen offset:{2048*(t&1)+1024}")
        if t == 1:
            a(f"v_add_u32 v{t3}, 4096, v{t1}")
        a("s_nop 1")
    a.label("K1_w1_done")
    stamp(a, SK)
    stamp_flush(a, SK, 200)
    a("s_endpgm")


def gen_k1(a):
    kernel_head(a, "k1_kernel")
    a("s_cmp_ge_u32 s2, 256")
    a("s_cbranch_scc1 K1_exit")
    load_ptrs(a)
    a("s_waitcnt lgkmcnt(0)")
    a("s_cmp_lt_u32 s2, 128")
    a("s_cbranch_scc1 K1_qk")
    a("s_cmp_lt_u32 s2, 192")
    a("s_cbranch_scc1 K1_v")
    k1_path(a, 'w1')
    a.label("K1_qk")
    k1_path(a, 'qk')
    a.label("K1_v")
    k1_path(a, 'v')
    a.label("K1_exit")
    a("s_endpgm")


import os
STAMP = os.environ.get("STAMP", "")
_stamp_n = {}
def stamp(a, kern):
    if STAMP != kern: return
    i = _stamp_n.get(kern, 0); _stamp_n[kern] = i + 1
    a(f"s_memtime s[{76+2*i}:{77+2*i}]")
def stamp_flush(a, kern, wg):
    if STAMP != kern: return
    n = _stamp_n.get(kern, 0)
    a("s_waitcnt vmcnt(0) lgkmcnt(0)")
    a(f"s_cmp_eq_u32 s2, {wg}")
    a(f"s_cbranch_scc0 ST_skip_{kern}")
    make_srd(a, SRD_F, P_DBG, 256)
    a("v_cmp_eq_u32 vcc, 0, v0")
    a("s_and_saveexec_b64 s[74:75], vcc")
    a(f"s_cbranch_execz ST_skip_{kern}")
    for i in range(n):
        a(f"s_sub_u32 s{76+2*i+1}, s{76+2*i}, s76")
        a(f"v_mov_b32 v1, s{76+2*i+1}")
        a(f"v_mov_b32 v2, {128+4*i}")
        a(f"buffer_store_dword v1, v2, s[{SRD_F}:{SRD_F+3}], 0 offen")
    a.label(f"ST_skip_{kern}")

def l2_prefetch(a, srd, nbytes, sIdx, nw, vD16, vdst, sT):
    n = (nbytes + 1024 * nw - 1) // (1024 * nw)
    a(f"s_lshl_b32 s{sT}, s{sIdx}, 10")
    for k in range(n):
        a(f"buffer_load_dwordx4 {vr(vdst,4)}, v{vD16}, {sr(srd,4)}, s{sT} offen")
        if k + 1 < n:
            a(f"s_add_u32 s{sT}, s{sT}, {1024*nw}")


RT = os.environ.get("RT", "")
def rt_begin(a, kern):
    if RT != kern: return
    a("s_memrealtime s[96:97]")
def rt_end(a, kern, tag):
    if RT != kern: return
    a("s_memrealtime s[98:99]")
    a("s_waitcnt vmcnt(0) lgkmcnt(0)")
    make_srd(a, SRD_F, P_WS, WS_SIZE)
    a("v_and_b32 v3, 63, v0")
    a("v_cmp_eq_u32 vcc, 0, v3")
    a("s_and_saveexec_b64 s[94:95], vcc")
    a("v_mov_b32 v4, s96")
    a("v_mov_b32 v5, s98")
    a("v_lshrrev_b32 v3, 6, v0")
    a("v_lshlrev_b32 v3, 3, v3")
    a("s_lshl_b32 s93, s2, 7")
    a(f"s_add_u32 s93, s93, {24*MB}")
    a(f"buffer_store_dwordx2 v[4:5], v3, s[{SRD_F}:{SRD_F+3}], s93 offen")
    a("s_mov_b64 exec, s[94:95]")


def kd(a, name, vgpr, sgpr=102):
    a.raw(f".amdhsa_kernel {name}")
    a.raw(f"  .amdhsa_next_free_vgpr {vgpr}")
    a.raw(f"  .amdhsa_next_free_sgpr {sgpr}")
    a.raw(f"  .amdhsa_accum_offset {(vgpr+3)//4*4}")
    a.raw("  .amdhsa_group_segment_fixed_size 0")
    a.raw("  .amdhsa_kernarg_size 96")
    a.raw("  .amdhsa_user_sgpr_count 2")
    a.raw("  .amdhsa_user_sgpr_kernarg_segment_ptr 1")
    a.raw("  .amdhsa_system_sgpr_workgroup_id_x 1")
    a.raw(".end_amdhsa_kernel")


HEADER = """; gated_mix__mha_block__mixer_s_mlp__prompt -- generated by dev/gen.py (hand-designed kernels)
; Kernarg: 0 A_x, 8 A_wqkv, 16 A_wo, 24 B_x, 32 B_w1, 40 B_w2, 48 B_w3, 56 B_w4, 64 gate_w, 72 out, 80 debug, 88 ws
"""

if __name__ == "__main__":
    import gen_rest
    gen_rest.main()
```
